```python
import torch

def _softmax(x, axis=-1):
    return torch.softmax(x, dim=axis)
def _gelu(x):
    return torch.nn.functional.gelu(x, approximate="tanh")
def _silu(x):
    return torch.nn.functional.silu(x)
def _sigmoid(x):
    return torch.sigmoid(x)
def _layernorm(x, axis=-1, eps=1e-5):
    m = x.mean(dim=axis, keepdim=True)
    v = x.var(dim=axis, keepdim=True, unbiased=False)
    return (x - m) / torch.sqrt(v + eps)
def _scatter_add(tgt, idx, src, axis=0):
    return tgt.clone().index_add_(axis, idx, src)
def _segment_sum(src, seg, n):
    out = torch.zeros((n,) + src.shape[1:], dtype=src.dtype)
    return out.index_add_(0, seg, src)
def _pad(x, pw):
    flat = tuple(v for pair in reversed(pw) for v in pair)
    return torch.nn.functional.pad(x, flat)

kernel_name = 'parallel_sum__sliding_block_cached__dense_activation_gelu__decode'

def setup_inputs():

    _w = (lambda a: (lambda t: t.to(torch.bfloat16) if t.is_floating_point() else t)(torch.as_tensor(a)))
    def _A_setup():
        B, Sq, D = 1, 1, 448
        Hq, Hkv, Sk, Dh = 16, 8, 8192, 256
        assert Hq % Hkv == 0, (Hq, Hkv)
        return {
            "x": _w((lambda *s: torch.randn(*s, dtype=torch.bfloat16) * 0.05)(B, Sq, D)),
            "k_cache": _w((lambda *s: torch.randn(*s, dtype=torch.bfloat16) * 1.6)(B, Hkv, Sk, Dh)),
            "v_cache": _w((lambda *s: torch.randn(*s, dtype=torch.bfloat16) * 0.4)(B, Hkv, Sk, Dh)),
            "wq": _w((lambda *s: torch.randn(*s, dtype=torch.bfloat16) * 1.6)(D, Hq * Dh) * (D ** -0.5)),
            "wo": _w((lambda *s: torch.randn(*s, dtype=torch.bfloat16) * 0.4)(Hq * Dh, D) * ((Hq * Dh) ** -0.5)),
        }
    _A_in = _A_setup()

    def _B_setup():
        B, S, D, F = 1, 1, 448, 1792
        return {
            "x": _w((lambda *s: torch.randn(*s, dtype=torch.bfloat16) * 0.05)(B, S, D)),
            "w1": _w((lambda *s: torch.randn(*s, dtype=torch.bfloat16) * 0.8)(D, F) * (D ** -0.5)),
            "b1": _w((lambda *s: torch.randn(*s, dtype=torch.bfloat16) * 12.8)(F) * 0.01),
            "w2": _w((lambda *s: torch.randn(*s, dtype=torch.bfloat16) * 0.2)(F, D) * (F ** -0.5)),
            "b2": _w((lambda *s: torch.randn(*s, dtype=torch.bfloat16) * 1.6)(D) * 0.01),
        }
    _B_in = _B_setup()

    return {
        "A_x": _A_in["x"],
        "A_k_cache": _A_in["k_cache"],
        "A_v_cache": _A_in["v_cache"],
        "A_wq": _A_in["wq"],
        "A_wo": _A_in["wo"],
        "B_x": _B_in["x"],
        "B_w1": _B_in["w1"],
        "B_b1": _B_in["b1"],
        "B_w2": _B_in["w2"],
        "B_b2": _B_in["b2"],
    }

def reference(A_x, A_k_cache, A_v_cache, A_wq, A_wo, B_x, B_w1, B_b1, B_w2, B_b2):
    def _A_ref(x, k_cache, v_cache, wq, wo):
        B, Sq, D = x.shape
        Hq, Dh = 16, 256
        Hkv, Sk = k_cache.shape[1], k_cache.shape[2]
        W = min(4096, max(256, Sk // 4))
        rep = Hq // Hkv
        q = (lambda x, *d: x.permute(*d))((x @ wq).reshape(B, Sq, Hq, Dh), 0, 2, 1, 3)
        k = (lambda x, n, axis: torch.repeat_interleave(x, n, dim=axis))(k_cache[:, :, Sk - W:, :], rep, axis=1)
        v = (lambda x, n, axis: torch.repeat_interleave(x, n, dim=axis))(v_cache[:, :, Sk - W:, :], rep, axis=1)
        scores = torch.einsum("bhqd,bhkd->bhqk", q, k) * (Dh ** -0.5)
        p = _softmax(scores, axis=-1)
        o = torch.einsum("bhqk,bhkd->bhqd", p, v)
        return (lambda x, *d: x.permute(*d))(o, 0, 2, 1, 3).reshape(B, Sq, Hq * Dh) @ wo

    def _B_ref(x, w1, b1, w2, b2):
        h = torch.einsum("bsd,df->bsf", x, w1) + b1
        h = _gelu(h)
        return torch.einsum("bsf,fd->bsd", h, w2) + b2

    x = A_x
    xn = _layernorm(x, axis=-1)
    return x + _A_ref(xn, A_k_cache, A_v_cache, A_wq, A_wo) + _B_ref(xn, B_w1, B_b1, B_w2, B_b2)
```

```python
import re
NAME = "parallel_sum__sliding_block_cached__dense_activation_gelu__decode"

TRANS = ("v_exp_f32", "v_log_f32", "v_rcp_f32", "v_rsq_f32", "v_sqrt_f32", "v_sin_f32", "v_cos_f32")

def regs_of(tok):
    tok = tok.strip()
    tok = re.sub(r"^-|^abs\(|\)$|^\|", "", tok)
    m = re.fullmatch(r"([vsa])(\d+)", tok)
    if m: return {(m.group(1), int(m.group(2)))}
    m = re.fullmatch(r"([vsa])\[(\d+):(\d+)\]", tok)
    if m: return {(m.group(1), i) for i in range(int(m.group(2)), int(m.group(3)) + 1)}
    if tok == "vcc": return {("s", 106), ("s", 107)}
    if tok == "m0": return {("s", 124)}
    if tok == "exec": return {("s", 126), ("s", 127)}
    if tok == "exec_lo": return {("s", 126)}
    if tok == "exec_hi": return {("s", 127)}
    return set()

class Ins:
    def __init__(self, text):
        self.text = text
        t = text.split(";")[0].strip()
        self.op = t.split()[0]
        rest = t[len(self.op):].strip()
        ops = []; depth = 0; cur = ""
        for ch in rest:
            if ch in "[(": depth += 1
            if ch in "])": depth -= 1
            if ch == "," and depth == 0: ops.append(cur.strip()); cur = ""
            else: cur += ch
        if cur.strip(): ops.append(cur.strip())
        self.mods = ""
        if ops:
            parts = ops[-1].split(None, 1)
            ops[-1] = parts[0]
            self.mods = parts[1] if len(parts) > 1 else ""
        self.ops = ops
        op = self.op
        self.valu = op.startswith("v_") and not op.startswith("v_mfma")
        self.mfma = op.startswith("v_mfma")
        self.salu = op.startswith("s_") and not op.startswith(("s_load", "s_waitcnt", "s_nop", "s_barrier", "s_cbranch", "s_branch", "s_endpgm", "s_memtime", "s_memrealtime", "s_sleep", "s_setprio"))
        self.vmem = op.startswith(("global_", "buffer_"))
        self.ds = op.startswith("ds_")
        self.trans = op.replace("_e32", "").replace("_e64", "") in TRANS
        self.dpp = "_dpp" in op or "row_" in self.mods or "quad_perm" in self.mods
        self.perml = op.startswith("v_permlane")
        self.rdlane = op.startswith(("v_readlane", "v_readfirstlane"))
        R = [regs_of(o) for o in ops]
        self.w = set(); self.r = set()
        if self.valu or self.mfma:
            self.w = set(R[0]); self.r = set().union(*R[1:]) if len(R) > 1 else set()
            if self.perml: self.w |= R[1]; self.r |= R[0]
            if op.startswith(("v_fmac", "v_dot2c", "v_pk_fmac")) or self.dpp or "_d16" in op or op.startswith("v_writelane"): self.r |= R[0]
            if op.startswith(("v_add_co", "v_addc_co", "v_sub_co")): self.w |= R[1]
        elif self.salu:
            if op.startswith(("s_cmp", "s_bitcmp")): self.r = set().union(*R) if R else set()
            else:
                self.w = set(R[0]) if R else set(); self.r = set().union(*R[1:]) if len(R) > 1 else set()
                if op.startswith(("s_addk", "s_mulk")): self.r |= R[0]
                if "saveexec" in op: self.w |= regs_of("exec")
        elif self.vmem:
            if "store" in op or "lds" in op or " lds" in (" " + self.mods) or "atomic" in op:
                self.r = set().union(*R)
            else:
                self.w = set(R[0]); self.r = set().union(*R[1:])
        elif self.ds:
            if op.startswith("ds_read") or "_rtn" in op or "permute" in op or "swizzle" in op:
                self.w = set(R[0]); self.r = set().union(*R[1:])
            else: self.r = set().union(*R)
        elif op.startswith("s_load"):
            self.w = set(R[0]); self.r = set().union(*R[1:])
        self.states = 1
        if op == "s_nop": self.states = int(ops[0], 0) + 1
        self.ldsdma = self.vmem and ("load_lds" in op or re.search(r"\blds\b", self.mods) is not None)
        self.passes = 0
        if self.mfma:
            self.passes = 2 if "4x4x4" in op else (8 if "32x32" in op else 4)
            if op.endswith("x4_f32"): self.passes = 8
        self.widestore = self.vmem and "store" in op and ("x4" in op or "x3" in op)

def need(p, c):
    n = 0
    vw = {x for x in p.w if x[0] in "va"}; sw = {x for x in p.w if x[0] == "s"}
    if p.valu:
        if vw & c.r:
            if c.dpp or c.perml: n = max(n, 2)
            if c.rdlane: n = max(n, 1)
            if c.mfma: n = max(n, 2)
            if p.trans and (c.valu or c.mfma) and not c.trans: n = max(n, 1)
            if p.trans and c.trans: n = max(n, 1)
            if ("sdwa" in p.op or "op_sel" in p.mods and not p.op.startswith("v_pk")) and c.valu: n = max(n, 1)
            if p.op.startswith("v_dot") and not (c.op == p.op): n = max(n, 3)
        if sw & c.r:
            if c.vmem: n = max(n, 5)
            if c.valu: n = max(n, 4 if c.rdlane else 2)
        if (sw & regs_of("vcc")) and c.op.startswith("v_cndmask") and len(c.ops) == 4 and c.ops[3] == "vcc": n = max(n, 2)
        if sw & regs_of("exec"):
            if c.dpp: n = max(n, 5)
            if c.mfma or c.perml or c.rdlane: n = max(n, 4)
    if p.salu and (p.w & regs_of("m0")) and c.ldsdma: n = max(n, 1)
    if p.mfma:
        t = {2: 0, 4: 1, 8: 2, 16: 3}[p.passes]
        if c.mfma:
            srcC = regs_of(c.ops[3]); ab = regs_of(c.ops[1]) | regs_of(c.ops[2])
            if p.w & ab: n = max(n, [5, 8, 12, 20][t])
            if p.w & srcC:
                if p.w == srcC and p.op == c.op: n = max(n, [2, 0, 0, 0][t])
                else: n = max(n, [4, 6, 10, 18][t])
            elif p.w & c.w: n = max(n, [4, 6, 10, 18][t])
        elif (p.w & (c.r | c.w)): n = max(n, [5, 8, 12, 20][t])
        if c.valu and (regs_of(p.ops[3]) & c.w): n = max(n, [1, 3, 7, 15][t])
    if p.widestore:
        data = regs_of(p.ops[1]) if p.op.startswith("global") else regs_of(p.ops[0])
        if data & c.w: n = max(n, 2)
    return n

class Asm:
    def __init__(self): self.L = []
    def __call__(self, s):
        for line in s.split("\n"):
            line = line.strip()
            if line: self.L.append(line)
    def check(self, autofix=True):
        out = []; hist = []
        fixes = 0
        for line in self.L:
            t = line.split(";")[0].strip()
            if not t or t.endswith(":") or t.startswith("."):
                out.append(line); continue
            c = Ins(line)
            dist = 0; worst = 0
            for p in reversed(hist[-24:]):
                k = need(p, c) - dist
                if k > worst: worst = k; who = p
                dist += p.states
                if dist > 24: break
            if worst > 0:
                fixes += 1
                nop = Ins(f"s_nop {worst-1}")
                out.append(f"s_nop {worst-1}")
                hist.append(nop)
            out.append(line); hist.append(c)
            if c.op in ("s_branch", "s_endpgm"): hist = []
        self.L = out
        return fixes
    def text(self): return "\n".join(("" if (l.endswith(":") or l.startswith(".") or l.startswith(";")) else "    ") + l for l in self.L) + "\n"
```

```python
import sys
from asmlib import *

WQL = 0; W1L = 14336; XNL = 21504; ZL = 22528; VL = 24576; WL = 57344; QL = 81920; QHS = 576; QWS = 1152
SL = 86528; SHS = 384; ML = 87296; LDS_TOTAL = 87360
WS_Q = 0x1000; WS_O = 0x10000; WS_P = 0x110000; WS_ST = 0x400000
LOG2E = 1.4426950408889634
import struct
def f2u(x): return "0x%08x" % struct.unpack("<I", struct.pack("<f", x))[0]

def gen(nt_w="", nt_kv="", nt_l="", stamps=False, spin=1 << 15, kwait=8, ost="sc1", pad4k=True):
    A = Asm()
    ntw = " " + nt_w if nt_w else ""; ntk = " " + nt_kv if nt_kv else ""; ntl = " " + nt_l if nt_l else ""
    nst = [0]
    def stamp(i):
        if stamps: A(f"s_memrealtime s[{64+2*i}:{65+2*i}]")
    stamp(0)
    A(f"""
    s_cmp_ge_u32 s2, 256
    s_cbranch_scc1 L_end
    s_load_dwordx16 s[4:19], s[0:1], 0
    s_load_dwordx8 s[20:27], s[0:1], 64
    s_load_dwordx2 s[28:29], s[0:1], 96     ; ws
    v_lshrrev_b32 v1, 6, v0
    v_and_b32 v0, 63, v0                    ; lane
    v_readfirstlane_b32 s3, v1              ; wave
    s_and_b32 s30, s2, 7                    ; g
    s_lshr_b32 s31, s2, 3                   ; j
    v_and_b32 v1, 15, v0                    ; n
    v_lshrrev_b32 v2, 4, v0                 ; s
    s_min_u32 s33, s31, 27
    s_mul_i32 s32, s30, 28
    s_add_u32 s32, s32, s33
    s_cmp_eq_u32 s3, 0
    s_cbranch_scc1 L_helper
    """)
    A(f"""
    s_sub_u32 s3, s3, 1                     ; w
    s_lshl_b32 s34, s30, 22
    s_lshl_b32 s35, s31, 15
    s_add_u32 s34, s34, s35
    s_add_u32 s34, s34, 0x300000
    s_lshl_b32 s35, s3, 13
    s_add_u32 s36, s34, s35
    v_lshl_add_u32 v3, v1, 9, s36
    v_lshl_add_u32 v3, v2, 4, v3            ; K voffset
    s_lshl_b32 s36, s3, 7
    s_add_u32 s36, s36, s34
    v_lshrrev_b32 v4, 3, v0
    v_lshl_add_u32 v4, v4, 9, s36
    v_and_b32 v5, 7, v0
    v_lshlrev_b32 v6, 1, v2
    v_xor_b32 v5, v5, v6
    v_lshl_add_u32 v4, v5, 4, v4            ; V voffset
    s_add_u32 m0, s35, {VL}
    s_movk_i32 s37, 3072
    s_waitcnt lgkmcnt(0)
    """)
    stamp(1)
    A("s_load_dword s38, s[28:29], 0          ; epoch")
    for i in range(8):
        A(f"global_load_dwordx4 v[{32+4*i}:{35+4*i}], v3, s[6:7] offset:{64*i}{ntk}")
    for i in range(8):
        A(f"global_load_lds_dwordx4 v4, s[8:9] offset:{1024*(i&3)}{ntk}")
        if i == 3:
            A("s_addk_i32 m0, 4096")
            A("v_add_u32 v4, 0x1c00, v4")
        elif i < 7:
            A("v_add_u32 v4, s37, v4")
    A("s_branch L_awave")
    A(f"""
L_helper:
    s_getpc_b64 s[40:41]
    v_lshlrev_b32 v3, 7, v0
    global_load_dword v60, v3, s[40:41]
    s_lshl_b32 s34, s30, 10
    s_lshl_b32 s35, s31, 5
    s_add_u32 s34, s34, s35
    v_lshrrev_b32 v4, 1, v0
    v_lshl_add_u32 v4, v4, 13, s34
    v_and_b32 v5, 1, v0
    v_lshl_add_u32 v4, v5, 4, v4
    v_lshlrev_b32 v3, 4, v0                 ; lane*16
    v_mov_b32 v8, 0
    v_mov_b32 v9, 0
    v_mov_b32 v10, 0
    v_mov_b32 v11, 0
    ds_write_b128 v3, v[8:11] offset:{ZL}
    ds_write_b128 v3, v[8:11] offset:{ZL+1024}
    s_mov_b32 s37, {262144-1024}
    s_mov_b32 m0, {WQL}
    s_bfm_b64 exec, 56, 0
    s_waitcnt lgkmcnt(0)
    """)
    stamp(1)
    A(f"""
    global_load_dwordx4 v[8:11], v3, s[4:5]  ; x
    s_mov_b64 exec, -1
    s_load_dword s38, s[28:29], 0          ; epoch
    """)
    for i in range(14):
        A(f"global_load_lds_dwordx4 v4, s[10:11] offset:{1024*(i&3)}{ntw}")
        if i & 3 == 3:
            A("s_addk_i32 m0, 4096")
            A(f"v_add_u32 v4, {262144+3072}, v4")
        elif i < 13:
            A("v_add_u32 v4, s37, v4")
    A(f"""
    s_lshl_b32 s34, s32, 4
    s_movk_i32 s35, 3584
    v_mov_b32 v5, s34
    v_mad_u32_u24 v4, v0, s35, v5           ; w1 voffset
    s_mov_b32 s37, {229376-1024}
    s_movk_i32 m0, {W1L}
    v_and_b32 v6, 1, v2
    v_lshl_add_u32 v6, v6, 3, v5            ; b1 voffset
    """)
    for i in range(7):
        A(f"global_load_lds_dwordx4 v4, s[16:17] offset:{1024*(i&3)}{ntw}")
        if i & 3 == 3:
            A("s_addk_i32 m0, 4096")
            A(f"v_add_u32 v4, {229376+3072}, v4")
        elif i < 6:
            A("v_add_u32 v4, s37, v4")
    A(f"""
    global_load_dwordx2 v[62:63], v6, s[18:19]   ; b1
    s_lshl_b32 s34, s30, 11
    s_lshl_b32 s35, s31, 6
    s_add_u32 s34, s34, s35
    s_addk_i32 s34, {WS_Q}
    v_lshl_add_u32 v7, v2, 4, s34
    global_load_dword v61, v7, s[28:29]
    """)
    A(f"""
    s_waitcnt vmcnt(23)
    """)
    stamp(2)
    for i in range(4):
        A(f"v_lshlrev_b32 v{12+2*i}, 16, v{8+i}")
        A(f"v_and_b32 v{13+2*i}, 0xffff0000, v{8+i}")
    def allreduce_add(r, t):
        for sh in (1, 2, 4, 8):
            A(f"v_add_f32_dpp v{r}, v{r}, v{r} row_ror:{sh} row_mask:0xf bank_mask:0xf")
        A(f"v_mov_b32 v{t}, v{r}")
        A(f"v_permlane16_swap_b32 v{t}, v{r}")
        A(f"v_add_f32 v{r}, v{r}, v{t}")
        A(f"v_mov_b32 v{t}, v{r}")
        A(f"v_permlane32_swap_b32 v{t}, v{r}")
        A(f"v_add_f32 v{r}, v{r}, v{t}")
    A("""
    v_pk_add_f32 v[20:21], v[12:13], v[14:15]
    v_pk_add_f32 v[22:23], v[16:17], v[18:19]
    v_pk_add_f32 v[20:21], v[20:21], v[22:23]
    v_add_f32 v20, v20, v21
    """)
    allreduce_add(20, 21)
    A(f"""
    v_mul_f32 v20, {f2u(1/448)}, v20        ; mean
    v_mov_b32 v22, 0
    s_bfm_b64 exec, 56, 0
    """)
    for i in range(8):
        A(f"v_sub_f32 v23, v{12+i}, v20")
        A("v_fmac_f32 v22, v23, v23")
    A("s_mov_b64 exec, -1")
    allreduce_add(22, 21)
    A(f"""
    v_mul_f32 v22, {f2u(1/448)}, v22        ; var
    v_cvt_pk_bf16_f32 v20, v20, v22
    v_and_b32 v22, 0xffff0000, v20          ; bf16(var)
    v_lshlrev_b32 v20, 16, v20              ; bf16(mean)
    v_add_f32 v22, {f2u(1e-5)}, v22
    v_cvt_pk_bf16_f32 v22, v22, v22
    v_lshlrev_b32 v22, 16, v22
    v_sqrt_f32 v22, v22
    v_cvt_pk_bf16_f32 v22, v22, v22
    v_lshlrev_b32 v22, 16, v22
    v_rcp_f32 v22, v22
    """)
    for i in range(4):
        A(f"v_pk_add_f32 v[{12+2*i}:{13+2*i}], v[{12+2*i}:{13+2*i}], v[20:21] op_sel_hi:[1,0] neg_lo:[0,1] neg_hi:[0,1]")
    for i in range(4):
        A(f"v_cvt_pk_bf16_f32 v{8+i}, v{12+2*i}, v{13+2*i}")
    for i in range(4):
        A(f"v_lshlrev_b32 v{12+2*i}, 16, v{8+i}")
        A(f"v_and_b32 v{13+2*i}, 0xffff0000, v{8+i}")
    for i in range(4):
        A(f"v_pk_mul_f32 v[{12+2*i}:{13+2*i}], v[{12+2*i}:{13+2*i}], v[22:23] op_sel_hi:[1,0]")
    for i in range(4):
        A(f"v_cvt_pk_bf16_f32 v{8+i}, v{12+2*i}, v{13+2*i}")
    A(f"""
    v_and_b32 v12, 0x3c, v0
    v_lshlrev_b32 v12, 4, v12               ; 64*(t>>2)
    v_and_b32 v13, 1, v0
    v_lshl_add_u32 v12, v13, 5, v12         ; + 32*(t&1)
    v_bfe_u32 v13, v0, 1, 1
    v_lshl_add_u32 v12, v13, 3, v12         ; + 8*((t>>1)&1)
    ds_write_b64 v12, v[8:9] offset:{XNL}
    ds_write_b64 v12, v[10:11] offset:{XNL+16}
    v_lshlrev_b32 v12, 4, v2
    """)
    XF = 64
    for i in range(14):
        A(f"ds_read_b128 v[{XF+4*i}:{XF+4*i+3}], v12 offset:{XNL+64*i}")
    A(f"""
    v_lshlrev_b32 v12, 3, v0
    s_waitcnt lgkmcnt(0)
    s_mul_i32 s38, s38, 1664525
    s_add_u32 s38, s38, 1013904223          ; tag
    s_getreg_b32 s39, hwreg(HW_REG_XCC_ID)
    s_waitcnt vmcnt(9)
    """)
    stamp(3)
    WF = 120
    def gemv14(base, stride_i, half, acc):
        D = 4
        def rd(i):
            A(f"ds_read_b64_tr_b16 v[{WF+4*i}:{WF+4*i+1}], v12 offset:{base+stride_i*i}")
            A(f"ds_read_b64_tr_b16 v[{WF+4*i+2}:{WF+4*i+3}], v12 offset:{base+stride_i*i+half}")
        for i in range(D): rd(i)
        for i in range(14):
            if i + D < 14: rd(i + D)
            left = min(13, i + D) - i
            A(f"s_waitcnt lgkmcnt({2*left})")
            A(f"v_mfma_f32_16x16x32_bf16 v[{acc}:{acc+3}], v[{WF+4*i}:{WF+4*i+3}], v[{XF+4*i}:{XF+4*i+3}], {'0' if i == 0 else f'v[{acc}:{acc+3}]'}")
    gemv14(WQL, 1024, 512, 16)
    A(f"""
    v_mov_b32 v22, s39
    v_mov_b32 v23, s38
    s_mov_b32 exec_lo, 0x00010001
    s_mov_b32 exec_hi, 0x00010001
    v_cvt_pk_bf16_f32 v20, v16, v17
    v_cvt_pk_bf16_f32 v21, v18, v19
    global_store_dwordx4 v7, v[20:23], s[28:29] sc1
    s_mov_b64 exec, -1
    """)
    stamp(4)
    A(f"""
    v_lshrrev_b32 v12, 2, v0
    v_lshlrev_b32 v12, 4, v12
    v_and_b32 v13, 1, v0
    v_lshl_add_u32 v12, v13, 3, v12
    s_waitcnt vmcnt(1)
    """)
    gemv14(W1L, 512, 256, 24)
    A(f"""
    v_lshlrev_b32 v12, 16, v62
    v_and_b32 v13, 0xffff0000, v62
    v_lshlrev_b32 v14, 16, v63
    v_and_b32 v15, 0xffff0000, v63
    v_cvt_pk_bf16_f32 v28, v24, v25
    v_cvt_pk_bf16_f32 v29, v26, v27
    v_lshlrev_b32 v24, 16, v28
    v_and_b32 v25, 0xffff0000, v28
    v_lshlrev_b32 v26, 16, v29
    v_and_b32 v27, 0xffff0000, v29
    v_pk_add_f32 v[24:25], v[24:25], v[12:13]
    v_pk_add_f32 v[26:27], v[26:27], v[14:15]
    v_cvt_pk_bf16_f32 v28, v24, v25
    v_cvt_pk_bf16_f32 v29, v26, v27
    v_lshlrev_b32 v24, 16, v28
    v_and_b32 v25, 0xffff0000, v28
    v_lshlrev_b32 v26, 16, v29
    v_and_b32 v27, 0xffff0000, v29
    """)
    c1 = -2 * LOG2E * 0.7978845608028654
    A(f"v_mov_b32 v16, {f2u(c1)}")
    for r in range(4):
        A(f"v_mul_f32 v{12+r}, v{24+r}, v{24+r}")
    for r in range(4):
        A(f"v_fmamk_f32 v{12+r}, v{12+r}, {f2u(c1*0.044715)}, v16")
    for r in range(4):
        A(f"v_mul_f32 v{12+r}, v{12+r}, v{24+r}")
    for r in range(4):
        A(f"v_exp_f32 v{12+r}, v{12+r}")
    for r in range(4):
        A(f"v_add_f32 v{12+r}, 1.0, v{12+r}")
    for r in range(4):
        A(f"v_rcp_f32 v{12+r}, v{12+r}")
    for r in range(4):
        A(f"v_mul_f32 v{12+r}, v{12+r}, v{24+r}")
    A(f"""
    v_cvt_pk_bf16_f32 v28, v12, v13
    v_cvt_pk_bf16_f32 v29, v14, v15
    v_lshlrev_b32 v12, 9, v2
    s_cmp_lt_u32 s31, 28
    s_cbranch_scc0 L_hdone
    s_mov_b64 exec, 0x00010001
    ds_write_b64 v12, v[28:29] offset:{ZL+7*16+8}
    s_mov_b64 exec, -1
L_hdone:
    s_waitcnt lgkmcnt(0)
    """)
    stamp(5)
    if stamps: A("s_branch L_stamps")
    else: A("s_endpgm")
    A(f"""
L_awave:
    s_lshl_b32 s34, s30, 11
    s_addk_i32 s34, {WS_Q}
    v_lshl_add_u32 v3, v0, 4, s34
    s_mul_i32 s35, s3, {QWS}
    s_add_u32 s35, s35, {QL}
    v_lshl_add_u32 v7, v0, 3, s35
    v_lshrrev_b32 v8, 3, v1                 ; head = n>>3
    s_movk_i32 s36, {QHS}
    v_mad_u32_u24 v9, v8, s36, 0
    v_lshl_add_u32 v9, v2, 4, v9
    v_add_u32 v9, s35, v9
    s_movk_i32 s36, {SHS}
    v_mad_u32_u24 v10, v8, s36, 0
    v_lshl_add_u32 v10, v2, 6, v10
    v_add_u32 v10, {SL}, v10
    s_lshl_b32 s36, s3, 4
    v_add_u32 v11, s36, v10
    v_lshlrev_b32 v12, 4, v8
    v_add_u32 v12, {ML}, v12
    s_lshl_b32 s36, s3, 2
    v_add_u32 v13, s36, v12
    v_mov_b32 v14, 0xff800000
    ds_write_b32 v13, v14
    v_lshrrev_b32 v14, 2, v0
    v_lshlrev_b32 v15, 7, v14
    v_bfe_u32 v16, v0, 3, 2
    v_lshl_add_u32 v15, v16, 5, v15
    v_and_b32 v16, 3, v0
    v_lshl_add_u32 v15, v16, 3, v15
    s_lshl_b32 s36, s3, 13
    s_add_u32 s36, s36, {VL}
    v_add_u32 v20, s36, v15
    v_xor_b32 v21, 32, v20
    v_xor_b32 v22, 64, v20
    v_xor_b32 v23, 0x60, v20
    v_lshlrev_b32 v15, 8, v14
    v_and_b32 v17, 7, v14
    v_lshl_add_u32 v15, v17, 5, v15
    v_lshl_add_u32 v15, v16, 3, v15
    s_mul_i32 s40, s3, 6144
    s_add_u32 s40, s40, {WL}
    v_add_u32 v24, s40, v15
    v_and_b32 v15, 0x7ff, v15
    v_add_u32 v25, s40, v15
    s_lshl_b32 s34, s30, 9
    s_lshr_b32 s35, s31, 2
    s_lshl_b32 s35, s35, 6
    s_add_u32 s34, s34, s35
    s_and_b32 s35, s31, 3
    s_lshl2_add_u32 s34, s35, s34           ; R0
    s_mulk_i32 s34, 896
    s_lshl_b32 s35, s3, 8
    s_add_u32 s34, s34, s35
    s_mul_i32 s36, s32, 7168
    s_add_u32 s36, s36, s35
    s_cmp_eq_u32 s3, 3
    s_cselect_b32 s41, 7, 15
    v_xor_b32 v5, v1, v6                    ; n ^ (2s)
    v_xor_b32 v17, 8, v5
    v_and_b32 v5, s41, v5
    v_and_b32 v17, s41, v17
    s_movk_i32 s35, 896
    v_mul_u32_u24 v18, s35, v2
    v_lshl_add_u32 v5, v5, 4, v18
    v_lshl_add_u32 v17, v17, 4, v18
    v_add_u32 v26, s34, v5
    v_add_u32 v27, s34, v17
    v_add_u32 v27, {16*896-1024}, v27
    v_add_u32 v28, {32*896-2048}, v26
    v_add_u32 v29, {32*896-2048}, v27
    v_add_u32 v30, s36, v5
    v_add_u32 v31, s36, v17
    v_add_u32 v31, {4*896-1024}, v31
    s_bfe_u32 s42, s2, 0x10006
    s_lshl3_add_u32 s42, s42, s30           ; line
    s_and_b32 s43, s31, 7                   ; nn
    s_lshr_b32 s34, s42, 2
    s_lshl_b32 s34, s34, 7
    s_lshl4_add_u32 s34, s43, s34
    s_and_b32 s35, s42, 3
    s_lshl2_add_u32 s44, s35, s34           ; col0
    s_min_u32 s34, s44, 444
    v_add_lshl_u32 v19, v2, s34, 1
    s_mov_b32 m0, s40
    s_waitcnt lgkmcnt(0)
    s_mul_i32 s38, s38, 1664525
    s_add_u32 s38, s38, 1013904223          ; tag
    s_mov_b32 s45, 0
    s_waitcnt vmcnt({kwait})
    """)
    stamp(2)
    A(f"""
    global_load_dwordx4 v[64:67], v3, s[28:29] sc1
    global_load_dwordx4 v[68:71], v3, s[28:29] offset:1024 sc1
    global_load_lds_dwordx4 v26, s[12:13]{ntl}
    global_load_lds_dwordx4 v27, s[12:13] offset:1024{ntl}
    global_load_lds_dwordx4 v28, s[12:13] offset:2048{ntl}
    global_load_lds_dwordx4 v29, s[12:13] offset:3072{ntl}
    s_addk_i32 m0, 4096
    global_load_ushort v4, v19, s[4:5]
    global_load_lds_dwordx4 v30, s[20:21]{ntl}
    global_load_lds_dwordx4 v31, s[20:21] offset:1024{ntl}
    global_load_ushort v5, v19, s[22:23]
    global_load_ushort v6, v19, s[24:25]
    s_lshl_b32 s34, s30, 17
    s_lshl_b32 s35, s3, 14
    s_add_u32 s35, s35, s34
    s_lshl_b32 s36, s31, 7
    s_add_u32 s35, s35, s36
    s_add_u32 s35, s35, {WS_O}
    v_lshl_add_u32 v26, v8, 16, s35
    v_lshl_add_u32 v26, v2, 12, v26
    v_and_b32 v27, 7, v0
    v_lshl_add_u32 v26, v27, 4, v26
    s_lshl_b32 s36, s31, 12
    s_add_u32 s34, s34, s36
    s_add_u32 s34, s34, {WS_O}
    v_lshl_add_u32 v28, v0, 4, s34
    s_lshl_b32 s34, s3, 17
    s_lshl_b32 s35, s2, 7
    s_add_u32 s34, s34, s35
    s_add_u32 s34, s34, {WS_P}
    v_lshl_add_u32 v29, v2, 15, s34
    v_lshl_add_u32 v29, v1, 4, v29
    s_lshl_b32 s34, s42, 15
    s_lshl4_add_u32 s34, s43, s34
    s_add_u32 s34, s34, {WS_P}
    v_lshl_add_u32 v30, v0, 7, s34
    v_lshlrev_b32 v31, 9, v2
    v_lshl_add_u32 v31, v1, 4, v31
    v_lshrrev_b32 v18, 1, v27
    v_lshlrev_b32 v18, 9, v18
    v_and_b32 v17, 1, v0
    v_lshl_add_u32 v18, v17, 2, v18
    s_mov_b32 s46, 0xaaaaaaaa
    s_mov_b32 s47, s46
    s_mov_b32 s48, 0xcccccccc
    s_mov_b32 s49, s48
    s_mov_b32 s50, 0xf0f0f0f0
    s_mov_b32 s51, s50
    s_mov_b32 s52, {f2u(LOG2E/16)}
    s_waitcnt vmcnt(9)
L_qchk:
    v_cmp_ne_u32 vcc, s38, v67
    v_cmp_ne_u32 s[54:55], s38, v71
    s_or_b64 vcc, vcc, s[54:55]
    s_cbranch_scc0 L_qok
    s_add_u32 s45, s45, 1
    s_cmp_ge_u32 s45, {spin}
    s_cbranch_scc1 L_qok
    global_load_dwordx4 v[64:67], v3, s[28:29] sc1
    global_load_dwordx4 v[68:71], v3, s[28:29] offset:1024 sc1
    s_waitcnt vmcnt(0)
    s_branch L_qchk
L_qok:
    """)
    stamp(3)
    A(f"""
    ds_write_b64 v7, v[64:65]
    ds_write_b64 v7, v[68:69] offset:{QHS}
    """)
    QF = 72
    VF = 104
    for i in range(8):
        A(f"ds_read_b128 v[{QF+4*i}:{QF+4*i+3}], v9 offset:{64*i}")
    vreads = [(t, kb) for kb in range(4) for t in range(4)]
    for i in range(8):
        A(f"s_waitcnt lgkmcnt({7+i})")
        A(f"v_mfma_f32_16x16x32_bf16 v[64:67], v[{32+4*i}:{35+4*i}], v[{QF+4*i}:{QF+4*i+3}], {'0' if i == 0 else 'v[64:67]'}")
        for t, kb in vreads[2*i:2*i+2]:
            r = VF + 16*(kb >> 1) + 4*t + 2*(kb & 1)
            A(f"ds_read_b64_tr_b16 v[{r}:{r+1}], v{20+t} offset:{2048*kb}")
    A(f"""
    s_mov_b32 exec_lo, 0x01010101
    s_mov_b32 exec_hi, 0x01010101
    v_cvt_pk_bf16_f32 v68, v64, v65
    v_cvt_pk_bf16_f32 v69, v66, v67
    v_lshlrev_b32 v64, 16, v68
    v_and_b32 v65, 0xffff0000, v68
    v_lshlrev_b32 v66, 16, v69
    v_and_b32 v67, 0xffff0000, v69
    v_pk_mul_f32 v[64:65], v[64:65], s[52:53] op_sel_hi:[1,0]
    v_pk_mul_f32 v[66:67], v[66:67], s[52:53] op_sel_hi:[1,0]
    v_max_f32 v68, v64, v65
    v_max3_f32 v68, v66, v67, v68
    ds_write_b128 v11, v[64:67]
    ds_max_f32 v13, v68
    s_mov_b64 exec, -1
    s_waitcnt lgkmcnt(0)
    s_barrier
    ds_read_b128 v[64:67], v12
    """)
    Y = 32
    for w in range(4):
        A(f"ds_read_b128 v[{Y+4*w}:{Y+4*w+3}], v10 offset:{16*w}")
    stamp(4)
    A(f"""
    s_waitcnt lgkmcnt({4 if not stamps else 0})
    v_max_f32 v68, v64, v65
    v_max3_f32 v68, v66, v67, v68           ; M
    """)
    PB = 48
    ACC = 72
    for c in range(2):
        A(f"s_waitcnt lgkmcnt({2 if c == 0 and not stamps else 0})")
        for i in range(4):
            r = Y + 8*c + 2*i
            A(f"v_pk_add_f32 v[{r}:{r+1}], v[{r}:{r+1}], v[68:69] op_sel_hi:[1,0] neg_lo:[0,1] neg_hi:[0,1]")
        if c == 0:
            for i in range(8): A(f"v_exp_f32 v{Y+i}, v{Y+i}")
            for i in range(4): A(f"v_cvt_pk_bf16_f32 v{PB+i}, v{Y+2*i}, v{Y+2*i+1}")
    for t in range(4):
        A(f"v_exp_f32 v{Y+8+2*t}, v{Y+8+2*t}")
        A(f"v_exp_f32 v{Y+9+2*t}, v{Y+9+2*t}")
        A(f"v_mfma_f32_16x16x32_bf16 v[{ACC+4*t}:{ACC+4*t+3}], v[{VF+4*t}:{VF+4*t+3}], v[{PB}:{PB+3}], 0")
    for i in range(4): A(f"v_cvt_pk_bf16_f32 v{PB+4+i}, v{Y+8+2*i}, v{Y+9+2*i}")
    lsum = [f"v_pk_add_f32 v[{Y+2*i}:{Y+2*i+1}], v[{Y+2*i}:{Y+2*i+1}], v[{Y+8+2*i}:{Y+9+2*i}]" for i in range(4)]
    lsum += [f"v_pk_add_f32 v[{Y}:{Y+1}], v[{Y}:{Y+1}], v[{Y+4}:{Y+5}]", f"v_pk_add_f32 v[{Y+2}:{Y+3}], v[{Y+2}:{Y+3}], v[{Y+6}:{Y+7}]",
             f"v_pk_add_f32 v[{Y}:{Y+1}], v[{Y}:{Y+1}], v[{Y+2}:{Y+3}]", f"v_add_f32 v{Y}, v{Y}, v{Y+1}"]
    A(lsum[0]); A(lsum[1])
    for t in range(4):
        A(f"v_mfma_f32_16x16x32_bf16 v[{ACC+4*t}:{ACC+4*t+3}], v[{VF+16+4*t}:{VF+16+4*t+3}], v[{PB+4}:{PB+7}], v[{ACC+4*t}:{ACC+4*t+3}]")
        if t < 3: A(lsum[2+2*t]); A(lsum[3+2*t])
    A(f"""
    v_mov_b32 v{Y+1}, v{Y}
    v_mov_b32 v67, s38
    v_permlane16_swap_b32 v{Y+1}, v{Y}
    v_add_f32 v{Y}, v{Y}, v{Y+1}
    v_mov_b32 v{Y+1}, v{Y}
    v_cndmask_b32 v{ACC}, v{ACC}, v{ACC+2}, s[46:47]
    v_cndmask_b32 v{ACC+1}, v{ACC+1}, v{ACC+3}, s[46:47]
    v_permlane32_swap_b32 v{Y+1}, v{Y}
    v_add_f32 v{Y}, v{Y}, v{Y+1}            ; l
    v_cndmask_b32 v{ACC+4}, v{ACC+4}, v{ACC+6}, s[46:47]
    v_cndmask_b32 v{ACC+5}, v{ACC+5}, v{ACC+7}, s[46:47]
    v_rcp_f32 v{Y+2}, v{Y}
    v_log_f32 v66, v{Y}
    v_cndmask_b32 v{ACC+8}, v{ACC+8}, v{ACC+10}, s[46:47]
    v_cndmask_b32 v{ACC+9}, v{ACC+9}, v{ACC+11}, s[46:47]
    v_cndmask_b32 v{ACC}, v{ACC}, v{ACC+4}, s[48:49]
    v_cndmask_b32 v{ACC+1}, v{ACC+1}, v{ACC+5}, s[48:49]
    v_cndmask_b32 v{ACC+12}, v{ACC+12}, v{ACC+14}, s[46:47]
    v_cndmask_b32 v{ACC+13}, v{ACC+13}, v{ACC+15}, s[46:47]
    v_add_f32 v66, v66, v68                 ; lse2
    v_cndmask_b32 v{ACC+8}, v{ACC+8}, v{ACC+12}, s[48:49]
    v_cndmask_b32 v{ACC+9}, v{ACC+9}, v{ACC+13}, s[48:49]
    v_cndmask_b32 v{ACC}, v{ACC}, v{ACC+8}, s[50:51]
    v_cndmask_b32 v{ACC+1}, v{ACC+1}, v{ACC+9}, s[50:51]
    v_pk_mul_f32 v[64:65], v[{ACC}:{ACC+1}], v[{Y+2}:{Y+3}] op_sel_hi:[1,0]
    global_store_dwordx4 v26, v[64:67], s[28:29] {ost}
    """)
    stamp(5)
    G = 32
    A(f"""
    s_cmp_eq_u32 s3, 3
    s_cbranch_scc0 L_nog1
    """)
    for a in range(4): A(f"global_load_dwordx4 v[{G+4*a}:{G+4*a+3}], v28, s[28:29] offset:{1024*a} sc1")
    A(f"""
    s_waitcnt vmcnt(5)
    s_branch L_nog1b
L_nog1:
    s_waitcnt vmcnt(1)
L_nog1b:
    """)
    stamp(6)
    WFR = 72
    for t in range(8):
        A(f"ds_read_b64_tr_b16 v[{WFR+4*t}:{WFR+4*t+1}], v24")
        A(f"ds_read_b64_tr_b16 v[{WFR+4*t+2}:{WFR+4*t+3}], v25 offset:4096")
        if t < 7:
            x = (t ^ (t + 1)) << 5
            A(f"v_xor_b32 v24, {x}, v24"); A(f"v_xor_b32 v25, {x}, v25")
    A(f"""
    v_lshlrev_b32 v4, 16, v4
    v_lshlrev_b32 v5, 16, v5
    v_add_f32 v4, v4, v5                    ; x + b2
    s_cbranch_scc0 L_nog2
    s_mov_b32 s45, 0
L_ochk:
    s_waitcnt vmcnt(0)
    v_cmp_ne_u32 vcc, s38, v{G+3}
    v_cmp_ne_u32 s[54:55], s38, v{G+7}
    v_cmp_ne_u32 s[56:57], s38, v{G+11}
    v_cmp_ne_u32 s[58:59], s38, v{G+15}
    s_or_b64 vcc, vcc, s[54:55]
    s_or_b64 s[56:57], s[56:57], s[58:59]
    s_or_b64 vcc, vcc, s[56:57]
    s_cbranch_scc0 L_ook
    s_add_u32 s45, s45, 1
    s_cmp_ge_u32 s45, {spin}
    s_cbranch_scc1 L_ook
    """)
    for a in range(4): A(f"global_load_dwordx4 v[{G+4*a}:{G+4*a+3}], v28, s[28:29] offset:{1024*a} sc1")
    A(f"""
    s_branch L_ochk
L_ook:
    """)
    stamp(7)
    A(f"""
    v_max_f32 v48, v{G+2}, v{G+6}
    v_max3_f32 v48, v{G+10}, v{G+14}, v48
    v_max_f32_dpp v48, v48, v48 row_ror:8 row_mask:0xf bank_mask:0xf
    v_mov_b32 v49, v48
    v_permlane16_swap_b32 v49, v48
    v_max_f32 v48, v48, v49
    v_mov_b32 v49, v48
    v_permlane32_swap_b32 v49, v48
    v_max_f32 v48, v48, v49
    """)
    for a in range(4): A(f"v_sub_f32 v{G+4*a+2}, v{G+4*a+2}, v48")
    for a in range(4): A(f"v_exp_f32 v{G+4*a+2}, v{G+4*a+2}")
    A(f"""
    v_pk_mul_f32 v[50:51], v[{G}:{G+1}], v[{G+2}:{G+3}] op_sel_hi:[1,0]
    v_add_f32 v52, v{G+2}, v{G+6}
    v_pk_fma_f32 v[50:51], v[{G+4}:{G+5}], v[{G+6}:{G+7}], v[50:51] op_sel_hi:[1,0,1]
    v_add_f32 v52, v52, v{G+10}
    v_pk_fma_f32 v[50:51], v[{G+8}:{G+9}], v[{G+10}:{G+11}], v[50:51] op_sel_hi:[1,0,1]
    v_add_f32 v52, v52, v{G+14}
    v_pk_fma_f32 v[50:51], v[{G+12}:{G+13}], v[{G+14}:{G+15}], v[50:51] op_sel_hi:[1,0,1]
    s_nop 0
    v_add_f32_dpp v52, v52, v52 row_ror:8 row_mask:0xf bank_mask:0xf
    v_add_f32_dpp v50, v50, v50 row_ror:8 row_mask:0xf bank_mask:0xf
    v_add_f32_dpp v51, v51, v51 row_ror:8 row_mask:0xf bank_mask:0xf
    v_mov_b32 v56, v52
    v_mov_b32 v54, v50
    v_mov_b32 v55, v51
    v_permlane16_swap_b32 v56, v52
    v_permlane16_swap_b32 v54, v50
    v_permlane16_swap_b32 v55, v51
    v_add_f32 v52, v52, v56
    v_pk_add_f32 v[50:51], v[50:51], v[54:55]
    v_mov_b32 v56, v52
    v_mov_b32 v54, v50
    v_mov_b32 v55, v51
    v_permlane32_swap_b32 v56, v52
    v_permlane32_swap_b32 v54, v50
    v_permlane32_swap_b32 v55, v51
    v_add_f32 v52, v52, v56
    v_pk_add_f32 v[50:51], v[50:51], v[54:55]
    v_rcp_f32 v52, v52
    s_mov_b64 exec, 0xff
    v_pk_mul_f32 v[50:51], v[50:51], v[52:53] op_sel_hi:[1,0]
    v_cvt_pk_bf16_f32 v50, v50, v51
    ds_write_b32 v18, v50 offset:{ZL+7*16}
    s_mov_b64 exec, -1
L_nog2:
    s_waitcnt lgkmcnt(0)
    s_barrier
    """)
    ZF = 104
    for t in range(8): A(f"ds_read_b128 v[{ZF+4*t}:{ZF+4*t+3}], v31 offset:{ZL+(7-t)*16}")
    stamp(8)
    for t in range(8):
        A(f"s_waitcnt lgkmcnt({7-t if not stamps else 0})")
        A(f"v_mfma_f32_16x16x32_bf16 v[48:51], v[{WFR+4*t}:{WFR+4*t+3}], v[{ZF+4*t}:{ZF+4*t+3}], {'0' if t == 0 else 'v[48:51]'}")
    A(f"""
    s_mov_b32 s46, 0x07060503
    s_mov_b32 s47, 0x07060502
    s_mov_b32 s48, 0x07060501
    s_cmp_eq_u32 s3, 3
    s_cselect_b32 exec_lo, 0x000f000f, 0x00ff00ff
    s_mov_b32 exec_hi, exec_lo
    v_mov_b32 v55, s38
    v_perm_b32 v52, v48, v51, s46
    v_perm_b32 v53, v49, v51, s47
    v_perm_b32 v54, v50, v51, s48
    global_store_dwordx4 v29, v[52:55], s[28:29] sc1
    s_mov_b64 exec, -1
    """.replace("s_cselect_b32 exec_lo, 0x000f000f, 0x00ff00ff", "s_mov_b32 s49, 0x00ff00ff\n s_cselect_b32 exec_lo, 0x000f000f, s49"))
    stamp(9)
    fin = "L_stamps" if stamps else "L_end"
    A(f"""
    s_cmp_eq_u32 s3, 0
    s_cbranch_scc0 {fin}
    s_cmpk_lt_u32 s2, 128
    s_cbranch_scc0 {fin}
    s_cmpk_lt_u32 s44, 448
    s_cbranch_scc0 {fin}
    s_mov_b32 s45, 0
    s_mov_b32 s46, 0x0c0c0400
    s_mov_b32 s47, 0x0504000c
    v_add_u32 v26, 0x2000, v30
    v_add_u32 v27, 0x4000, v30
    v_add_u32 v28, 0x6000, v30
L_ppoll:
    global_load_dwordx4 v[{G}:{G+3}], v30, s[28:29] sc1
    global_load_dwordx4 v[{G+4}:{G+7}], v26, s[28:29] sc1
    global_load_dwordx4 v[{G+8}:{G+11}], v27, s[28:29] sc1
    global_load_dwordx4 v[{G+12}:{G+15}], v28, s[28:29] sc1
    s_add_u32 s45, s45, 1
    s_cmp_ge_u32 s45, {spin}
    s_cbranch_scc1 L_pok
    s_waitcnt vmcnt(0)
    v_cmp_ne_u32 vcc, s38, v{G+3}
    v_cmp_ne_u32 s[54:55], s38, v{G+7}
    v_cmp_ne_u32 s[56:57], s38, v{G+11}
    v_cmp_ne_u32 s[58:59], s38, v{G+15}
    s_or_b64 vcc, vcc, s[54:55]
    s_or_b64 s[56:57], s[56:57], s[58:59]
    s_or_b64 vcc, vcc, s[56:57]
    s_cbranch_scc1 L_ppoll
L_pok:
    s_waitcnt vmcnt(0)
    """)
    stamp(10)
    for a in range(4): A(f"v_perm_b32 v{G+4*a+3}, v{G+4*a}, v{G+4*a+1}, s46")
    for a in range(4): A(f"v_perm_b32 v{G+4*a+3}, v{G+4*a+3}, v{G+4*a+2}, s47")
    A(f"""
    v_pk_add_f32 v[{G}:{G+1}], v[{G}:{G+1}], v[{G+4}:{G+5}]
    v_pk_add_f32 v[{G+8}:{G+9}], v[{G+8}:{G+9}], v[{G+12}:{G+13}]
    v_pk_add_f32 v[{G+2}:{G+3}], v[{G+2}:{G+3}], v[{G+6}:{G+7}]
    v_pk_add_f32 v[{G+10}:{G+11}], v[{G+10}:{G+11}], v[{G+14}:{G+15}]
    v_pk_add_f32 v[{G}:{G+1}], v[{G}:{G+1}], v[{G+8}:{G+9}]
    v_pk_add_f32 v[{G+2}:{G+3}], v[{G+2}:{G+3}], v[{G+10}:{G+11}]
    v_permlane32_swap_b32 v{G}, v{G+2}
    v_permlane32_swap_b32 v{G+1}, v{G+3}
    v_pk_add_f32 v[{G}:{G+1}], v[{G}:{G+1}], v[{G+2}:{G+3}]
    v_permlane16_swap_b32 v{G}, v{G+1}
    v_add_f32 v{G}, v{G}, v{G+1}
    """)
    for sh in (1, 2, 4, 8):
        A(f"v_add_f32_dpp v{G}, v{G}, v{G} row_ror:{sh} row_mask:0xf bank_mask:0xf")
    A(f"""
    s_mov_b32 exec_lo, 0x00010001
    s_mov_b32 exec_hi, 0x00010001
    v_add_f32 v{G}, v{G}, v4
    v_cvt_pk_bf16_f32 v{G}, v{G}, v{G}
    global_store_short v19, v{G}, s[24:25]
    s_cmp_eq_u32 s2, 0
    s_cbranch_scc0 {fin}
    s_mov_b64 exec, 1
    v_mov_b32 v2, 0
    v_mov_b32 v55, s38
    global_store_dword v2, v55, s[28:29]
    """)
    if stamps:
        A(f"""
L_stamps:
    s_memrealtime s[86:87]
    s_mov_b64 exec, -1
    s_waitcnt vmcnt(0)
    s_memrealtime s[88:89]
    s_waitcnt lgkmcnt(0)
    s_getreg_b32 s34, hwreg(HW_REG_HW_ID)
    s_mul_i32 s35, s2, 5
    s_add_u32 s35, s35, s90
    s_lshl_b32 s35, s35, 6
    s_add_u32 s35, s35, {WS_ST}
    v_mov_b32 v2, s35
    """)
        for i in range(13):
            A(f"v_mov_b32 v3, s{64+2*i}")
            A(f"global_store_dword v2, v3, s[28:29] offset:{4*i}")
        A("v_mov_b32 v3, s45"); A("global_store_dword v2, v3, s[28:29] offset:52")
    A("L_end:")
    A("s_endpgm")
    if stamps:
        idx = A.L.index("s_and_b32 s30, s2, 7                    ; g")
        A.L.insert(idx, "s_mov_b32 s90, s3"); A.L.insert(idx, "s_nop 0")
        for i in range(1, 13): A.L.insert(idx, f"s_mov_b32 s{64+2*i}, 0")
        A.L.insert(idx, "s_mov_b32 s45, 0")
    nfix = A.check()
    head = f"""; fused layernorm + sliding-window GQA decode attention + GELU MLP, one persistent launch (256 workgroups)
; @launch grid=(256,1,1) block=(320,1,1) lds={LDS_TOTAL}
.amdgcn_target "amdgcn-amd-amdhsa--gfx950"
.text
.globl {NAME}_kernel
.p2align 8
.type {NAME}_kernel,@function
{NAME}_kernel:
"""
    tail = f""".fill 1024, 4, 0xbf800000
.section .rodata,"a"
.p2align 6
.amdhsa_kernel {NAME}_kernel
  .amdhsa_next_free_vgpr 176
  .amdhsa_next_free_sgpr 96
  .amdhsa_accum_offset 176
  .amdhsa_group_segment_fixed_size 0
  .amdhsa_kernarg_size 104
  .amdhsa_user_sgpr_count 2
  .amdhsa_user_sgpr_kernarg_segment_ptr 1
  .amdhsa_system_sgpr_workgroup_id_x 1
  .amdhsa_float_denorm_mode_32 3
.end_amdhsa_kernel
"""
    return head + A.text() + tail

if __name__ == "__main__":
    out = sys.argv[1]
    kw = {}
    for a in sys.argv[2:]:
        k, v = a.split("=")
        kw[k] = eval(v)
    open(out, "w").write(gen(**kw))
```

```python
import sys
from asmlib import *

WQL = 0; W1L = 14336; XNL = 21504; ZL = 22528; VL = 24576; WL = 57344; QL = 81920; QHS = 576; QWS = 1152
SL = 86528; SHS = 384; ML = 87296; LDS_TOTAL = 87360
WS_Q = 0x1000; WS_O = 0x10000; WS_P = 0x110000; WS_ST = 0x400000
LOG2E = 1.4426950408889634
import struct
def f2u(x): return "0x%08x" % struct.unpack("<I", struct.pack("<f", x))[0]

def gen(nt_w="", nt_kv="", nt_l="", stamps=False, spin=1 << 15, kwait=8, ost="sc1", pad4k=True, diag=None):
    A = Asm()
    ntw = " " + nt_w if nt_w else ""; ntk = " " + nt_kv if nt_kv else ""; ntl = " " + nt_l if nt_l else ""
    nst = [0]
    def stamp(i):
        if stamps: A(f"s_memrealtime s[{64+2*i}:{65+2*i}]")
    stamp(0)
    A(f"""
    s_cmp_ge_u32 s2, 256
    s_cbranch_scc1 L_end
    s_load_dwordx16 s[4:19], s[0:1], 0
    s_load_dwordx8 s[20:27], s[0:1], 64
    s_load_dwordx2 s[28:29], s[0:1], 96     ; ws
    v_lshrrev_b32 v1, 6, v0
    v_and_b32 v0, 63, v0                    ; lane
    v_readfirstlane_b32 s3, v1              ; wave
    s_and_b32 s30, s2, 7                    ; g
    s_lshr_b32 s31, s2, 3                   ; j
    v_and_b32 v1, 15, v0                    ; n
    v_lshrrev_b32 v2, 4, v0                 ; s
    s_min_u32 s33, s31, 27
    s_mul_i32 s32, s30, 28
    s_add_u32 s32, s32, s33
    s_cmp_eq_u32 s3, 0
    s_cbranch_scc1 L_helper
    """)
    A(f"""
    s_sub_u32 s3, s3, 1                     ; w
    s_lshl_b32 s34, s30, 22
    s_lshl_b32 s35, s31, 15
    s_add_u32 s34, s34, s35
    s_add_u32 s34, s34, 0x300000
    s_lshl_b32 s35, s3, 13
    s_add_u32 s36, s34, s35
    v_lshl_add_u32 v3, v1, 9, s36
    v_lshl_add_u32 v3, v2, 4, v3            ; K voffset
    s_lshl_b32 s36, s3, 7
    s_add_u32 s36, s36, s34
    v_lshrrev_b32 v4, 3, v0
    v_lshl_add_u32 v4, v4, 9, s36
    v_and_b32 v5, 7, v0
    v_lshlrev_b32 v6, 1, v2
    v_xor_b32 v5, v5, v6
    v_lshl_add_u32 v4, v5, 4, v4            ; V voffset
    s_add_u32 m0, s35, {VL}
    s_movk_i32 s37, 3072
    s_waitcnt lgkmcnt(0)
    """)
    stamp(1)
    A("s_load_dword s38, s[28:29], 0          ; epoch")
    for i in range(8):
        A(f"global_load_dwordx4 v[{32+4*i}:{35+4*i}], v3, s[6:7] offset:{64*i}{ntk}")
    for i in range(8):
        A(f"global_load_lds_dwordx4 v4, s[8:9] offset:{1024*(i&3)}{ntk}")
        if i == 3:
            A("s_addk_i32 m0, 4096")
            A("v_add_u32 v4, 0x1c00, v4")
        elif i < 7:
            A("v_add_u32 v4, s37, v4")
    A("s_branch L_awave")
    A(f"""
L_helper:
    s_getpc_b64 s[40:41]
    v_lshlrev_b32 v3, 7, v0
    global_load_dword v60, v3, s[40:41]
    s_lshl_b32 s34, s30, 10
    s_lshl_b32 s35, s31, 5
    s_add_u32 s34, s34, s35
    v_lshrrev_b32 v4, 1, v0
    v_lshl_add_u32 v4, v4, 13, s34
    v_and_b32 v5, 1, v0
    v_lshl_add_u32 v4, v5, 4, v4
    v_lshlrev_b32 v3, 4, v0                 ; lane*16
    v_mov_b32 v8, 0
    v_mov_b32 v9, 0
    v_mov_b32 v10, 0
    v_mov_b32 v11, 0
    ds_write_b128 v3, v[8:11] offset:{ZL}
    ds_write_b128 v3, v[8:11] offset:{ZL+1024}
    s_mov_b32 s37, {262144-1024}
    s_mov_b32 m0, {WQL}
    s_bfm_b64 exec, 56, 0
    s_waitcnt lgkmcnt(0)
    """)
    stamp(1)
    A(f"""
    global_load_dwordx4 v[8:11], v3, s[4:5]  ; x
    s_mov_b64 exec, -1
    s_load_dword s38, s[28:29], 0          ; epoch
    """)
    for i in range(14):
        A(f"global_load_lds_dwordx4 v4, s[10:11] offset:{1024*(i&3)}{ntw}")
        if i & 3 == 3:
            A("s_addk_i32 m0, 4096")
            A(f"v_add_u32 v4, {262144+3072}, v4")
        elif i < 13:
            A("v_add_u32 v4, s37, v4")
    A(f"""
    s_lshl_b32 s34, s32, 4
    s_movk_i32 s35, 3584
    v_mov_b32 v5, s34
    v_mad_u32_u24 v4, v0, s35, v5           ; w1 voffset
    s_mov_b32 s37, {229376-1024}
    s_movk_i32 m0, {W1L}
    v_and_b32 v6, 1, v2
    v_lshl_add_u32 v6, v6, 3, v5            ; b1 voffset
    """)
    for i in range(7):
        A(f"global_load_lds_dwordx4 v4, s[16:17] offset:{1024*(i&3)}{ntw}")
        if i & 3 == 3:
            A("s_addk_i32 m0, 4096")
            A(f"v_add_u32 v4, {229376+3072}, v4")
        elif i < 6:
            A("v_add_u32 v4, s37, v4")
    A(f"""
    global_load_dwordx2 v[62:63], v6, s[18:19]   ; b1
    s_lshl_b32 s34, s30, 11
    s_lshl_b32 s35, s31, 6
    s_add_u32 s34, s34, s35
    s_addk_i32 s34, {WS_Q}
    v_lshl_add_u32 v7, v2, 4, s34
    global_load_dword v61, v7, s[28:29]
    """)
    A(f"""
    s_waitcnt vmcnt(23)
    """)
    stamp(2)
    for i in range(4):
        A(f"v_lshlrev_b32 v{12+2*i}, 16, v{8+i}")
        A(f"v_and_b32 v{13+2*i}, 0xffff0000, v{8+i}")
    def allreduce_add(r, t):
        for sh in (1, 2, 4, 8):
            A(f"v_add_f32_dpp v{r}, v{r}, v{r} row_ror:{sh} row_mask:0xf bank_mask:0xf")
        A(f"v_mov_b32 v{t}, v{r}")
        A(f"v_permlane16_swap_b32 v{t}, v{r}")
        A(f"v_add_f32 v{r}, v{r}, v{t}")
        A(f"v_mov_b32 v{t}, v{r}")
        A(f"v_permlane32_swap_b32 v{t}, v{r}")
        A(f"v_add_f32 v{r}, v{r}, v{t}")
    A("""
    v_pk_add_f32 v[20:21], v[12:13], v[14:15]
    v_pk_add_f32 v[22:23], v[16:17], v[18:19]
    v_pk_add_f32 v[20:21], v[20:21], v[22:23]
    v_add_f32 v20, v20, v21
    """)
    allreduce_add(20, 21)
    A(f"""
    v_mul_f32 v20, {f2u(1/448)}, v20        ; mean
    v_mov_b32 v22, 0
    s_bfm_b64 exec, 56, 0
    """)
    for i in range(8):
        A(f"v_sub_f32 v23, v{12+i}, v20")
        A("v_fmac_f32 v22, v23, v23")
    A("s_mov_b64 exec, -1")
    allreduce_add(22, 21)
    A(f"""
    v_mul_f32 v22, {f2u(1/448)}, v22        ; var
    v_cvt_pk_bf16_f32 v20, v20, v22
    v_and_b32 v22, 0xffff0000, v20          ; bf16(var)
    v_lshlrev_b32 v20, 16, v20              ; bf16(mean)
    v_add_f32 v22, {f2u(1e-5)}, v22
    v_cvt_pk_bf16_f32 v22, v22, v22
    v_lshlrev_b32 v22, 16, v22
    v_sqrt_f32 v22, v22
    v_cvt_pk_bf16_f32 v22, v22, v22
    v_lshlrev_b32 v22, 16, v22
    v_rcp_f32 v22, v22
    """)
    for i in range(4):
        A(f"v_pk_add_f32 v[{12+2*i}:{13+2*i}], v[{12+2*i}:{13+2*i}], v[20:21] op_sel_hi:[1,0] neg_lo:[0,1] neg_hi:[0,1]")
    for i in range(4):
        A(f"v_cvt_pk_bf16_f32 v{8+i}, v{12+2*i}, v{13+2*i}")
    for i in range(4):
        A(f"v_lshlrev_b32 v{12+2*i}, 16, v{8+i}")
        A(f"v_and_b32 v{13+2*i}, 0xffff0000, v{8+i}")
    for i in range(4):
        A(f"v_pk_mul_f32 v[{12+2*i}:{13+2*i}], v[{12+2*i}:{13+2*i}], v[22:23] op_sel_hi:[1,0]")
    for i in range(4):
        A(f"v_cvt_pk_bf16_f32 v{8+i}, v{12+2*i}, v{13+2*i}")
    A(f"""
    v_and_b32 v12, 0x3c, v0
    v_lshlrev_b32 v12, 4, v12               ; 64*(t>>2)
    v_and_b32 v13, 1, v0
    v_lshl_add_u32 v12, v13, 5, v12         ; + 32*(t&1)
    v_bfe_u32 v13, v0, 1, 1
    v_lshl_add_u32 v12, v13, 3, v12         ; + 8*((t>>1)&1)
    ds_write_b64 v12, v[8:9] offset:{XNL}
    ds_write_b64 v12, v[10:11] offset:{XNL+16}
    v_lshlrev_b32 v12, 4, v2
    """)
    XF = 64
    for i in range(14):
        A(f"ds_read_b128 v[{XF+4*i}:{XF+4*i+3}], v12 offset:{XNL+64*i}")
    A(f"""
    v_lshlrev_b32 v12, 3, v0
    s_waitcnt lgkmcnt(0)
    s_mul_i32 s38, s38, 1664525
    s_add_u32 s38, s38, 1013904223          ; tag
    s_getreg_b32 s39, hwreg(HW_REG_XCC_ID)
    s_waitcnt vmcnt(9)
    """)
    stamp(3)
    WF = 120
    def gemv14(base, stride_i, half, acc):
        D = 4
        def rd(i):
            A(f"ds_read_b64_tr_b16 v[{WF+4*i}:{WF+4*i+1}], v12 offset:{base+stride_i*i}")
            A(f"ds_read_b64_tr_b16 v[{WF+4*i+2}:{WF+4*i+3}], v12 offset:{base+stride_i*i+half}")
        for i in range(D): rd(i)
        for i in range(14):
            if i + D < 14: rd(i + D)
            left = min(13, i + D) - i
            A(f"s_waitcnt lgkmcnt({2*left})")
            A(f"v_mfma_f32_16x16x32_bf16 v[{acc}:{acc+3}], v[{WF+4*i}:{WF+4*i+3}], v[{XF+4*i}:{XF+4*i+3}], {'0' if i == 0 else f'v[{acc}:{acc+3}]'}")
    gemv14(WQL, 1024, 512, 16)
    A(f"""
    v_mov_b32 v22, s39
    v_mov_b32 v23, s38
    s_mov_b32 exec_lo, 0x00010001
    s_mov_b32 exec_hi, 0x00010001
    v_cvt_pk_bf16_f32 v20, v16, v17
    v_cvt_pk_bf16_f32 v21, v18, v19
    global_store_dwordx4 v7, v[20:23], s[28:29] sc1
    s_mov_b64 exec, -1
    """)
    stamp(4)
    A(f"""
    v_lshrrev_b32 v12, 2, v0
    v_lshlrev_b32 v12, 4, v12
    v_and_b32 v13, 1, v0
    v_lshl_add_u32 v12, v13, 3, v12
    s_waitcnt vmcnt(1)
    """)
    gemv14(W1L, 512, 256, 24)
    A(f"""
    v_lshlrev_b32 v12, 16, v62
    v_and_b32 v13, 0xffff0000, v62
    v_lshlrev_b32 v14, 16, v63
    v_and_b32 v15, 0xffff0000, v63
    v_cvt_pk_bf16_f32 v28, v24, v25
    v_cvt_pk_bf16_f32 v29, v26, v27
    v_lshlrev_b32 v24, 16, v28
    v_and_b32 v25, 0xffff0000, v28
    v_lshlrev_b32 v26, 16, v29
    v_and_b32 v27, 0xffff0000, v29
    v_pk_add_f32 v[24:25], v[24:25], v[12:13]
    v_pk_add_f32 v[26:27], v[26:27], v[14:15]
    v_cvt_pk_bf16_f32 v28, v24, v25
    v_cvt_pk_bf16_f32 v29, v26, v27
    v_lshlrev_b32 v24, 16, v28
    v_and_b32 v25, 0xffff0000, v28
    v_lshlrev_b32 v26, 16, v29
    v_and_b32 v27, 0xffff0000, v29
    """)
    c1 = -2 * LOG2E * 0.7978845608028654
    A(f"v_mov_b32 v16, {f2u(c1)}")
    for r in range(4):
        A(f"v_mul_f32 v{12+r}, v{24+r}, v{24+r}")
    for r in range(4):
        A(f"v_fmamk_f32 v{12+r}, v{12+r}, {f2u(c1*0.044715)}, v16")
    for r in range(4):
        A(f"v_mul_f32 v{12+r}, v{12+r}, v{24+r}")
    for r in range(4):
        A(f"v_exp_f32 v{12+r}, v{12+r}")
    for r in range(4):
        A(f"v_add_f32 v{12+r}, 1.0, v{12+r}")
    for r in range(4):
        A(f"v_rcp_f32 v{12+r}, v{12+r}")
    for r in range(4):
        A(f"v_mul_f32 v{12+r}, v{12+r}, v{24+r}")
    A(f"""
    v_cvt_pk_bf16_f32 v28, v12, v13
    v_cvt_pk_bf16_f32 v29, v14, v15
    v_lshlrev_b32 v12, 9, v2
    s_cmp_lt_u32 s31, 28
    s_cbranch_scc0 L_hdone
    s_mov_b64 exec, 0x00010001
    ds_write_b64 v12, v[28:29] offset:{ZL+7*16+8}
    s_mov_b64 exec, -1
L_hdone:
    s_waitcnt lgkmcnt(0)
    """)
    stamp(5)
    if diag is not None: A("s_barrier\ns_barrier")
    if stamps: A("s_branch L_stamps")
    else: A("s_endpgm")
    A(f"""
L_awave:
    s_lshl_b32 s34, s30, 11
    s_addk_i32 s34, {WS_Q}
    v_lshl_add_u32 v3, v0, 4, s34
    s_mul_i32 s35, s3, {QWS}
    s_add_u32 s35, s35, {QL}
    v_lshl_add_u32 v7, v0, 3, s35
    v_lshrrev_b32 v8, 3, v1                 ; head = n>>3
    s_movk_i32 s36, {QHS}
    v_mad_u32_u24 v9, v8, s36, 0
    v_lshl_add_u32 v9, v2, 4, v9
    v_add_u32 v9, s35, v9
    s_movk_i32 s36, {SHS}
    v_mad_u32_u24 v10, v8, s36, 0
    v_lshl_add_u32 v10, v2, 6, v10
    v_add_u32 v10, {SL}, v10
    s_lshl_b32 s36, s3, 4
    v_add_u32 v11, s36, v10
    v_lshlrev_b32 v12, 4, v8
    v_add_u32 v12, {ML}, v12
    s_lshl_b32 s36, s3, 2
    v_add_u32 v13, s36, v12
    v_mov_b32 v14, 0xff800000
    ds_write_b32 v13, v14
    v_lshrrev_b32 v14, 2, v0
    v_lshlrev_b32 v15, 7, v14
    v_bfe_u32 v16, v0, 3, 2
    v_lshl_add_u32 v15, v16, 5, v15
    v_and_b32 v16, 3, v0
    v_lshl_add_u32 v15, v16, 3, v15
    s_lshl_b32 s36, s3, 13
    s_add_u32 s36, s36, {VL}
    v_add_u32 v20, s36, v15
    v_xor_b32 v21, 32, v20
    v_xor_b32 v22, 64, v20
    v_xor_b32 v23, 0x60, v20
    v_lshlrev_b32 v15, 8, v14
    v_and_b32 v17, 7, v14
    v_lshl_add_u32 v15, v17, 5, v15
    v_lshl_add_u32 v15, v16, 3, v15
    s_mul_i32 s40, s3, 6144
    s_add_u32 s40, s40, {WL}
    v_add_u32 v24, s40, v15
    v_and_b32 v15, 0x7ff, v15
    v_add_u32 v25, s40, v15
    s_lshl_b32 s34, s30, 9
    s_lshr_b32 s35, s31, 2
    s_lshl_b32 s35, s35, 6
    s_add_u32 s34, s34, s35
    s_and_b32 s35, s31, 3
    s_lshl2_add_u32 s34, s35, s34           ; R0
    s_mulk_i32 s34, 896
    s_lshl_b32 s35, s3, 8
    s_add_u32 s34, s34, s35
    s_mul_i32 s36, s32, 7168
    s_add_u32 s36, s36, s35
    s_cmp_eq_u32 s3, 3
    s_cselect_b32 s41, 7, 15
    v_xor_b32 v5, v1, v6                    ; n ^ (2s)
    v_xor_b32 v17, 8, v5
    v_and_b32 v5, s41, v5
    v_and_b32 v17, s41, v17
    s_movk_i32 s35, 896
    v_mul_u32_u24 v18, s35, v2
    v_lshl_add_u32 v5, v5, 4, v18
    v_lshl_add_u32 v17, v17, 4, v18
    v_add_u32 v26, s34, v5
    v_add_u32 v27, s34, v17
    v_add_u32 v27, {16*896-1024}, v27
    v_add_u32 v28, {32*896-2048}, v26
    v_add_u32 v29, {32*896-2048}, v27
    v_add_u32 v30, s36, v5
    v_add_u32 v31, s36, v17
    v_add_u32 v31, {4*896-1024}, v31
    s_bfe_u32 s42, s2, 0x10006
    s_lshl3_add_u32 s42, s42, s30           ; line
    s_and_b32 s43, s31, 7                   ; nn
    s_lshr_b32 s34, s42, 2
    s_lshl_b32 s34, s34, 7
    s_lshl4_add_u32 s34, s43, s34
    s_and_b32 s35, s42, 3
    s_lshl2_add_u32 s44, s35, s34           ; col0
    s_min_u32 s34, s44, 444
    v_add_lshl_u32 v19, v2, s34, 1
    s_mov_b32 m0, s40
    s_waitcnt lgkmcnt(0)
    s_mul_i32 s38, s38, 1664525
    s_add_u32 s38, s38, 1013904223          ; tag
    s_mov_b32 s45, 0
    s_waitcnt vmcnt({kwait})
    """)
    stamp(2)
    A(f"""
    global_load_dwordx4 v[64:67], v3, s[28:29] sc1
    global_load_dwordx4 v[68:71], v3, s[28:29] offset:1024 sc1
    global_load_lds_dwordx4 v26, s[12:13]{ntl}
    global_load_lds_dwordx4 v27, s[12:13] offset:1024{ntl}
    global_load_lds_dwordx4 v28, s[12:13] offset:2048{ntl}
    global_load_lds_dwordx4 v29, s[12:13] offset:3072{ntl}
    s_addk_i32 m0, 4096
    global_load_ushort v4, v19, s[4:5]
    global_load_lds_dwordx4 v30, s[20:21]{ntl}
    global_load_lds_dwordx4 v31, s[20:21] offset:1024{ntl}
    global_load_ushort v5, v19, s[22:23]
    global_load_ushort v6, v19, s[24:25]
    s_lshl_b32 s34, s30, 17
    s_lshl_b32 s35, s3, 14
    s_add_u32 s35, s35, s34
    s_lshl_b32 s36, s31, 7
    s_add_u32 s35, s35, s36
    s_add_u32 s35, s35, {WS_O}
    v_lshl_add_u32 v26, v8, 16, s35
    v_lshl_add_u32 v26, v2, 12, v26
    v_and_b32 v27, 7, v0
    v_lshl_add_u32 v26, v27, 4, v26
    s_lshl_b32 s36, s31, 12
    s_add_u32 s34, s34, s36
    s_add_u32 s34, s34, {WS_O}
    v_lshl_add_u32 v28, v0, 4, s34
    s_lshl_b32 s34, s3, 17
    s_lshl_b32 s35, s2, 7
    s_add_u32 s34, s34, s35
    s_add_u32 s34, s34, {WS_P}
    v_lshl_add_u32 v29, v2, 15, s34
    v_lshl_add_u32 v29, v1, 4, v29
    s_lshl_b32 s34, s42, 15
    s_lshl4_add_u32 s34, s43, s34
    s_add_u32 s34, s34, {WS_P}
    v_lshl_add_u32 v30, v0, 7, s34
    v_lshlrev_b32 v31, 9, v2
    v_lshl_add_u32 v31, v1, 4, v31
    v_lshrrev_b32 v18, 1, v27
    v_lshlrev_b32 v18, 9, v18
    v_and_b32 v17, 1, v0
    v_lshl_add_u32 v18, v17, 2, v18
    s_mov_b32 s46, 0xaaaaaaaa
    s_mov_b32 s47, s46
    s_mov_b32 s48, 0xcccccccc
    s_mov_b32 s49, s48
    s_mov_b32 s50, 0xf0f0f0f0
    s_mov_b32 s51, s50
    s_mov_b32 s52, {f2u(LOG2E/16)}
    s_waitcnt vmcnt(9)
L_qchk:
    v_cmp_ne_u32 vcc, s38, v67
    v_cmp_ne_u32 s[54:55], s38, v71
    s_or_b64 vcc, vcc, s[54:55]
    s_cbranch_scc0 L_qok
    s_add_u32 s45, s45, 1
    s_cmp_ge_u32 s45, {spin}
    s_cbranch_scc1 L_qok
    global_load_dwordx4 v[64:67], v3, s[28:29] sc1
    global_load_dwordx4 v[68:71], v3, s[28:29] offset:1024 sc1
    s_waitcnt vmcnt(0)
    s_branch L_qchk
L_qok:
    """)
    stamp(3)
    A(f"""
    ds_write_b64 v7, v[64:65]
    ds_write_b64 v7, v[68:69] offset:{QHS}
    """)
    QF = 72
    VF = 104
    for i in range(8):
        A(f"ds_read_b128 v[{QF+4*i}:{QF+4*i+3}], v9 offset:{64*i}")
    vreads = [(t, kb) for kb in range(4) for t in range(4)]
    for i in range(8):
        A(f"s_waitcnt lgkmcnt({7+i})")
        A(f"v_mfma_f32_16x16x32_bf16 v[64:67], v[{32+4*i}:{35+4*i}], v[{QF+4*i}:{QF+4*i+3}], {'0' if i == 0 else 'v[64:67]'}")
        for t, kb in vreads[2*i:2*i+2]:
            r = VF + 16*(kb >> 1) + 4*t + 2*(kb & 1)
            A(f"ds_read_b64_tr_b16 v[{r}:{r+1}], v{20+t} offset:{2048*kb}")
    A(f"""
    s_mov_b32 exec_lo, 0x01010101
    s_mov_b32 exec_hi, 0x01010101
    v_cvt_pk_bf16_f32 v68, v64, v65
    v_cvt_pk_bf16_f32 v69, v66, v67
    v_lshlrev_b32 v64, 16, v68
    v_and_b32 v65, 0xffff0000, v68
    v_lshlrev_b32 v66, 16, v69
    v_and_b32 v67, 0xffff0000, v69
    v_pk_mul_f32 v[64:65], v[64:65], s[52:53] op_sel_hi:[1,0]
    v_pk_mul_f32 v[66:67], v[66:67], s[52:53] op_sel_hi:[1,0]
    v_max_f32 v68, v64, v65
    v_max3_f32 v68, v66, v67, v68
    ds_write_b128 v11, v[64:67]
    ds_max_f32 v13, v68
    s_mov_b64 exec, -1
    s_waitcnt lgkmcnt(0)
    s_barrier
    ds_read_b128 v[64:67], v12
    """)
    Y = 32
    for w in range(4):
        A(f"ds_read_b128 v[{Y+4*w}:{Y+4*w+3}], v10 offset:{16*w}")
    stamp(4)
    A(f"""
    s_waitcnt lgkmcnt({4 if not stamps else 0})
    v_max_f32 v68, v64, v65
    v_max3_f32 v68, v66, v67, v68           ; M
    """)
    PB = 48
    ACC = 72
    for c in range(2):
        A(f"s_waitcnt lgkmcnt({2 if c == 0 and not stamps else 0})")
        for i in range(4):
            r = Y + 8*c + 2*i
            A(f"v_pk_add_f32 v[{r}:{r+1}], v[{r}:{r+1}], v[68:69] op_sel_hi:[1,0] neg_lo:[0,1] neg_hi:[0,1]")
        if c == 0:
            for i in range(8): A(f"v_exp_f32 v{Y+i}, v{Y+i}")
            for i in range(4): A(f"v_cvt_pk_bf16_f32 v{PB+i}, v{Y+2*i}, v{Y+2*i+1}")
    for t in range(4):
        A(f"v_exp_f32 v{Y+8+2*t}, v{Y+8+2*t}")
        A(f"v_exp_f32 v{Y+9+2*t}, v{Y+9+2*t}")
        A(f"v_mfma_f32_16x16x32_bf16 v[{ACC+4*t}:{ACC+4*t+3}], v[{VF+4*t}:{VF+4*t+3}], v[{PB}:{PB+3}], 0")
    for i in range(4): A(f"v_cvt_pk_bf16_f32 v{PB+4+i}, v{Y+8+2*i}, v{Y+9+2*i}")
    lsum = [f"v_pk_add_f32 v[{Y+2*i}:{Y+2*i+1}], v[{Y+2*i}:{Y+2*i+1}], v[{Y+8+2*i}:{Y+9+2*i}]" for i in range(4)]
    lsum += [f"v_pk_add_f32 v[{Y}:{Y+1}], v[{Y}:{Y+1}], v[{Y+4}:{Y+5}]", f"v_pk_add_f32 v[{Y+2}:{Y+3}], v[{Y+2}:{Y+3}], v[{Y+6}:{Y+7}]",
             f"v_pk_add_f32 v[{Y}:{Y+1}], v[{Y}:{Y+1}], v[{Y+2}:{Y+3}]", f"v_add_f32 v{Y}, v{Y}, v{Y+1}"]
    A(lsum[0]); A(lsum[1])
    for t in range(4):
        A(f"v_mfma_f32_16x16x32_bf16 v[{ACC+4*t}:{ACC+4*t+3}], v[{VF+16+4*t}:{VF+16+4*t+3}], v[{PB+4}:{PB+7}], v[{ACC+4*t}:{ACC+4*t+3}]")
        if t < 3: A(lsum[2+2*t]); A(lsum[3+2*t])
    A(f"""
    v_mov_b32 v{Y+1}, v{Y}
    v_mov_b32 v67, s38
    v_permlane16_swap_b32 v{Y+1}, v{Y}
    v_add_f32 v{Y}, v{Y}, v{Y+1}
    v_mov_b32 v{Y+1}, v{Y}
    v_cndmask_b32 v{ACC}, v{ACC}, v{ACC+2}, s[46:47]
    v_cndmask_b32 v{ACC+1}, v{ACC+1}, v{ACC+3}, s[46:47]
    v_permlane32_swap_b32 v{Y+1}, v{Y}
    v_add_f32 v{Y}, v{Y}, v{Y+1}            ; l
    v_cndmask_b32 v{ACC+4}, v{ACC+4}, v{ACC+6}, s[46:47]
    v_cndmask_b32 v{ACC+5}, v{ACC+5}, v{ACC+7}, s[46:47]
    v_rcp_f32 v{Y+2}, v{Y}
    v_log_f32 v66, v{Y}
    v_cndmask_b32 v{ACC+8}, v{ACC+8}, v{ACC+10}, s[46:47]
    v_cndmask_b32 v{ACC+9}, v{ACC+9}, v{ACC+11}, s[46:47]
    v_cndmask_b32 v{ACC}, v{ACC}, v{ACC+4}, s[48:49]
    v_cndmask_b32 v{ACC+1}, v{ACC+1}, v{ACC+5}, s[48:49]
    v_cndmask_b32 v{ACC+12}, v{ACC+12}, v{ACC+14}, s[46:47]
    v_cndmask_b32 v{ACC+13}, v{ACC+13}, v{ACC+15}, s[46:47]
    v_add_f32 v66, v66, v68                 ; lse2
    v_cndmask_b32 v{ACC+8}, v{ACC+8}, v{ACC+12}, s[48:49]
    v_cndmask_b32 v{ACC+9}, v{ACC+9}, v{ACC+13}, s[48:49]
    v_cndmask_b32 v{ACC}, v{ACC}, v{ACC+8}, s[50:51]
    v_cndmask_b32 v{ACC+1}, v{ACC+1}, v{ACC+9}, s[50:51]
    v_pk_mul_f32 v[64:65], v[{ACC}:{ACC+1}], v[{Y+2}:{Y+3}] op_sel_hi:[1,0]
    global_store_dwordx4 v26, v[64:67], s[28:29] {ost}
    """)
    stamp(5)
    G = 32
    A(f"""
    s_cmp_eq_u32 s3, 3
    s_cbranch_scc0 L_nog1
    """)
    for a in range(4): A(f"global_load_dwordx4 v[{G+4*a}:{G+4*a+3}], v28, s[28:29] offset:{1024*a} sc1")
    A(f"""
    s_waitcnt vmcnt(5)
    s_branch L_nog1b
L_nog1:
    s_waitcnt vmcnt(1)
L_nog1b:
    """)
    stamp(6)
    WFR = 72
    for t in range(8):
        A(f"ds_read_b64_tr_b16 v[{WFR+4*t}:{WFR+4*t+1}], v24")
        A(f"ds_read_b64_tr_b16 v[{WFR+4*t+2}:{WFR+4*t+3}], v25 offset:4096")
        if t < 7:
            x = (t ^ (t + 1)) << 5
            A(f"v_xor_b32 v24, {x}, v24"); A(f"v_xor_b32 v25, {x}, v25")
    A(f"""
    v_lshlrev_b32 v4, 16, v4
    v_lshlrev_b32 v5, 16, v5
    v_add_f32 v4, v4, v5                    ; x + b2
    s_cbranch_scc0 L_nog2
    s_mov_b32 s45, 0
L_ochk:
    s_waitcnt vmcnt(0)
    v_cmp_ne_u32 vcc, s38, v{G+3}
    v_cmp_ne_u32 s[54:55], s38, v{G+7}
    v_cmp_ne_u32 s[56:57], s38, v{G+11}
    v_cmp_ne_u32 s[58:59], s38, v{G+15}
    s_or_b64 vcc, vcc, s[54:55]
    s_or_b64 s[56:57], s[56:57], s[58:59]
    s_or_b64 vcc, vcc, s[56:57]
    s_cbranch_scc0 L_ook
    s_add_u32 s45, s45, 1
    s_cmp_ge_u32 s45, {spin}
    s_cbranch_scc1 L_ook
    """)
    for a in range(4): A(f"global_load_dwordx4 v[{G+4*a}:{G+4*a+3}], v28, s[28:29] offset:{1024*a} sc1")
    A(f"""
    s_branch L_ochk
L_ook:
    """)
    stamp(7)
    A(f"""
    v_max_f32 v48, v{G+2}, v{G+6}
    v_max3_f32 v48, v{G+10}, v{G+14}, v48
    v_max_f32_dpp v48, v48, v48 row_ror:8 row_mask:0xf bank_mask:0xf
    v_mov_b32 v49, v48
    v_permlane16_swap_b32 v49, v48
    v_max_f32 v48, v48, v49
    v_mov_b32 v49, v48
    v_permlane32_swap_b32 v49, v48
    v_max_f32 v48, v48, v49
    """)
    for a in range(4): A(f"v_sub_f32 v{G+4*a+2}, v{G+4*a+2}, v48")
    for a in range(4): A(f"v_exp_f32 v{G+4*a+2}, v{G+4*a+2}")
    A(f"""
    v_pk_mul_f32 v[50:51], v[{G}:{G+1}], v[{G+2}:{G+3}] op_sel_hi:[1,0]
    v_add_f32 v52, v{G+2}, v{G+6}
    v_pk_fma_f32 v[50:51], v[{G+4}:{G+5}], v[{G+6}:{G+7}], v[50:51] op_sel_hi:[1,0,1]
    v_add_f32 v52, v52, v{G+10}
    v_pk_fma_f32 v[50:51], v[{G+8}:{G+9}], v[{G+10}:{G+11}], v[50:51] op_sel_hi:[1,0,1]
    v_add_f32 v52, v52, v{G+14}
    v_pk_fma_f32 v[50:51], v[{G+12}:{G+13}], v[{G+14}:{G+15}], v[50:51] op_sel_hi:[1,0,1]
    s_nop 0
    v_add_f32_dpp v52, v52, v52 row_ror:8 row_mask:0xf bank_mask:0xf
    v_add_f32_dpp v50, v50, v50 row_ror:8 row_mask:0xf bank_mask:0xf
    v_add_f32_dpp v51, v51, v51 row_ror:8 row_mask:0xf bank_mask:0xf
    v_mov_b32 v56, v52
    v_mov_b32 v54, v50
    v_mov_b32 v55, v51
    v_permlane16_swap_b32 v56, v52
    v_permlane16_swap_b32 v54, v50
    v_permlane16_swap_b32 v55, v51
    v_add_f32 v52, v52, v56
    v_pk_add_f32 v[50:51], v[50:51], v[54:55]
    v_mov_b32 v56, v52
    v_mov_b32 v54, v50
    v_mov_b32 v55, v51
    v_permlane32_swap_b32 v56, v52
    v_permlane32_swap_b32 v54, v50
    v_permlane32_swap_b32 v55, v51
    v_add_f32 v52, v52, v56
    v_pk_add_f32 v[50:51], v[50:51], v[54:55]
    v_rcp_f32 v52, v52
    s_mov_b64 exec, 0xff
    v_pk_mul_f32 v[50:51], v[50:51], v[52:53] op_sel_hi:[1,0]
    v_cvt_pk_bf16_f32 v50, v50, v51
    ds_write_b32 v18, v50 offset:{ZL+7*16}
    s_mov_b64 exec, -1
L_nog2:
    s_waitcnt lgkmcnt(0)
    s_barrier
    """)
    ZF = 104
    for t in range(8): A(f"ds_read_b128 v[{ZF+4*t}:{ZF+4*t+3}], v31 offset:{ZL+(7-t)*16}")
    stamp(8)
    for t in range(8):
        A(f"s_waitcnt lgkmcnt({7-t if not stamps else 0})")
        A(f"v_mfma_f32_16x16x32_bf16 v[48:51], v[{WFR+4*t}:{WFR+4*t+3}], v[{ZF+4*t}:{ZF+4*t+3}], {'0' if t == 0 else 'v[48:51]'}")
    A(f"""
    s_mov_b32 s46, 0x07060503
    s_mov_b32 s47, 0x07060502
    s_mov_b32 s48, 0x07060501
    s_cmp_eq_u32 s3, 3
    s_cselect_b32 exec_lo, 0x000f000f, 0x00ff00ff
    s_mov_b32 exec_hi, exec_lo
    v_mov_b32 v55, s38
    v_perm_b32 v52, v48, v51, s46
    v_perm_b32 v53, v49, v51, s47
    v_perm_b32 v54, v50, v51, s48
    global_store_dwordx4 v29, v[52:55], s[28:29] sc1
    s_mov_b64 exec, -1
    """.replace("s_cselect_b32 exec_lo, 0x000f000f, 0x00ff00ff", "s_mov_b32 s49, 0x00ff00ff\n s_cselect_b32 exec_lo, 0x000f000f, s49"))
    stamp(9)
    fin = "L_stamps" if stamps else "L_end"
    A(f"""
    s_cmp_eq_u32 s3, 0
    s_cbranch_scc0 {fin}
    s_cmpk_lt_u32 s2, 128
    s_cbranch_scc0 {fin}
    s_cmpk_lt_u32 s44, 448
    s_cbranch_scc0 {fin}
    s_mov_b32 s45, 0
    s_mov_b32 s46, 0x0c0c0400
    s_mov_b32 s47, 0x0504000c
    v_add_u32 v26, 0x2000, v30
    v_add_u32 v27, 0x4000, v30
    v_add_u32 v28, 0x6000, v30
L_ppoll:
    global_load_dwordx4 v[{G}:{G+3}], v30, s[28:29] sc1
    global_load_dwordx4 v[{G+4}:{G+7}], v26, s[28:29] sc1
    global_load_dwordx4 v[{G+8}:{G+11}], v27, s[28:29] sc1
    global_load_dwordx4 v[{G+12}:{G+15}], v28, s[28:29] sc1
    s_add_u32 s45, s45, 1
    s_cmp_ge_u32 s45, {spin}
    s_cbranch_scc1 L_pok
    s_waitcnt vmcnt(0)
    v_cmp_ne_u32 vcc, s38, v{G+3}
    v_cmp_ne_u32 s[54:55], s38, v{G+7}
    v_cmp_ne_u32 s[56:57], s38, v{G+11}
    v_cmp_ne_u32 s[58:59], s38, v{G+15}
    s_or_b64 vcc, vcc, s[54:55]
    s_or_b64 s[56:57], s[56:57], s[58:59]
    s_or_b64 vcc, vcc, s[56:57]
    s_cbranch_scc1 L_ppoll
L_pok:
    s_waitcnt vmcnt(0)
    """)
    stamp(10)
    for a in range(4): A(f"v_perm_b32 v{G+4*a+3}, v{G+4*a}, v{G+4*a+1}, s46")
    for a in range(4): A(f"v_perm_b32 v{G+4*a+3}, v{G+4*a+3}, v{G+4*a+2}, s47")
    A(f"""
    v_pk_add_f32 v[{G}:{G+1}], v[{G}:{G+1}], v[{G+4}:{G+5}]
    v_pk_add_f32 v[{G+8}:{G+9}], v[{G+8}:{G+9}], v[{G+12}:{G+13}]
    v_pk_add_f32 v[{G+2}:{G+3}], v[{G+2}:{G+3}], v[{G+6}:{G+7}]
    v_pk_add_f32 v[{G+10}:{G+11}], v[{G+10}:{G+11}], v[{G+14}:{G+15}]
    v_pk_add_f32 v[{G}:{G+1}], v[{G}:{G+1}], v[{G+8}:{G+9}]
    v_pk_add_f32 v[{G+2}:{G+3}], v[{G+2}:{G+3}], v[{G+10}:{G+11}]
    v_permlane32_swap_b32 v{G}, v{G+2}
    v_permlane32_swap_b32 v{G+1}, v{G+3}
    v_pk_add_f32 v[{G}:{G+1}], v[{G}:{G+1}], v[{G+2}:{G+3}]
    v_permlane16_swap_b32 v{G}, v{G+1}
    v_add_f32 v{G}, v{G}, v{G+1}
    """)
    for sh in (1, 2, 4, 8):
        A(f"v_add_f32_dpp v{G}, v{G}, v{G} row_ror:{sh} row_mask:0xf bank_mask:0xf")
    A(f"""
    s_mov_b32 exec_lo, 0x00010001
    s_mov_b32 exec_hi, 0x00010001
    v_add_f32 v{G}, v{G}, v4
    v_cvt_pk_bf16_f32 v{G}, v{G}, v{G}
    global_store_short v19, v{G}, s[24:25]
    s_cmp_eq_u32 s2, 0
    s_cbranch_scc0 {fin}
    s_mov_b64 exec, 1
    v_mov_b32 v2, 0
    v_mov_b32 v55, s38
    global_store_dword v2, v55, s[28:29]
    """)
    if stamps:
        A(f"""
L_stamps:
    s_memrealtime s[86:87]
    s_mov_b64 exec, -1
    s_waitcnt vmcnt(0)
    s_memrealtime s[88:89]
    s_waitcnt lgkmcnt(0)
    s_getreg_b32 s34, hwreg(HW_REG_HW_ID)
    s_mul_i32 s35, s2, 5
    s_add_u32 s35, s35, s90
    s_lshl_b32 s35, s35, 6
    s_add_u32 s35, s35, {WS_ST}
    v_mov_b32 v2, s35
    """)
        for i in range(13):
            A(f"v_mov_b32 v3, s{64+2*i}")
            A(f"global_store_dword v2, v3, s[28:29] offset:{4*i}")
        A("v_mov_b32 v3, s45"); A("global_store_dword v2, v3, s[28:29] offset:52")
    if diag is not None:
        base, mult, idx, role = diag
        A(f"""
    s_waitcnt vmcnt(0) lgkmcnt(0)
    s_sub_u32 s34, s{64+2*idx}, s64
    s_cmp_eq_u32 s{64+2*idx}, 0
    s_cselect_b32 s34, 0, s34
    s_cmp_eq_u32 s90, 0
    s_cselect_b32 s35, {1 if role in 'HB' else 0}, {1 if role in 'AB' else 0}
    s_mul_i32 s34, s34, s35
    s_mul_i32 s34, s34, {mult}
    s_add_u32 s34, s34, {base}
L_diag:
    s_memrealtime s[36:37]
    s_waitcnt lgkmcnt(0)
    s_sub_u32 s36, s36, s64
    s_cmp_lt_u32 s36, s34
    s_cbranch_scc1 L_diag
    """)
    A("L_end:")
    A("s_endpgm")
    if stamps:
        idx = A.L.index("s_and_b32 s30, s2, 7                    ; g")
        A.L.insert(idx, "s_mov_b32 s90, s3"); A.L.insert(idx, "s_nop 0")
        for i in range(1, 13): A.L.insert(idx, f"s_mov_b32 s{64+2*i}, 0")
        A.L.insert(idx, "s_mov_b32 s45, 0")
    nfix = A.check()
    head = f"""; fused layernorm + sliding-window GQA decode attention + GELU MLP, one persistent launch (256 workgroups)
; @launch grid=(256,1,1) block=(320,1,1) lds={LDS_TOTAL}
.amdgcn_target "amdgcn-amd-amdhsa--gfx950"
.text
.globl {NAME}_kernel
.p2align 8
.type {NAME}_kernel,@function
{NAME}_kernel:
"""
    tail = f""".fill 1024, 4, 0xbf800000
.section .rodata,"a"
.p2align 6
.amdhsa_kernel {NAME}_kernel
  .amdhsa_next_free_vgpr 176
  .amdhsa_next_free_sgpr 96
  .amdhsa_accum_offset 176
  .amdhsa_group_segment_fixed_size 0
  .amdhsa_kernarg_size 104
  .amdhsa_user_sgpr_count 2
  .amdhsa_user_sgpr_kernarg_segment_ptr 1
  .amdhsa_system_sgpr_workgroup_id_x 1
  .amdhsa_float_denorm_mode_32 3
.end_amdhsa_kernel
"""
    return head + A.text() + tail

if __name__ == "__main__":
    out = sys.argv[1]
    kw = {}
    for a in sys.argv[2:]:
        k, v = a.split("=")
        kw[k] = eval(v)
    open(out, "w").write(gen(**kw))
```

```python
import sys, struct, copy
from asmlib import *

W1L = 0; WQL = 7168; XNL = 21504; QL = 22528; QHS = 576; SL = 23680; SHS = 384; ML = 24448; FLG = 24480
W2L = 24576; WOL = 32768; KL = 49152; VL = 81920; LDS_TOTAL = 114688
WS_Q = 0x10000; WS_H = 0x20000; WS_L = 0x30000; WS_F = 0x34000; WS_P = 0x40000; WS_O = 0x80000; WS_ST = 0x400000
LOG2E = 1.4426950408889634
def f2u(x): return "0x%08x" % struct.unpack("<I", struct.pack("<f", x))[0]

class VM:
    def __init__(self, A): self.A = A; self.ops = []; self.done = -1
    def op(self, name, text): self.A(text); self.ops.append(name)
    def idx(self, name): return max(i for i, n in enumerate(self.ops) if n == name)
    def wait(self, name):
        i = self.idx(name)
        if i <= self.done: return
        n = len(self.ops) - 1 - i; assert n <= 63, n
        self.A(f"s_waitcnt vmcnt({n})"); self.done = i
    def fork(self):
        o = VM(self.A); o.ops = list(self.ops); o.done = self.done; return o

def gen(nt_w="", nt_kv="", nt_l="", stamps=False, spin=1 << 15, win=32, win0=None, qpos=15, diag=None, force_sc1=False, fpoll=19,
        kxor=True, near=True, nprobe=2, pdepth=1, outsc="", fine=0):
    A = Asm()
    if win0 is None: win0 = win
    ntw = " " + nt_w if nt_w else ""; ntk = " " + nt_kv if nt_kv else ""; ntl = " " + nt_l if nt_l else ""
    def stamp(i):
        if stamps: A(f"s_memrealtime s[{64+2*i}:{65+2*i}]")
    lg = (lambda n: 0) if stamps else (lambda n: n)
    TAG = "s38"
    fin = "L_stamps" if stamps else "L_end"
    def finish():
        if stamps: A("s_branch L_stamps")
        else: A("s_endpgm")
    DPP = "row_mask:0xf bank_mask:0xf"
    def tagcheck(regs, fail):
        dst = ["vcc", "s[54:55]", "s[56:57]", "s[58:59]"]
        for r, d in zip(regs, dst): A(f"v_cmp_ne_u32 {d}, {TAG}, v{r}")
        if len(regs) == 4: A("s_or_b64 s[40:41], vcc, s[54:55]\ns_or_b64 s[34:35], s[56:57], s[58:59]\ns_or_b64 s[40:41], s[40:41], s[34:35]"); A(f"s_cbranch_scc1 {fail}")
        elif len(regs) == 2: A("s_or_b64 vcc, vcc, s[54:55]"); A(f"s_cbranch_scc1 {fail}")
        else: A(f"s_cbranch_vccnz {fail}")
    stamp(0)
    A(f"""
    s_load_dwordx16 s[4:19], s[0:1], 0      ; x k v wq wo Bx w1 b1
    s_load_dwordx8 s[20:27], s[0:1], 64
    s_load_dwordx2 s[28:29], s[0:1], 96     ; ws
    s_cmp_ge_u32 s2, 256
    s_cbranch_scc1 L_end
    v_lshrrev_b32 v1, 6, v0
    v_and_b32 v0, 63, v0                    ; lane
    v_readfirstlane_b32 s3, v1              ; wave
    s_and_b32 s30, s2, 7                    ; g
    s_lshr_b32 s31, s2, 3                   ; j
    v_lshrrev_b32 v2, 4, v0                 ; s
    v_and_b32 v5, 7, v0
    v_lshrrev_b32 v7, 3, v0
    s_lshr_b32 s33, s31, 2                  ; cg
    s_min_u32 s35, s31, 27
    s_mul_i32 s32, s30, 28
    s_add_u32 s32, s32, s35                 ; u
    s_and_b32 s42, s32, 7                   ; r8
    s_lshr_b32 s43, s32, 3                  ; B
    s_and_b32 s32, s31, 3                   ; rg
    s_lshl2_add_u32 s44, s30, s32           ; 4g + rg
    s_cmp_eq_u32 s3, 0
    s_cbranch_scc1 L_loader
    s_getpc_b64 s[40:41]
    s_lshl_b32 s34, s31, 8
    v_lshl_add_u32 v3, v0, 2, s34
    global_load_dword v148, v3, s[40:41] offset:768
    v_lshlrev_b32 v3, 4, v0
    v_mov_b32 v140, 0
    v_mov_b32 v141, 0
    v_mov_b32 v142, 0
    v_mov_b32 v143, 0
    s_bfm_b64 exec, 56, 0
    s_waitcnt lgkmcnt(0)
    global_load_dwordx4 v[140:143], v3, s[4:5]
    s_mov_b64 exec, -1
    s_branch L_comp
    """)
    va = VM(A)
    A(f"""
L_loader:
    v_lshlrev_b32 v6, 1, v2
    v_xor_b32 v6, v5, v6
    v_lshlrev_b32 v6, 4, v6
    s_mul_i32 s34, s32, {112*8192}
    s_lshl_b32 s35, s30, 10
    s_add_u32 s34, s34, s35
    s_xor_b32 s35, s33, 4
    s_lshl_b32 s35, s35, 7
    s_add_u32 s34, s34, s35
    v_lshl_add_u32 v8, v7, 13, s34
    v_add_u32 v8, v8, v6                    ; wq voffset
    s_mul_i32 s34, s42, {56*3584}
    s_lshl_b32 s35, s43, 7
    s_add_u32 s34, s34, s35
    s_movk_i32 s35, 3584
    v_mad_u32_u24 v9, v7, s35, v6
    v_add_u32 v9, s34, v9                   ; w1 voffset
    s_lshl_b32 s34, s30, 22
    s_lshl_b32 s35, s31, 15
    s_add_u32 s34, s34, s35
    s_add_u32 s34, s34, 0x300000
    s_movk_i32 s35, {4096 + (512 if kxor else 0)}
    v_mad_u32_u24 v4, v7, s35, v6
    v_add_u32 v4, s34, v4
    s_mov_b32 s37, {65536-1024}
    s_movk_i32 s36, {28672-1024}
    s_movk_i32 s46, -896
    s_movk_i32 m0, {WQL}
    s_waitcnt lgkmcnt(0)
    """)
    seq = [f"wq{i}" for i in range(14)] + [f"w1{i}" for i in range(7)] + [f"K{i}" for i in range(32)] + [f"V{i}" for i in range(32)] + [f"W{i}" for i in range(24)]
    pos = {n: i for i, n in enumerate(seq)}
    def issue(vm, n):
        kind = n.rstrip("0123456789") if not n.startswith("w1") else "w1"
        i = int(n[len(kind):])
        if kind == "wq":
            vm.op(n, f"global_load_lds_dwordx4 v8, s[10:11] offset:{1024*(i&3)}{ntw}")
            if i == 13: pass
            elif i & 3 == 3: A("s_addk_i32 m0, 4096"); A(f"v_add_u32 v8, {65536+3072}, v8")
            else: A("v_add_u32 v8, s37, v8")
        elif kind == "w1":
            if i == 0: A(f"s_movk_i32 m0, {W1L}\ns_cmp_lt_u32 s31, 28\ns_cselect_b64 exec, -1, 1")
            vm.op(n, f"global_load_lds_dwordx4 v9, s[16:17] offset:{1024*(i&3)}{ntw}")
            if i == 6: A(f"s_mov_b64 exec, -1\ns_mov_b32 m0, {KL}\nv_mov_b32 v3, v4")
            elif i & 3 == 3: A("s_addk_i32 m0, 4096"); A(f"v_add_u32 v9, {28672+3072}, v9")
            else: A("v_add_u32 v9, s36, v9")
        elif kind in "KV":
            vm.op(n, f"global_load_lds_dwordx4 v3, {'s[6:7]' if kind == 'K' else 's[8:9]'} offset:{1024*(i&3)}{ntk}")
            if n == "V31": pass
            elif i & 3 == 3:
                A("s_addk_i32 m0, 4096")
                nx = ((i + 1) >> 2) & 7
                A(f"v_xor_b32 v3, {nx << 9:#x}, v4" if nx else "v_mov_b32 v3, v4")
            else: A("v_add_u32 v3, s46, v3")
        else:
            reg, ptr = ("v8", "s[20:21]") if i < 8 else ("v9", "s[12:13]")
            vm.op(n, f"global_load_lds_dwordx4 {reg}, {ptr} offset:{1024*(i&3)}{ntl}")
            if i < 23:
                if i & 3 == 3: A("s_addk_i32 m0, 4096")
                if i < 7:
                    grow = lambda i: (32*(i&1) + 4*(i>>1)) * 896 - 1024*(i&3)
                    A(f"v_add_u32 {reg}, {(grow(i+1)-grow(i)) & 0xffffffff:#x}, {reg}")
                elif i > 7: A(f"v_add_u32 {reg}, {'s36' if i & 3 == 3 else 's37'}, {reg}")
    assert win0 >= 21 and win >= 21
    order = []
    landed_ev = [("wq13", "wq"), ("w16", "w1"), ("K31", "k")]
    def run(vm, names, rec):
        for n in names:
            k = pos[n]
            if k >= win0 and k - win >= 0 and k - win <= pos[f"V{qpos}"]: vm.wait(seq[k - win])
            issue(vm, n)
            while landed_ev_l and vm.done >= vm.idx(landed_ev_l[0][0]) if (landed_ev_l and landed_ev_l[0][0] in vm.ops) else False:
                A("s_barrier"); ev = landed_ev_l.pop(0)
                if rec: order.append(ev[1])
            if n == f"V{qpos}":
                while landed_ev_l and landed_ev_l[0][1] != "k":
                    ev = landed_ev_l.pop(0); vm.wait(ev[0]); A("s_barrier"); order.append(ev[1])
                A("s_barrier"); order.append("trig")
            if k == win0 - 1:
                A(f"""
                s_load_dword s38, s[28:29], 0
                s_lshr_b32 s34, s30, 1
                s_mul_i32 s34, s34, 7
                s_and_b32 s35, s30, 1
                s_lshl2_add_u32 s35, s35, s32
                s_min_u32 s35, s35, 6
                s_add_u32 s34, s34, s35                 ; B2
                s_lshl_b32 s36, s33, 7
                v_mul_u32_u24 v9, 896, v7
                v_add3_u32 v9, v9, v6, s36
                s_mul_i32 s34, s34, {64*896}
                v_lshrrev_b32 v8, 5, v0
                v_mul_u32_u24 v8, {12*896}, v8
                v_add3_u32 v8, v8, v9, s34
                s_mul_i32 s34, s44, {128*896}
                v_add_u32 v9, s34, v9
                s_movk_i32 s37, {7168-1024}
                s_movk_i32 s36, {7168+3072}
                """)
                stamp(1)
    landed_ev_l = list(landed_ev)
    run(va, seq[:85], True)
    stamp(2)
    A(f"s_movk_i32 m0, {W2L}\ns_cmp_lt_u32 s31, 28\ns_cbranch_scc0 L_cload")
    vc = va.fork(); left = list(landed_ev_l)
    run(va, seq[85:], True)
    for ev in landed_ev_l: va.wait(ev[0]); A("s_barrier"); order.append(ev[1])
    stamp(3)
    kb_early = (qpos + 1) // 8
    va.wait(f"V{8*kb_early-1}"); A("s_barrier\ns_barrier")
    va.wait("V31"); stamp(6); A("s_barrier")
    va.wait("W7"); A("s_barrier")
    va.wait(f"W{fpoll}"); A("s_barrier")
    va.wait("W23"); stamp(8); A("s_barrier")
    finish()
    G = 32
    A(f"""
L_cload:
    s_min_u32 s34, s44, 27                  ; tile
    s_lshr_b32 s35, s34, 2
    s_lshl_b32 s35, s35, 14
    s_and_b32 s47, s34, 3
    s_lshl_b32 s47, s47, 11
    s_add_u32 s47, s47, s35
    s_add_u32 s47, s47, {WS_P}
    v_lshl_add_u32 v29, v0, 4, s47
    v_add_u32 v28, 0x2000, v29
    s_lshl_b32 s34, s34, 4
    v_and_b32 v16, 3, v0
    v_lshl_add_u32 v19, v16, 2, v2
    v_add_lshl_u32 v19, v19, s34, 1
    """)
    for t in ["global_load_ushort v30, v19, s[4:5]", "global_load_ushort v31, v19, s[22:23]", "global_load_ushort v148, v19, s[24:25]",
              "global_load_dword v148, v29, s[28:29]", "global_load_dword v148, v29, s[28:29] offset:1024",
              "global_load_dword v148, v28, s[28:29]", "global_load_dword v148, v28, s[28:29] offset:1024"]: vc.op("T", t)
    for ev in left: vc.wait(ev[0]); A("s_barrier")
    vc.wait(f"V{8*kb_early-1}"); A("s_barrier\ns_barrier")
    vc.wait("V31"); stamp(6); A("s_barrier")
    A(f"""
    s_cmp_lt_u32 s44, 28
    s_cbranch_scc0 {fin}
    s_mov_b32 s60, 0x0c0c0400
    s_mov_b32 s61, 0x0504000c
    s_waitcnt vmcnt(0)
    v_lshlrev_b32 v30, 16, v30
    v_lshlrev_b32 v31, 16, v31
    v_add_f32 v30, v30, v31                 ; x + b2
    s_mov_b32 s45, 0
    s_waitcnt lgkmcnt(0)
    s_mul_i32 s38, s38, 1664525
    s_add_u32 s38, s38, 1013904223          ; tag
    """)
    if near:
        A("s_add_u32 s48, s47, 0x2000\ns_mov_b32 s50, -1\ns_mov_b32 s51, -1")
        for r in range(nprobe):
            for c in range(2):
                A(f"""
                s_memtime s[52:53]
                s_load_dword s49, s[28:29], s{47+c} glc
                s_waitcnt lgkmcnt(0)
                s_memtime s[54:55]
                s_waitcnt lgkmcnt(0)
                s_sub_u32 s49, s54, s52
                s_min_u32 s{50+c}, s{50+c}, s49
                """)
        A("s_cmp_lt_u32 s51, s50\ns_cselect_b32 s49, 0x2000, 0\nv_add_u32 v29, s49, v29")
        if stamps: A("s_lshl_b32 s91, s51, 16\ns_add_u32 s91, s91, s50")
    stamp(7)
    A("s_barrier")
    stamp(9)
    def pissue(k):
        A(f"global_load_dwordx4 v[{G+8*k}:{G+8*k+3}], v29, s[28:29] sc1")
        A(f"global_load_dwordx4 v[{G+8*k+4}:{G+8*k+7}], v29, s[28:29] offset:1024 sc1")
    A("L_ppoll:")
    pissue(0)
    A(f"""
    s_add_u32 s45, s45, 1
    s_cmp_ge_u32 s45, {spin}
    s_cbranch_scc1 L_pok
    s_waitcnt vmcnt(0)
    """)
    tagcheck([G+3, G+7], "L_ppoll")
    A("L_pok:")
    stamp(10)
    A(f"""
    v_perm_b32 v{G+3}, v{G}, v{G+1}, s60
    v_perm_b32 v{G+7}, v{G+4}, v{G+5}, s60
    v_add_f32 v{G}, v{G}, v{G+4}
    v_perm_b32 v{G+3}, v{G+3}, v{G+2}, s61
    v_perm_b32 v{G+7}, v{G+7}, v{G+6}, s61
    v_add_f32 v{G+2}, v{G+2}, v{G+6}
    v_add_f32 v{G+1}, v{G+1}, v{G+5}
    v_add_f32 v{G+3}, v{G+3}, v{G+7}
    v_permlane32_swap_b32 v{G}, v{G+2}
    v_permlane32_swap_b32 v{G+1}, v{G+3}
    v_add_f32 v{G}, v{G}, v{G+2}
    v_add_f32 v{G+1}, v{G+1}, v{G+3}
    v_permlane16_swap_b32 v{G}, v{G+1}
    v_add_f32 v{G}, v{G}, v{G+1}
    """)
    for sh in (4, 8):
        A(f"v_add_f32_dpp v{G}, v{G}, v{G} row_ror:{sh} {DPP}")
    A(f"""
    s_mov_b32 exec_lo, 0x000f000f
    s_mov_b32 exec_hi, 0x000f000f
    v_add_f32 v{G}, v{G}, v30
    v_cvt_pk_bf16_f32 v{G}, v{G}, v{G}
    global_store_short v19, v{G}, s[24:25] {outsc}
    s_cmp_eq_u32 s44, 0
    s_cbranch_scc0 {fin}
    s_mov_b64 exec, 1
    v_mov_b32 v2, 0
    v_mov_b32 v63, s38
    global_store_dword v2, v63, s[28:29] {outsc}
    """)
    finish()
    A(f"""
L_comp:
    s_load_dword s38, s[28:29], 0           ; epoch
    s_sub_u32 s3, s3, 1                     ; w
    v_and_b32 v1, 15, v0                    ; n
    v_lshrrev_b32 v8, 3, v1                 ; head = n>>3
    v_and_b32 v16, 3, v0
    s_lshl_b32 s34, s30, 13
    s_xor_b32 s35, s33, 4
    s_lshl3_add_u32 s35, s32, s35
    s_lshl_b32 s35, s35, 8
    s_add_u32 s35, s34, s35
    s_lshl_b32 s36, s3, 6
    s_add_u32 s35, s35, s36
    s_add_u32 s35, s35, {WS_Q}
    v_lshl_add_u32 v30, v2, 4, s35
    s_mul_i32 s35, s42, 7168
    s_add_u32 s35, s35, s36
    s_lshl_b32 s36, s43, 8
    s_add_u32 s35, s35, s36
    s_add_u32 s35, s35, {WS_H}
    v_lshl_add_u32 v31, v2, 4, s35
    global_load_dword v148, v30, s[28:29]
    global_load_dword v148, v31, s[28:29]
    v_bfe_u32 v14, v0, 2, 3
    v_lshlrev_b32 v14, 7, v14
    v_and_b32 v15, 3, v7
    v_lshl_add_u32 v14, v15, 5, v14
    v_lshl_add_u32 v14, v16, 3, v14
    v_lshrrev_b32 v15, 5, v0
    s_lshl_b32 s36, s3, 5
    v_xor_b32 v24, s36, v14
    v_lshl_add_u32 v24, v15, 10, v24
    s_lshl_b32 s36, s3, 10
    s_add_u32 s36, s36, {VL}
    v_lshl_add_u32 v20, v15, 12, s36
    v_add_u32 v20, v20, v14
    s_mul_i32 s35, s32, 224
    v_lshl_add_u32 v28, v2, 3, s35
    s_mul_i32 s35, s42, 112
    v_lshl_add_u32 v29, v2, 3, s35
    s_mov_b32 s50, 0x07060503
    s_mov_b32 s51, 0x07060502
    s_mov_b32 s52, 0x07060501
    s_getreg_b32 s39, hwreg(HW_REG_XCC_ID, 0, 4)
    v_mov_b32 v46, 0
    v_mov_b32 v47, 0
    v_mov_b32 v78, 0
    v_mov_b32 v79, 0
    v_mov_b32 v54, 0
    v_mov_b32 v55, 0
    s_cmp_eq_u32 s3, 0
    s_cbranch_scc0 L_noln
    s_waitcnt vmcnt(2)
    """)
    X = 32
    for i in range(4):
        A(f"v_lshlrev_b32 v{X+2*i}, 16, v{140+i}")
        A(f"v_and_b32 v{X+1+2*i}, 0xffff0000, v{140+i}")
    def allreduce_add(r, t):
        for sh in (1, 2, 4, 8):
            A(f"v_add_f32_dpp v{r}, v{r}, v{r} row_ror:{sh} {DPP}")
        A(f"v_mov_b32 v{t}, v{r}")
        A(f"v_permlane16_swap_b32 v{t}, v{r}")
        A(f"v_add_f32 v{r}, v{r}, v{t}")
        A(f"v_mov_b32 v{t}, v{r}")
        A(f"v_permlane32_swap_b32 v{t}, v{r}")
        A(f"v_add_f32 v{r}, v{r}, v{t}")
    A(f"v_add_f32 v40, v{X}, v{X+1}")
    for i in range(2, 8): A(f"v_add_f32 v40, v40, v{X+i}")
    allreduce_add(40, 41)
    A(f"""
    v_mul_f32 v40, {f2u(1/448)}, v40        ; mean
    v_mov_b32 v42, 0
    s_bfm_b64 exec, 56, 0
    """)
    for i in range(8):
        A(f"v_sub_f32 v43, v{X+i}, v40")
        A("v_fmac_f32 v42, v43, v43")
    A("s_mov_b64 exec, -1")
    allreduce_add(42, 41)
    A(f"""
    v_mul_f32 v42, {f2u(1/448)}, v42        ; var
    v_cvt_pk_bf16_f32 v40, v40, v42
    v_and_b32 v42, 0xffff0000, v40          ; bf16(var)
    v_lshlrev_b32 v40, 16, v40              ; bf16(mean)
    v_add_f32 v42, {f2u(1e-5)}, v42
    v_cvt_pk_bf16_f32 v42, v42, v42
    v_lshlrev_b32 v42, 16, v42
    v_sqrt_f32 v42, v42
    v_cvt_pk_bf16_f32 v42, v42, v42
    v_lshlrev_b32 v42, 16, v42
    v_rcp_f32 v42, v42
    """)
    for i in range(8): A(f"v_sub_f32 v{X+i}, v{X+i}, v40")
    for i in range(4): A(f"v_cvt_pk_bf16_f32 v{56+i}, v{X+2*i}, v{X+1+2*i}")
    for i in range(4):
        A(f"v_lshlrev_b32 v{X+2*i}, 16, v{56+i}")
        A(f"v_and_b32 v{X+1+2*i}, 0xffff0000, v{56+i}")
    for i in range(8): A(f"v_mul_f32 v{X+i}, v{X+i}, v42")
    for i in range(4): A(f"v_cvt_pk_bf16_f32 v{56+i}, v{X+2*i}, v{X+1+2*i}")
    A(f"""
    ds_write_b128 v3, v[56:59] offset:{XNL}
L_noln:
    s_waitcnt lgkmcnt(0)
    s_mul_i32 s38, s38, 1664525
    s_add_u32 s38, s38, 1013904223          ; tag
    s_add_u32 s39, s39, s38
    """)
    stamp(1)
    assert order[:2] == ["wq", "w1"], order
    A("s_barrier")
    XQ = 32; XH = 48; WF = 64
    for b in range(7):
        A(f"ds_read_b64 v[{XQ+2*b}:{XQ+2*b+1}], v28 offset:{XNL+32*b}")
        A(f"ds_read_b64_tr_b16 v[{WF+2*b}:{WF+2*b+1}], v24 offset:{WQL+2048*b}")
    A("v_mov_b32 v63, s39")
    for kk in range(4):
        A(f"s_waitcnt lgkmcnt({lg(max(0, 14-4*(kk+1)))})")
        c = "0" if kk == 0 else "v[56:59]"
        A(f"v_mfma_f32_16x16x32_bf16 v[56:59], v[{WF+4*kk}:{WF+4*kk+3}], v[{XQ+4*kk}:{XQ+4*kk+3}], {c}")
    for b in range(3): A(f"ds_read_b64 v[{XH+2*b}:{XH+2*b+1}], v29 offset:{XNL+32*b}")
    A(f"""
    s_mov_b32 exec_hi, 0
    ds_read_b64 v[{XH+6}:{XH+7}], v29 offset:{XNL+96}
    s_mov_b32 exec_lo, 0x00010001
    s_mov_b32 exec_hi, 0x00010001
    v_perm_b32 v60, v56, v59, s50
    v_perm_b32 v61, v57, v59, s51
    v_perm_b32 v62, v58, v59, s52
    global_store_dwordx4 v30, v[60:63], s[28:29] sc1
    s_mov_b64 exec, -1
    """)
    stamp(2)
    A(f"""
    s_cmp_lt_u32 s31, 28
    s_barrier
    s_cbranch_scc0 L_noh
    """)
    for b in range(4): A(f"ds_read_b64_tr_b16 v[{WF+2*b}:{WF+2*b+1}], v24 offset:{W1L+2048*b}")
    A(f"""
    v_mov_b32 v63, s38
    s_waitcnt lgkmcnt({lg(2)})
    v_mfma_f32_16x16x32_bf16 v[56:59], v[{WF}:{WF+3}], v[{XH}:{XH+3}], 0
    s_waitcnt lgkmcnt(0)
    v_mfma_f32_16x16x32_bf16 v[56:59], v[{WF+4}:{WF+7}], v[{XH+4}:{XH+7}], v[56:59]
    s_mov_b32 exec_lo, 0x00010001
    s_mov_b32 exec_hi, 0x00010001
    v_perm_b32 v60, v56, v59, s50
    v_perm_b32 v61, v57, v59, s51
    v_perm_b32 v62, v58, v59, s52
    global_store_dwordx4 v31, v[60:63], s[28:29] sc1
    s_mov_b64 exec, -1
L_noh:
    s_lshl_b32 s35, s3, 9
    s_add_u32 s34, s34, s35
    s_add_u32 s34, s34, {WS_Q}
    v_and_b32 v10, 31, v0
    v_lshl_add_u32 v18, v15, 11, s34
    v_lshl_add_u32 v18, v10, 4, v18
    v_add_u32 v19, 0x1000, v18
    s_lshl_b32 s34, s30, 16
    s_lshl_b32 s35, s3, 13
    s_add_u32 s35, s35, s34
    s_lshl_b32 s36, s31, 7
    s_add_u32 s35, s35, s36
    s_add_u32 s35, s35, {WS_O}
    v_lshl_add_u32 v14, v8, 15, s35
    v_lshl_add_u32 v14, v15, 12, v14
    v_and_b32 v9, 1, v2
    v_lshl_add_u32 v14, v9, 6, v14
    v_lshl_add_u32 v14, v16, 4, v14
    global_load_dword v148, v14, s[28:29]
    """)
    def setup2():
        A(f"""
    s_lshr_b32 s34, s3, 1
    s_mul_i32 s34, s34, {QHS}
    s_and_b32 s35, s3, 1
    s_lshl_b32 s35, s35, 8
    s_add_u32 s34, s34, s35
    v_lshl_add_u32 v10, v10, 3, s34
    v_lshl_add_u32 v17, v15, 2, v10
    v_mul_u32_u24 v9, {QHS}, v8
    v_lshl_add_u32 v9, v2, 4, v9
    v_mul_u32_u24 v10, {SHS}, v8
    v_lshl_add_u32 v10, v2, 6, v10
    s_lshl_b32 s36, s3, 4
    v_add_u32 v11, s36, v10
    v_lshlrev_b32 v12, 2, v8
    v_mov_b32 v13, 0xff800000
    ds_write_b32 v12, v13 offset:{ML}
    s_lshl_b32 s36, s3, 2
    v_mov_b32 v25, s36
    v_xor_b32 v21, 32, v20
    v_xor_b32 v22, 64, v20
    v_xor_b32 v23, 0x60, v20
    s_lshl_b32 s36, s3, 13
    s_add_u32 s36, s36, {KL}
    v_lshl_add_u32 v3, v8, 12, s36
    v_lshl_add_u32 v3, v5, 7, v3
    v_and_b32 v4, 6, v0
    v_xor_b32 v4, v4, v2
    v_lshl_add_u32 v3, v4, 4, v3
    v_xor_b32 v4, 64, v3
    s_lshl_b32 s34, s30, 11
    s_lshl_b32 s35, s3, 9
    s_add_u32 s34, s34, s35
    s_and_b32 s35, s31, 7
    s_lshl_b32 s35, s35, 5
    s_add_u32 s34, s34, s35
    s_and_b32 s35, s31, 24
    s_add_u32 s34, s34, s35
    s_add_u32 s34, s34, {WS_L}
    v_lshl_add_u32 v13, v8, 8, s34
    s_mov_b32 s46, 0xaaaaaaaa
    s_mov_b32 s47, s46
    s_mov_b32 s48, 0xcccccccc
    s_mov_b32 s49, s48
    s_mov_b32 s53, {f2u(LOG2E/16)}
    s_mov_b32 s60, 0x0c0c0400
    s_mov_b32 s61, 0x0504000c
    s_mov_b32 s45, 0
    v_mov_b32 v152, 0x3f803f80
    v_mov_b32 v153, v152
    v_mov_b32 v154, v152
    v_mov_b32 v155, v152
    s_cmp_lt_u32 s31, 28
    s_cbranch_scc1 L_gsetup
    s_lshl_b32 s34, s30, 11
    s_and_b32 s35, s32, 1
    s_lshl_b32 s35, s35, 10
    s_add_u32 s34, s34, s35
    s_lshr_b32 s35, s3, 1
    s_lshl_b32 s35, s35, 9
    s_add_u32 s34, s34, s35
    s_lshr_b32 s35, s32, 1
    s_lshl_b32 s35, s35, 8
    s_add_u32 s34, s34, s35
    s_add_u32 s34, s34, {WS_L}
    v_lshl_add_u32 v26, v7, 5, s34          ; L poll
    s_lshl2_add_u32 s34, s44, s3
    s_lshl_b32 s35, s34, 12
    s_add_u32 s35, s35, {WS_O}
    v_lshl_add_u32 v30, v0, 4, s35          ; O gather
    s_lshl_b32 s35, s34, 7
    s_add_u32 s35, s35, {WS_F}
    v_lshl_add_u32 v27, v5, 4, s35
    v_lshl_add_u32 v28, v15, 3, v27         ; F store
    v_mov_b32 v6, 0
    s_branch L_sdone
L_gsetup:
    s_lshr_b32 s34, s30, 1
    s_mul_i32 s34, s34, 7
    s_and_b32 s35, s30, 1
    s_lshl2_add_u32 s35, s35, s32           ; 4*(g&1) + rg
    s_cmp_eq_u32 s35, 7
    s_cselect_b32 s63, 0, -1
    s_min_u32 s35, s35, 6
    s_add_u32 s34, s34, s35                 ; B2
    s_lshl_b32 s35, s34, 8
    s_add_u32 s35, s35, {WS_H}
    v_lshrrev_b32 v26, 2, v1
    v_mul_u32_u24 v26, 7168, v26
    v_lshl_add_u32 v26, v2, 6, v26
    v_lshl_add_u32 v26, v16, 4, v26
    v_add_u32 v26, s35, v26                 ; H poll a=0
    v_add_u32 v27, {4*7168}, v26            ; H poll a=1
    s_lshl_b32 s35, s34, 7
    v_lshl_add_u32 v6, v16, 3, s35
    v_lshl_add_u32 v6, v2, 5, v6
    s_lshl_b32 s35, s44, 9
    s_add_u32 s35, s35, {WS_F}
    v_bfe_u32 v28, v0, 2, 1
    v_lshl_add_u32 v28, v28, 8, s35
    v_lshl_add_u32 v28, v2, 6, v28
    v_lshl_add_u32 v28, v16, 4, v28
    s_lshl_b32 s35, s33, 14
    s_lshl_b32 s36, s3, 11
    s_add_u32 s35, s35, s36
    s_lshl_b32 s36, s44, 6
    s_add_u32 s35, s35, s36
    s_add_u32 s35, s35, {WS_P}
    v_lshl_add_u32 v29, v2, 4, s35
    v_add_u32 v30, 0x2000, v29
L_sdone:
    """)
    vw = VM(A)
    did_setup = False
    for ev in order[2:]:
        if ev == "trig":
            A("s_barrier")
            vw.op("Q", "global_load_dwordx4 v[64:67], v18, s[28:29] sc1")
            vw.op("Q", "global_load_dwordx4 v[68:71], v19, s[28:29] sc1")
            stamp(3)
        else:
            setup2()
            A("s_barrier")
            vw.op("H", "global_load_dwordx4 v[72:75], v26, s[28:29] sc1")
            vw.op("H", "global_load_dwordx4 v[76:79], v27, s[28:29] sc1")
            vw.op("H", "global_load_dwordx2 v[80:81], v6, s[18:19]")
            for i in range(8): A(f"ds_read_b128 v[{32+4*i}:{35+4*i}], v{3+(i&1)} offset:{1024*(i>>1)}")
    vw.wait("Q")
    QF = 84; VF = 116
    vreg = lambda t, kb: VF + 16*(kb >> 1) + 4*t + 2*(kb & 1)
    A(f"""
L_qchk:
    v_cmp_ne_u32 vcc, s39, v67
    v_cmp_ne_u32 s[54:55], s39, v71
    v_perm_b32 v82, v64, v65, s60
    v_perm_b32 v83, v68, v69, s60
    v_perm_b32 v82, v82, v66, s61
    v_perm_b32 v83, v83, v70, s61
    s_or_b64 vcc, vcc, s[54:55]
    s_cbranch_scc1 L_qslow
    v_mov_b32 v67, {1 if force_sc1 else 0}
L_qok:
    """)
    stamp(4)
    A(f"""
    v_add_f32 v64, v64, v68
    v_add_f32 v66, v66, v70
    v_add_f32 v65, v65, v69
    v_add_f32 v82, v82, v83
    v_permlane32_swap_b32 v64, v66
    ds_write_b32 v25, v67 offset:{FLG}
    v_permlane32_swap_b32 v65, v82
    v_add_f32 v64, v64, v66
    v_add_f32 v65, v65, v82
    v_cvt_pk_bf16_f32 v64, v64, v65
    ds_write_b32 v17, v64 offset:{QL}
    v_mov_b32 v83, 0
    s_waitcnt lgkmcnt(0)
    s_barrier
    """)
    if fine == 1: stamp(1)
    for i in range(8):
        A(f"ds_read_b128 v[{QF+4*i}:{QF+4*i+3}], v9 offset:{QL+64*i}")
    vreads = [(t, kb) for kb in range(kb_early) for t in range(4)]
    for i in range(8):
        A(f"s_waitcnt lgkmcnt({7-i})")
        A(f"v_mfma_f32_16x16x32_bf16 v[64:67], v[{32+4*i}:{35+4*i}], v[{QF+4*i}:{QF+4*i+3}], {'0' if i == 0 else 'v[64:67]'}")
    if fine == 1: stamp(2)
    A(f"ds_read_b128 v[56:59], v83 offset:{FLG}")
    for t, kb in vreads[:8]: A(f"ds_read_b64_tr_b16 v[{vreg(t,kb)}:{vreg(t,kb)+1}], v{20+t} offset:{8192*kb}")
    A(f"""
    v_cvt_pk_bf16_f32 v68, v64, v65
    v_cvt_pk_bf16_f32 v69, v66, v67
    v_lshlrev_b32 v64, 16, v68
    v_and_b32 v65, 0xffff0000, v68
    v_lshlrev_b32 v66, 16, v69
    v_and_b32 v67, 0xffff0000, v69
    v_max_f32 v68, v64, v65
    v_max3_f32 v68, v66, v67, v68
    v_mul_f32 v68, s53, v68
    v_ceil_f32 v68, v68
    v_fma_f32 v64, v64, s53, -v68
    v_fma_f32 v65, v65, s53, -v68
    v_fma_f32 v66, v66, s53, -v68
    v_fma_f32 v67, v67, s53, -v68
    v_mul_f32 v70, 0x43000000, v68
    s_mov_b32 exec_lo, 0x01010101
    s_mov_b32 exec_hi, 0x01010101
    ds_max_f32 v12, v70 offset:{ML}
    v_exp_f32 v64, v64
    v_exp_f32 v65, v65
    v_exp_f32 v66, v66
    v_exp_f32 v67, v67
    v_cvt_pk_bf16_f32 v68, v64, v65
    v_cvt_pk_bf16_f32 v69, v66, v67
    ds_write_b96 v11, v[68:70] offset:{SL}
    s_mov_b64 exec, -1
    s_waitcnt lgkmcnt(0)
    s_barrier
    ds_read_b32 v68, v12 offset:{ML}
    """)
    if fine == 1: stamp(3)
    Y = 32; PB = 48; ACC = 84
    for w in range(4):
        A(f"ds_read_b128 v[{Y+4*w}:{Y+4*w+3}], v10 offset:{SL+16*w}")
    rest = vreads[8:]
    for t, kb in rest: A(f"ds_read_b64_tr_b16 v[{vreg(t,kb)}:{vreg(t,kb)+1}], v{20+t} offset:{8192*kb}")
    A(f"""
    v_or3_b32 v56, v56, v57, v58
    v_or_b32 v56, v56, v59
    v_mov_b32 v63, {TAG}
    v_readfirstlane_b32 s62, v56
    v_mov_b32 v67, {TAG}
    """)
    assert kb_early >= 2
    for c in range(2):
        A(f"s_waitcnt lgkmcnt({2-2*c+len(rest)})")
        a, b = Y + 8*c, Y + 8*c + 4
        A(f"""
        v_sub_f32 v{a+2}, v68, v{a+2}
        v_sub_f32 v{b+2}, v68, v{b+2}
        v_cvt_u32_f32 v{a+2}, v{a+2}
        v_cvt_u32_f32 v{b+2}, v{b+2}
        v_cvt_pk_u16_u32 v{a+2}, v{a+2}, v{b+2}
        v_pk_sub_u16 v{PB+4*c}, v{a}, v{a+2} op_sel_hi:[1,0] clamp
        v_pk_sub_u16 v{PB+4*c+1}, v{a+1}, v{a+2} op_sel_hi:[1,0] clamp
        v_pk_sub_u16 v{PB+4*c+2}, v{b}, v{a+2} op_sel:[0,1] clamp
        v_pk_sub_u16 v{PB+4*c+3}, v{b+1}, v{a+2} op_sel:[0,1] clamp
        """)
        if c == 1:
            A(f"v_mfma_f32_16x16x32_bf16 v[56:59], v[152:155], v[{PB}:{PB+3}], 0")
            A("s_cmp_eq_u32 s62, 0")
            A(f"v_mfma_f32_16x16x32_bf16 v[56:59], v[152:155], v[{PB+4}:{PB+7}], v[56:59]")
    for t in range(4):
        A(f"v_mfma_f32_16x16x32_bf16 v[{ACC+4*t}:{ACC+4*t+3}], v[{VF+4*t}:{VF+4*t+3}], v[{PB}:{PB+3}], 0")
    A(f"""
    s_nop 3
    v_log_f32 v62, v56
    v_rcp_f32 v{Y+2}, v56
    s_mov_b64 exec, 0x0101
    v_fmac_f32 v62, 0x3c000000, v68
    s_cbranch_scc0 L_lslow
    """)
    vw.op("L", "global_store_dwordx2 v13, v[62:63], s[28:29]")
    A(f"""
L_ldone:
    s_mov_b64 exec, -1
    """)
    stamp(5)
    A("s_barrier")
    late = [(t, kb) for t in range(4) for kb in range(kb_early, 4)]
    for t, kb in late: A(f"ds_read_b64_tr_b16 v[{vreg(t,kb)}:{vreg(t,kb)+1}], v{20+t} offset:{8192*kb}")
    stamp(6)
    per = len(late) // 4
    for t in range(4):
        if late or t == 0: A(f"s_waitcnt lgkmcnt({lg(per*(3-t))})")
        A(f"v_mfma_f32_16x16x32_bf16 v[{ACC+4*t}:{ACC+4*t+3}], v[{VF+16+4*t}:{VF+16+4*t+3}], v[{PB+4}:{PB+7}], v[{ACC+4*t}:{ACC+4*t+3}]")
    A("s_mov_b32 exec_lo, 0x0f0f0f0f\ns_mov_b32 exec_hi, 0x0f0f0f0f")
    for r in range(4): A(f"v_cndmask_b32 v{ACC+r}, v{ACC+r}, v{ACC+4+r}, s[46:47]")
    for r in range(4): A(f"v_cndmask_b32 v{ACC+8+r}, v{ACC+8+r}, v{ACC+12+r}, s[46:47]")
    for r in (3, 0, 1, 2): A(f"v_cndmask_b32 v{ACC+r}, v{ACC+r}, v{ACC+8+r}, s[48:49]")
    for r in (3, 0, 1, 2): A(f"v_mul_f32 v{ACC+r}, v{ACC+r}, v{Y+2}")
    A(f"""
    v_perm_b32 v64, v{ACC}, v{ACC+3}, s50
    v_perm_b32 v65, v{ACC+1}, v{ACC+3}, s51
    v_perm_b32 v66, v{ACC+2}, v{ACC+3}, s52
    s_cbranch_scc0 L_oslow
    """)
    vw.op("O", "global_store_dwordx4 v14, v[64:67], s[28:29]")
    A(f"""
L_odone:
    s_mov_b64 exec, -1
    """)
    stamp(7)
    A(f"""
    s_cmp_lt_u32 s31, 28
    s_cbranch_scc1 L_gemv
    """)
    A(f"""
    global_load_dwordx4 v[48:51], v26, s[28:29] sc1
    global_load_dwordx4 v[52:55], v26, s[28:29] offset:16 sc1
    """)
    for a in range(4): A(f"global_load_dwordx4 v[{G+4*a}:{G+4*a+3}], v30, s[28:29] offset:{1024*a} sc1")
    A(f"""
    s_mov_b32 s45, 0
    s_waitcnt vmcnt(4)
L_lchk:
    """)
    tagcheck([49, 51, 53, 55], "L_lretry")
    A("L_lok:")
    stamp(8)
    A(f"""
    v_max_f32 v56, v48, v50
    v_max3_f32 v56, v52, v54, v56
    v_max_f32_dpp v56, v56, v56 row_ror:8 {DPP}
    v_mov_b32 v57, v56
    v_permlane16_swap_b32 v57, v56
    v_max_f32 v56, v56, v57
    v_mov_b32 v57, v56
    v_permlane32_swap_b32 v57, v56
    v_max_f32 v56, v56, v57
    """)
    for a in range(4): A(f"v_sub_f32 v{48+2*a}, v{48+2*a}, v56")
    for a in range(4): A(f"v_exp_f32 v{48+2*a}, v{48+2*a}")
    A(f"""
    v_add_f32 v56, v48, v50
    v_add_f32 v57, v52, v54
    v_add_f32 v56, v56, v57
    v_add_f32_dpp v56, v56, v56 row_ror:8 {DPP}
    v_mov_b32 v57, v56
    v_permlane16_swap_b32 v57, v56
    v_add_f32 v56, v56, v57
    v_mov_b32 v57, v56
    v_permlane32_swap_b32 v57, v56
    v_add_f32 v56, v56, v57
    v_rcp_f32 v56, v56
L_ochk:
    s_waitcnt vmcnt(0)
    """)
    tagcheck([G+3, G+7, G+11, G+15], "L_oretry")
    A("L_ook:")
    stamp(9)
    for a in range(4): A(f"v_perm_b32 v{G+4*a+3}, v{G+4*a}, v{G+4*a+1}, s60")
    for a in range(4): A(f"v_perm_b32 v{G+4*a+3}, v{G+4*a+3}, v{G+4*a+2}, s61")
    for r in range(4): A(f"v_mul_f32 v{60+r}, v48, v{G+r}")
    for a in range(1, 4):
        for r in (0, 2, 1, 3): A(f"v_fmac_f32 v{60+r}, v{48+2*a}, v{G+4*a+r}")
    A(f"""
    v_permlane32_swap_b32 v60, v62
    v_permlane32_swap_b32 v61, v63
    v_add_f32 v60, v60, v62
    v_add_f32 v61, v61, v63
    v_permlane16_swap_b32 v60, v61
    v_add_f32 v60, v60, v61
    v_add_f32_dpp v60, v60, v60 row_ror:8 {DPP}
    v_mul_f32 v60, v60, v56
    v_mov_b32 v61, v60
    v_mov_b32 v63, {TAG}
    s_cmp_eq_u32 s62, 0
    v_permlane16_swap_b32 v61, v60
    s_mov_b32 exec_lo, 0xff
    s_mov_b32 exec_hi, 0xff
    v_cvt_pk_bf16_f32 v62, v61, v60
    s_cbranch_scc0 L_fslow
    global_store_dwordx2 v28, v[62:63], s[28:29]
L_fdone:
    """)
    stamp(10)
    A("s_barrier")
    finish()
    A(f"""
L_lretry:
    s_add_u32 s45, s45, 1
    s_cmp_ge_u32 s45, {spin}
    s_cbranch_scc1 L_lok
    global_load_dwordx4 v[48:51], v26, s[28:29] sc1
    global_load_dwordx4 v[52:55], v26, s[28:29] offset:16 sc1
    s_waitcnt vmcnt(0)
    s_branch L_lchk
L_oretry:
    """)
    for a, m in enumerate(["vcc", "s[54:55]", "s[56:57]", "s[58:59]"]):
        A(f"s_mov_b64 exec, {m}")
        A(f"s_cbranch_execz L_or{a}")
        A(f"global_load_dwordx4 v[{G+4*a}:{G+4*a+3}], v30, s[28:29] offset:{1024*a} sc1")
        A(f"L_or{a}:")
    A(f"""
    s_mov_b64 exec, -1
    s_add_u32 s45, s45, 1
    s_cmp_ge_u32 s45, {spin}
    s_cbranch_scc0 L_ochk
    s_waitcnt vmcnt(0)
    s_branch L_ook
L_fslow:
    global_store_dwordx2 v28, v[62:63], s[28:29] sc1
    s_branch L_fdone
    """)
    A("L_gemv:")
    vw.wait("H")
    A("L_hchk:")
    tagcheck([75, 79], "L_hretry")
    A(f"""
L_hok:
    v_perm_b32 v75, v72, v73, s60
    v_perm_b32 v79, v76, v77, s60
    v_perm_b32 v75, v75, v74, s61
    v_perm_b32 v79, v79, v78, s61
    """)
    for r in range(4): A(f"v_add_f32 v{72+r}, v{72+r}, v{76+r}")
    for sh in (4, 8):
        for r in range(4): A(f"v_add_f32_dpp v{72+r}, v{72+r}, v{72+r} row_ror:{sh} {DPP}")
    def rnd():
        A("""
        v_cvt_pk_bf16_f32 v82, v72, v73
        v_cvt_pk_bf16_f32 v83, v74, v75
        v_lshlrev_b32 v72, 16, v82
        v_and_b32 v73, 0xffff0000, v82
        v_lshlrev_b32 v74, 16, v83
        v_and_b32 v75, 0xffff0000, v83
        """)
    rnd()
    A("""
    v_lshlrev_b32 v76, 16, v80
    v_and_b32 v77, 0xffff0000, v80
    v_lshlrev_b32 v78, 16, v81
    v_and_b32 v79, 0xffff0000, v81
    """)
    for r in range(4): A(f"v_add_f32 v{72+r}, v{72+r}, v{76+r}")
    rnd()
    c1 = -2 * LOG2E * 0.7978845608028654
    A(f"v_mov_b32 v80, {f2u(c1)}")
    for r in range(4): A(f"v_mul_f32 v{76+r}, v{72+r}, v{72+r}")
    for r in range(4): A(f"v_fmamk_f32 v{76+r}, v{76+r}, {f2u(c1*0.044715)}, v80")
    for r in range(4): A(f"v_mul_f32 v{76+r}, v{76+r}, v{72+r}")
    for r in range(4): A(f"v_exp_f32 v{76+r}, v{76+r}")
    for r in range(4): A(f"v_add_f32 v{76+r}, 1.0, v{76+r}")
    for r in range(4): A(f"v_rcp_f32 v{76+r}, v{76+r}")
    for r in range(4): A(f"v_mul_f32 v{76+r}, v{76+r}, v{72+r}")
    A(f"""
    v_cvt_pk_bf16_f32 v82, v76, v77
    v_cvt_pk_bf16_f32 v83, v78, v79
    v_and_b32 v82, s63, v82
    v_and_b32 v83, s63, v83
    s_barrier
    """)
    WF2 = 116
    for b in range(4): A(f"ds_read_b64_tr_b16 v[{WF2+2*b}:{WF2+2*b+1}], v24 offset:{W2L+2048*b}")
    for m in range(4):
        A(f"v_mov_b32_dpp v{72+2*m}, v82 row_newbcast:{m} {DPP}")
        A(f"v_mov_b32_dpp v{73+2*m}, v83 row_newbcast:{m} {DPP}")
    A(f"""
    s_waitcnt lgkmcnt(0)
    v_mfma_f32_16x16x32_bf16 v[48:51], v[{WF2}:{WF2+3}], v[72:75], 0
    v_mfma_f32_16x16x32_bf16 v[48:51], v[{WF2+4}:{WF2+7}], v[76:79], v[48:51]
    s_mov_b32 s45, 0
    v_mov_b32 v55, {TAG}
    s_barrier
    global_load_dwordx4 v[64:67], v28, s[28:29] sc1
    """)
    nb_early = max(0, (fpoll + 1 - 8) // 2)
    for b in range(nb_early): A(f"ds_read_b64_tr_b16 v[{WF2+8+2*b}:{WF2+9+2*b}], v24 offset:{WOL+2048*b}")
    A("s_barrier")
    for b in range(nb_early, 8): A(f"ds_read_b64_tr_b16 v[{WF2+8+2*b}:{WF2+9+2*b}], v24 offset:{WOL+2048*b}")
    stamp(8)
    A(f"""
L_fchk:
    s_waitcnt vmcnt(0)
    """)
    tagcheck([65, 67], "L_fretry")
    A("L_fok:")
    stamp(9)
    for kk in range(4):
        for h in range(2):
            A(f"v_mov_b32_dpp v{84+4*kk+2*h}, v64 row_newbcast:{2*kk+h} {DPP}")
            A(f"v_mov_b32_dpp v{85+4*kk+2*h}, v66 row_newbcast:{2*kk+h} {DPP}")
        if kk == 1: A("s_waitcnt lgkmcnt(0)")
        if kk >= 1: A(f"v_mfma_f32_16x16x32_bf16 v[48:51], v[{WF2+8+4*(kk-1)}:{WF2+11+4*(kk-1)}], v[{84+4*(kk-1)}:{87+4*(kk-1)}], v[48:51]")
    A(f"""
    v_mfma_f32_16x16x32_bf16 v[48:51], v[{WF2+20}:{WF2+23}], v[96:99], v[48:51]
    s_mov_b32 exec_lo, 0x00010001
    s_mov_b32 exec_hi, 0x00010001
    v_perm_b32 v52, v48, v51, s50
    v_perm_b32 v53, v49, v51, s51
    v_perm_b32 v54, v50, v51, s52
    global_store_dwordx4 v29, v[52:55], s[28:29] sc1
    """)
    if near: A("global_store_dwordx4 v30, v[52:55], s[28:29] sc1")
    stamp(10)
    finish()
    A(f"""
L_fretry:
    global_load_dwordx4 v[64:67], v28, s[28:29] sc1
    s_add_u32 s45, s45, 1
    s_cmp_ge_u32 s45, {spin}
    s_cbranch_scc0 L_fchk
    s_waitcnt vmcnt(0)
    s_branch L_fok
L_hretry:
    s_add_u32 s45, s45, 1
    s_cmp_ge_u32 s45, {spin}
    s_cbranch_scc1 L_hok
    global_load_dwordx4 v[72:75], v26, s[28:29] sc1
    global_load_dwordx4 v[76:79], v27, s[28:29] sc1
    {"s_add_u32 s91, s91, 0x10000" if stamps else ""}
    s_waitcnt vmcnt(0)
    s_branch L_hchk
L_oslow:
    global_store_dwordx4 v14, v[64:67], s[28:29] sc1
    s_branch L_odone
L_lslow:
    global_store_dwordx2 v13, v[62:63], s[28:29] sc1
    s_branch L_ldone
L_qslow:
    v_subrev_u32 v67, {TAG}, v67
    v_subrev_u32 v71, {TAG}, v71
    v_or_b32 v67, v67, v71
    v_cmp_lt_u32 vcc, 15, v67
    v_mov_b32 v67, 1
    s_cbranch_vccz L_qok
    s_add_u32 s45, s45, 1
    s_cmp_ge_u32 s45, {spin}
    s_cbranch_scc1 L_qok
    global_load_dwordx4 v[64:67], v18, s[28:29] sc1
    global_load_dwordx4 v[68:71], v19, s[28:29] sc1
    {"s_add_u32 s91, s91, 1" if stamps else ""}
    s_waitcnt vmcnt(0)
    s_branch L_qchk
    """)
    if stamps:
        A(f"""
L_stamps:
    s_memrealtime s[86:87]
    s_mov_b64 exec, -1
    s_waitcnt vmcnt(0)
    s_memrealtime s[88:89]
    s_waitcnt lgkmcnt(0)
    s_mul_i32 s35, s2, 5
    s_add_u32 s35, s35, s90
    s_lshl_b32 s35, s35, 6
    s_add_u32 s35, s35, {WS_ST}
    v_mov_b32 v2, s35
    """)
        for i in range(13):
            A(f"v_mov_b32 v3, s{64+2*i}")
            A(f"global_store_dword v2, v3, s[28:29] offset:{4*i}")
        A("v_mov_b32 v3, s45"); A("global_store_dword v2, v3, s[28:29] offset:52")
        A("v_mov_b32 v3, s91"); A("global_store_dword v2, v3, s[28:29] offset:56")
    if diag is not None:
        base, mult, idx = diag
        A(f"""
    s_waitcnt vmcnt(0) lgkmcnt(0)
    s_sub_u32 s34, s{64+2*idx}, s64
    s_cmp_eq_u32 s{64+2*idx}, 0
    s_cselect_b32 s34, 0, s34
    s_mul_i32 s34, s34, {mult}
    s_add_u32 s34, s34, {base}
L_diag:
    s_memrealtime s[36:37]
    s_waitcnt lgkmcnt(0)
    s_sub_u32 s36, s36, s64
    s_cmp_lt_u32 s36, s34
    s_cbranch_scc1 L_diag
    """)
    A("L_end:")
    A("s_endpgm")
    if stamps:
        idx = A.L.index("s_lshr_b32 s33, s31, 2                  ; cg")
        for i in range(1, 13): A.L.insert(idx, f"s_mov_b32 s{64+2*i}, 0")
        A.L.insert(idx, "s_mov_b32 s91, 0"); A.L.insert(idx, "s_mov_b32 s90, s3"); A.L.insert(idx, "s_mov_b32 s45, 0")
    nfix = A.check()
    head = f"""; fused layernorm + sliding-window GQA decode attention + GELU MLP, one persistent launch (256 workgroups)
; @launch grid=(256,1,1) block=(320,1,1) lds={LDS_TOTAL}
.amdgcn_target "amdgcn-amd-amdhsa--gfx950"
.text
.globl {NAME}_kernel
.p2align 12
.type {NAME}_kernel,@function
{NAME}_kernel:
"""
    tail = f""".fill 1024, 4, 0xbf800000
.section .rodata,"a"
.p2align 6
.amdhsa_kernel {NAME}_kernel
  .amdhsa_next_free_vgpr 160
  .amdhsa_next_free_sgpr 96
  .amdhsa_accum_offset 160
  .amdhsa_group_segment_fixed_size 0
  .amdhsa_kernarg_size 104
  .amdhsa_user_sgpr_count 2
  .amdhsa_user_sgpr_kernarg_segment_ptr 1
  .amdhsa_system_sgpr_workgroup_id_x 1
  .amdhsa_float_denorm_mode_32 3
.end_amdhsa_kernel
"""
    return head + A.text() + tail

if __name__ == "__main__":
    out = sys.argv[1]
    kw = {}
    for a in sys.argv[2:]:
        k, v = a.split("=", 1)
        kw[k] = eval(v)
    open(out, "w").write(gen(**kw))
```

```python
import sys, struct
from asmlib import *

W1L = 0; WQL = 7168; XNL = 21504; QL = 22528; QHS = 576; SL = 23680; SHS = 384; ML = 24448; FLG = 24480
W2L = 24576; WOL = 32768; KL = 49152; VL = 81920; LDS_TOTAL = 114688
WS_Q = 0x10000; WS_H = 0x20000; WS_L = 0x30000; WS_F = 0x34000; WS_P = 0x40000; WS_O = 0x80000; WS_ST = 0x400000
LOG2E = 1.4426950408889634
def f2u(x): return "0x%08x" % struct.unpack("<I", struct.pack("<f", x))[0]

class VM:
    def __init__(self, A): self.A = A; self.ops = []
    def op(self, name, text): self.A(text); self.ops.append(name)
    def after(self, name): return len(self.ops) - 1 - max(i for i, n in enumerate(self.ops) if n == name)
    def wait(self, name):
        n = self.after(name); assert n <= 63, n
        self.A(f"s_waitcnt vmcnt({n})")

def gen(nt_w="", nt_kv="", nt_l="", stamps=False, spin=1 << 15, win=32, qpos=23, diag=None, force_sc1=False, fpoll=19, owarm=True):
    A = Asm()
    ntw = " " + nt_w if nt_w else ""; ntk = " " + nt_kv if nt_kv else ""; ntl = " " + nt_l if nt_l else ""
    def stamp(i):
        if stamps: A(f"s_memrealtime s[{64+2*i}:{65+2*i}]")
    lg = (lambda n: 0) if stamps else (lambda n: n)
    TAG = "s38"
    fin = "L_stamps" if stamps else "L_end"
    DPP = "row_mask:0xf bank_mask:0xf"
    va = VM(A)
    stamp(0)
    A(f"""
    s_load_dwordx16 s[4:19], s[0:1], 0
    s_load_dwordx8 s[20:27], s[0:1], 64
    s_load_dwordx2 s[28:29], s[0:1], 96     ; ws
    s_cmp_ge_u32 s2, 256
    s_cbranch_scc1 L_end
    v_lshrrev_b32 v1, 6, v0
    v_and_b32 v0, 63, v0                    ; lane
    v_readfirstlane_b32 s3, v1              ; w
    s_and_b32 s30, s2, 7                    ; g
    s_lshr_b32 s31, s2, 3                   ; j
    v_lshrrev_b32 v2, 4, v0                 ; s
    v_and_b32 v5, 7, v0
    v_lshlrev_b32 v6, 1, v2
    v_xor_b32 v6, v5, v6
    v_lshlrev_b32 v6, 4, v6
    v_lshrrev_b32 v7, 3, v0
    s_lshr_b32 s33, s31, 3                  ; rq
    s_min_u32 s35, s31, 27
    s_mul_i32 s32, s30, 28
    s_add_u32 s32, s32, s35                 ; u
    s_and_b32 s42, s32, 7                   ; r8
    s_lshr_b32 s43, s32, 3                  ; B
    s_cmp_eq_u32 s3, 0
    s_cbranch_scc1 L_loader
    ; ---- waves 1..3
    s_getpc_b64 s[40:41]
    v_lshlrev_b32 v3, 7, v0
    global_load_dword v148, v3, s[40:41]
    v_lshlrev_b32 v3, 4, v0
    v_mov_b32 v4, 0
    v_mov_b32 v140, 0
    v_mov_b32 v141, 0
    v_mov_b32 v142, 0
    v_mov_b32 v143, 0
    s_bfm_b64 exec, 56, 0
    s_waitcnt lgkmcnt(0)
    global_load_dwordx4 v[140:143], v3, s[4:5]
    s_mov_b64 exec, -1
    s_branch L_setup
L_loader:
    s_mul_i32 s34, s33, {112*8192}
    s_lshl_b32 s35, s30, 10
    s_add_u32 s34, s34, s35
    s_and_b32 s35, s31, 7                   ; cq
    s_lshl_b32 s35, s35, 7
    s_add_u32 s34, s34, s35
    v_lshl_add_u32 v4, v7, 13, s34
    v_add_u32 v4, v4, v6
    s_mul_i32 s34, s42, {56*3584}
    s_lshl_b32 s35, s43, 7
    s_add_u32 s34, s34, s35
    s_movk_i32 s35, 3584
    v_mad_u32_u24 v3, v7, s35, v6
    v_add_u32 v3, s34, v3                   ; w1 voffset
    s_mov_b32 s37, {65536-1024}
    s_movk_i32 s36, {28672-1024}
    s_movk_i32 m0, {WQL}
    s_waitcnt lgkmcnt(0)
    """)
    for i in range(14):
        va.op("wq", f"global_load_lds_dwordx4 v4, s[10:11] offset:{1024*(i&3)}{ntw}")
        if i & 3 == 3:
            A("s_addk_i32 m0, 4096")
            A(f"v_add_u32 v4, {65536+3072}, v4")
        elif i < 13:
            A("v_add_u32 v4, s37, v4")
    A(f"s_movk_i32 m0, {W1L}")
    A("s_lshl_b32 s34, s30, 22")
    for i in range(7):
        va.op("w1", f"global_load_lds_dwordx4 v3, s[16:17] offset:{1024*(i&3)}{ntw}")
        if i & 3 == 3:
            A("s_addk_i32 m0, 4096")
            A(f"v_add_u32 v3, {28672+3072}, v3")
        elif i < 6:
            A("v_add_u32 v3, s36, v3")
    A(f"""
    s_lshl_b32 s35, s31, 15
    s_add_u32 s34, s34, s35
    s_add_u32 s34, s34, 0x300000
    v_lshl_add_u32 v4, v7, 12, s34
    s_mov_b32 m0, {KL}
    v_add_u32 v4, v4, v6
    """)
    bulk = []
    nk0 = min(32, win)
    def kv(kind, p):
        ptr = "s[6:7]" if kind == "K" else "s[8:9]"
        va.op(f"{kind}{p}", f"global_load_lds_dwordx4 v4, {ptr} offset:{128*p}{ntk}"); bulk.append(f"{kind}{p}")
        A(f"s_addk_i32 m0, {896 if p < 31 else 896+4096}")
    assert nk0 % 4 == 0
    A("v_mov_b32 v3, v4\ns_movk_i32 s36, -896\ns_movk_i32 s37, 3200")
    for p in range(nk0):
        va.op(f"K{p}", f"global_load_lds_dwordx4 v3, s[6:7] offset:{1024*(p&3)}{ntk}"); bulk.append(f"K{p}")
        if p & 3 == 3: A(f"s_addk_i32 m0, {4096 if p < nk0 - 1 or nk0 == 32 else 4096 - 128*nk0}")
        if p < nk0 - 1: A(f"v_add_u32 v3, {'s37' if p & 3 == 3 else 's36'}, v3")
    A(f"""
L_setup:
    s_load_dword s38, s[28:29], 0           ; epoch
    v_and_b32 v1, 15, v0                    ; n
    v_lshrrev_b32 v8, 3, v1                 ; head = n>>3
    v_and_b32 v16, 3, v0
    s_lshl_b32 s34, s30, 13
    s_lshl_b32 s35, s31, 8
    s_add_u32 s35, s34, s35
    s_lshl_b32 s36, s3, 6
    s_add_u32 s35, s35, s36
    s_add_u32 s35, s35, {WS_Q}
    v_lshl_add_u32 v30, v2, 4, s35
    s_mul_i32 s35, s42, 7168
    s_lshl_b32 s36, s43, 8
    s_add_u32 s35, s35, s36
    s_add_u32 s35, s35, {WS_H}
    s_lshl_b32 s36, s3, 6
    s_add_u32 s35, s35, s36
    v_lshl_add_u32 v31, v2, 4, s35
    s_cmp_eq_u32 s3, 0
    s_cbranch_scc1 L_notouch
    global_load_dword v148, v30, s[28:29]
    global_load_dword v148, v31, s[28:29]
L_notouch:
    s_lshl_b32 s35, s3, 9
    s_add_u32 s34, s34, s35
    s_add_u32 s34, s34, {WS_Q}
    v_lshrrev_b32 v9, 5, v0
    v_and_b32 v10, 31, v0
    v_lshl_add_u32 v18, v9, 11, s34
    v_lshl_add_u32 v18, v10, 4, v18
    v_add_u32 v19, 0x1000, v18
    s_lshr_b32 s34, s3, 1
    s_mul_i32 s34, s34, {QHS}
    s_and_b32 s35, s3, 1
    s_lshl_b32 s35, s35, 8
    s_add_u32 s34, s34, s35
    v_lshl_add_u32 v10, v10, 3, s34
    v_lshl_add_u32 v17, v9, 2, v10
    v_mul_u32_u24 v9, {QHS}, v8
    v_lshl_add_u32 v9, v2, 4, v9
    v_mul_u32_u24 v10, {SHS}, v8
    v_lshl_add_u32 v10, v2, 6, v10
    s_lshl_b32 s36, s3, 4
    v_add_u32 v11, s36, v10
    v_lshlrev_b32 v12, 4, v8
    s_lshl_b32 s36, s3, 2
    v_add_u32 v13, s36, v12
    v_mov_b32 v14, 0xff800000
    ds_write_b32 v13, v14 offset:{ML}
    v_mov_b32 v25, s36
    v_bfe_u32 v14, v0, 2, 3
    v_lshlrev_b32 v14, 7, v14
    v_and_b32 v15, 3, v7
    v_lshl_add_u32 v14, v15, 5, v14
    v_lshl_add_u32 v14, v16, 3, v14
    v_lshrrev_b32 v15, 5, v0
    s_lshl_b32 s36, s3, 5
    v_xor_b32 v24, s36, v14
    v_lshl_add_u32 v24, v15, 10, v24
    s_lshl_b32 s36, s3, 10
    s_add_u32 s36, s36, {VL}
    v_lshl_add_u32 v20, v15, 12, s36
    v_add_u32 v20, v20, v14
    v_xor_b32 v21, 32, v20
    v_xor_b32 v22, 64, v20
    v_xor_b32 v23, 0x60, v20
    s_lshl_b32 s36, s3, 13
    s_add_u32 s36, s36, {KL}
    v_lshl_add_u32 v26, v8, 12, s36
    v_lshl_add_u32 v26, v5, 7, v26
    v_and_b32 v15, 6, v0
    v_xor_b32 v15, v15, v2
    v_lshl_add_u32 v26, v15, 4, v26
    v_xor_b32 v27, 64, v26
    s_mul_i32 s34, s33, 224
    v_lshl_add_u32 v28, v2, 3, s34
    s_mul_i32 s34, s42, 112
    v_lshl_add_u32 v29, v2, 3, s34
    s_and_b32 s32, s31, 3                   ; rg
    s_lshr_b32 s33, s31, 2                  ; cg
    s_lshl_b32 s34, s30, 16
    s_lshl_b32 s35, s3, 13
    s_add_u32 s35, s35, s34
    s_lshl_b32 s36, s31, 7
    s_add_u32 s35, s35, s36
    s_add_u32 s35, s35, {WS_O}
    v_lshl_add_u32 v14, v8, 15, s35
    v_lshrrev_b32 v15, 1, v2
    v_lshl_add_u32 v14, v15, 12, v14
    v_and_b32 v15, 1, v2
    v_lshl_add_u32 v14, v15, 6, v14
    v_lshl_add_u32 v14, v16, 4, v14
    s_lshl_b32 s34, s30, 11
    s_lshl_b32 s35, s3, 9
    s_add_u32 s34, s34, s35
    s_and_b32 s35, s31, 7
    s_lshl_b32 s35, s35, 5
    s_add_u32 s34, s34, s35
    s_and_b32 s35, s31, 24
    s_add_u32 s34, s34, s35
    s_add_u32 s34, s34, {WS_L}
    v_lshl_add_u32 v15, v8, 8, s34
    s_lshl2_add_u32 s44, s30, s32           ; 4g + rg
    s_mov_b32 s46, 0xaaaaaaaa
    s_mov_b32 s47, s46
    s_mov_b32 s48, 0xcccccccc
    s_mov_b32 s49, s48
    s_mov_b32 s50, 0x07060503
    s_mov_b32 s51, 0x07060502
    s_mov_b32 s52, 0x07060501
    s_mov_b32 s53, {f2u(LOG2E/16)}
    s_mov_b32 s60, 0x0c0c0400
    s_mov_b32 s61, 0x0504000c
    s_getreg_b32 s39, hwreg(HW_REG_XCC_ID, 0, 4)
    s_cmp_lt_u32 s31, 28
    s_cselect_b32 s43, s3, 1
    s_mov_b32 s45, 0
    s_cmp_eq_u32 s3, 1
    s_cbranch_scc0 L_noln
    s_waitcnt vmcnt(2)
    """)
    X = 32
    for i in range(4):
        A(f"v_lshlrev_b32 v{X+2*i}, 16, v{140+i}")
        A(f"v_and_b32 v{X+1+2*i}, 0xffff0000, v{140+i}")
    def allreduce_add(r, t):
        for sh in (1, 2, 4, 8):
            A(f"v_add_f32_dpp v{r}, v{r}, v{r} row_ror:{sh} {DPP}")
        A(f"v_mov_b32 v{t}, v{r}")
        A(f"v_permlane16_swap_b32 v{t}, v{r}")
        A(f"v_add_f32 v{r}, v{r}, v{t}")
        A(f"v_mov_b32 v{t}, v{r}")
        A(f"v_permlane32_swap_b32 v{t}, v{r}")
        A(f"v_add_f32 v{r}, v{r}, v{t}")
    A(f"v_add_f32 v40, v{X}, v{X+1}")
    for i in range(2, 8): A(f"v_add_f32 v40, v40, v{X+i}")
    allreduce_add(40, 41)
    A(f"""
    v_mul_f32 v40, {f2u(1/448)}, v40        ; mean
    v_mov_b32 v42, 0
    s_bfm_b64 exec, 56, 0
    """)
    for i in range(8):
        A(f"v_sub_f32 v43, v{X+i}, v40")
        A("v_fmac_f32 v42, v43, v43")
    A("s_mov_b64 exec, -1")
    allreduce_add(42, 41)
    A(f"""
    v_mul_f32 v42, {f2u(1/448)}, v42        ; var
    v_cvt_pk_bf16_f32 v40, v40, v42
    v_and_b32 v42, 0xffff0000, v40          ; bf16(var)
    v_lshlrev_b32 v40, 16, v40              ; bf16(mean)
    v_add_f32 v42, {f2u(1e-5)}, v42
    v_cvt_pk_bf16_f32 v42, v42, v42
    v_lshlrev_b32 v42, 16, v42
    v_sqrt_f32 v42, v42
    v_cvt_pk_bf16_f32 v42, v42, v42
    v_lshlrev_b32 v42, 16, v42
    v_rcp_f32 v42, v42
    """)
    for i in range(8): A(f"v_sub_f32 v{X+i}, v{X+i}, v40")
    for i in range(4): A(f"v_cvt_pk_bf16_f32 v{56+i}, v{X+2*i}, v{X+1+2*i}")
    for i in range(4):
        A(f"v_lshlrev_b32 v{X+2*i}, 16, v{56+i}")
        A(f"v_and_b32 v{X+1+2*i}, 0xffff0000, v{56+i}")
    for i in range(8): A(f"v_mul_f32 v{X+i}, v{X+i}, v42")
    for i in range(4): A(f"v_cvt_pk_bf16_f32 v{56+i}, v{X+2*i}, v{X+1+2*i}")
    A(f"""
    ds_write_b128 v3, v[56:59] offset:{XNL}
L_noln:
    v_mov_b32 v46, 0
    v_mov_b32 v47, 0
    v_mov_b32 v78, 0
    v_mov_b32 v79, 0
    v_mov_b32 v54, 0
    v_mov_b32 v55, 0
    s_waitcnt lgkmcnt(0)
    s_mul_i32 s38, s38, 1664525
    s_add_u32 s38, s38, 1013904223          ; tag
    s_add_u32 s39, s39, s38
    """)
    stamp(1)
    va.wait("wq")
    A("s_barrier")
    XQ = 32; XH = 48; WF = 64
    for b in range(7):
        A(f"ds_read_b64 v[{XQ+2*b}:{XQ+2*b+1}], v28 offset:{XNL+32*b}")
        A(f"ds_read_b64_tr_b16 v[{WF+2*b}:{WF+2*b+1}], v24 offset:{WQL+2048*b}")
    A("v_mov_b32 v63, s39")
    for kk in range(4):
        A(f"s_waitcnt lgkmcnt({lg(max(0, 14-4*(kk+1)))})")
        c = "0" if kk == 0 else "v[56:59]"
        A(f"v_mfma_f32_16x16x32_bf16 v[56:59], v[{WF+4*kk}:{WF+4*kk+3}], v[{XQ+4*kk}:{XQ+4*kk+3}], {c}")
    for b in range(3): A(f"ds_read_b64 v[{XH+2*b}:{XH+2*b+1}], v29 offset:{XNL+32*b}")
    A(f"""
    s_mov_b32 exec_hi, 0
    ds_read_b64 v[{XH+6}:{XH+7}], v29 offset:{XNL+96}
    s_mov_b32 exec_lo, 0x00010001
    s_mov_b32 exec_hi, 0x00010001
    v_perm_b32 v60, v56, v59, s50
    v_perm_b32 v61, v57, v59, s51
    v_perm_b32 v62, v58, v59, s52
    """)
    va.op("Qst", "global_store_dwordx4 v30, v[60:63], s[28:29] sc1")
    A("s_mov_b64 exec, -1")
    stamp(2)
    va.wait("w1")
    A("s_barrier")
    for b in range(4): A(f"ds_read_b64_tr_b16 v[{WF+2*b}:{WF+2*b+1}], v24 offset:{W1L+2048*b}")
    A(f"""
    v_mov_b32 v63, s38
    s_waitcnt lgkmcnt({lg(2)})
    v_mfma_f32_16x16x32_bf16 v[56:59], v[{WF}:{WF+3}], v[{XH}:{XH+3}], 0
    s_waitcnt lgkmcnt(0)
    v_mfma_f32_16x16x32_bf16 v[56:59], v[{WF+4}:{WF+7}], v[{XH+4}:{XH+7}], v[56:59]
    """)
    if owarm: va.op("t", "global_load_dword v148, v14, s[28:29]")
    A(f"""
    s_mov_b32 exec_lo, 0x00010001
    s_mov_b32 exec_hi, 0x00010001
    v_perm_b32 v60, v56, v59, s50
    v_perm_b32 v61, v57, v59, s51
    v_perm_b32 v62, v58, v59, s52
    """)
    A("s_cmp_lt_u32 s31, 28\ns_cbranch_scc0 L_nohst")
    va.op("Hst", "global_store_dwordx4 v31, v[60:63], s[28:29] sc1")
    A(f"""
L_hstd:
    s_mov_b64 exec, -1
    s_cmp_eq_u32 s3, 0
    s_cbranch_scc0 L_trig
    """)
    def throttle():
        if len(bulk) >= win: va.wait(bulk[len(bulk) - win])
    for p in range(nk0, 32): throttle(); kv("K", p)
    for p in range(qpos + 1): throttle(); kv("V", p)
    A("L_trig:")
    A("s_barrier")
    va.op("Q", "global_load_dwordx4 v[64:67], v18, s[28:29] sc1")
    va.op("Q", "global_load_dwordx4 v[68:71], v19, s[28:29] sc1")
    stamp(3)
    A("s_cmp_eq_u32 s3, 0\ns_cbranch_scc0 L_kbar")
    for p in range(qpos + 1, 32): throttle(); kv("V", p)
    va.wait("K31")
    A("L_kbar:")
    A("s_barrier")
    for i in range(8): A(f"ds_read_b128 v[{32+4*i}:{35+4*i}], v{26+(i&1)} offset:{1024*(i>>1)}")
    A(f"""
    s_cmp_lt_u32 s31, 28
    s_cbranch_scc1 L_gsetup
    s_lshl_b32 s34, s30, 11
    s_and_b32 s35, s32, 1
    s_lshl_b32 s35, s35, 10
    s_add_u32 s34, s34, s35
    s_lshr_b32 s35, s3, 1
    s_lshl_b32 s35, s35, 9
    s_add_u32 s34, s34, s35
    s_lshr_b32 s35, s32, 1
    s_lshl_b32 s35, s35, 8
    s_add_u32 s34, s34, s35
    s_add_u32 s34, s34, {WS_L}
    v_lshl_add_u32 v26, v7, 5, s34          ; L poll
    s_lshl2_add_u32 s34, s44, s3
    s_lshl_b32 s35, s34, 12
    s_add_u32 s35, s35, {WS_O}
    v_lshl_add_u32 v27, v0, 4, s35          ; O gather
    s_lshl_b32 s35, s34, 7
    s_add_u32 s35, s35, {WS_F}
    v_lshl_add_u32 v28, v5, 4, s35
    v_lshrrev_b32 v29, 5, v0
    v_lshl_add_u32 v28, v29, 3, v28         ; F store
    s_min_u32 s34, s44, 27
    s_lshl_b32 s35, s34, 12
    s_add_u32 s35, s35, {WS_P}
    v_lshrrev_b32 v29, 2, v0
    v_lshl_add_u32 v29, v29, 7, s35
    v_lshl_add_u32 v29, v16, 4, v29
    s_lshl_b32 s34, s34, 4
    v_lshl_add_u32 v3, v16, 2, v2
    v_add_lshl_u32 v3, v3, s34, 1
    global_load_dword v148, v26, s[28:29]
    global_load_dword v148, v28, s[28:29]
    global_load_dword v148, v29, s[28:29]
    global_load_dword v148, v29, s[28:29] offset:2048
    global_load_ushort v148, v3, s[24:25]
    global_load_ushort v30, v3, s[4:5]
    global_load_ushort v31, v3, s[22:23]
    s_cmp_eq_u32 s3, 0
    s_cbranch_scc1 L_cq
    s_waitcnt vmcnt(7)
L_cq:
    s_waitcnt vmcnt({7 + 31 - qpos})
    s_branch L_qchk
L_gsetup:
    s_lshr_b32 s34, s30, 1
    s_mul_i32 s34, s34, 7
    s_and_b32 s35, s30, 1
    s_lshl2_add_u32 s35, s35, s32           ; 4*(g&1) + rg
    s_cmp_eq_u32 s35, 7
    s_cselect_b32 s63, 0, -1
    s_min_u32 s35, s35, 6
    s_add_u32 s34, s34, s35                 ; B2
    s_lshl_b32 s35, s34, 8
    s_add_u32 s35, s35, {WS_H}
    v_lshrrev_b32 v26, 2, v1
    v_mul_u32_u24 v26, 7168, v26
    v_lshl_add_u32 v26, v2, 6, v26
    v_lshl_add_u32 v26, v16, 4, v26
    v_add_u32 v26, s35, v26                 ; H poll a=0
    v_add_u32 v27, {4*7168}, v26            ; H poll a=1
    s_lshl_b32 s35, s34, 7
    v_lshl_add_u32 v28, v16, 3, s35
    v_lshl_add_u32 v28, v2, 5, v28
    """)
    va.op("H", "global_load_dwordx4 v[72:75], v26, s[28:29] sc1")
    va.op("H", "global_load_dwordx4 v[76:79], v27, s[28:29] sc1")
    va.op("H", "global_load_dwordx2 v[80:81], v28, s[18:19]")
    A(f"""
    s_lshl_b32 s35, s44, 9
    s_add_u32 s35, s35, {WS_F}
    v_bfe_u32 v28, v0, 2, 1
    v_lshl_add_u32 v28, v28, 8, s35
    v_lshl_add_u32 v28, v2, 6, v28
    v_lshl_add_u32 v28, v16, 4, v28
    s_lshl2_add_u32 s35, s33, s3
    s_lshl_b32 s35, s35, 5
    s_add_u32 s35, s35, s44
    s_lshl_b32 s35, s35, 7
    s_add_u32 s35, s35, {WS_P}
    v_lshl_add_u32 v29, v2, 4, s35
    s_cmp_eq_u32 s3, 0
    s_cbranch_scc1 L_wload
    s_waitcnt vmcnt(3)
    s_branch L_qchk
L_wload:
    s_lshl_b32 s36, s33, 7
    v_mul_u32_u24 v3, 896, v7
    v_add3_u32 v3, v3, v6, s36
    s_mul_i32 s34, s34, {64*896}
    v_lshrrev_b32 v4, 5, v0
    v_mul_u32_u24 v4, {12*896}, v4
    v_add3_u32 v4, v4, v3, s34
    s_mul_i32 s34, s44, {128*896}
    v_add_u32 v3, s34, v3
    s_movk_i32 m0, {W2L}
    s_movk_i32 s37, {7168-1024}
    s_movk_i32 s36, {7168+3072}
    """)
    for i in range(24):
        throttle()
        reg, ptr = ("v4", "s[20:21]") if i < 8 else ("v3", "s[12:13]")
        va.op(f"W{i}", f"global_load_lds_dwordx4 {reg}, {ptr} offset:{1024*(i&3)}{ntl}"); bulk.append(f"W{i}")
        if i < 23:
            if i & 3 == 3: A("s_addk_i32 m0, 4096")
            if i < 7:
                grow = lambda i: (32*(i&1) + 4*(i>>1)) * 896 - 1024*(i&3)
                A(f"v_add_u32 {reg}, {(grow(i+1)-grow(i)) & 0xffffffff:#x}, {reg}")
            elif i > 7: A(f"v_add_u32 {reg}, {'s36' if i & 3 == 3 else 's37'}, {reg}")
    va.wait("Q")
    QF = 84; VF = 116
    vreg = lambda t, kb: VF + 16*(kb >> 1) + 4*t + 2*(kb & 1)
    kb_early = (qpos + 1) // 8
    A(f"""
L_qchk:
    v_cmp_ne_u32 vcc, s39, v67
    v_cmp_ne_u32 s[54:55], s39, v71
    v_perm_b32 v82, v64, v65, s60
    v_perm_b32 v83, v68, v69, s60
    s_or_b64 vcc, vcc, s[54:55]
    s_cbranch_scc1 L_qslow
    v_mov_b32 v67, {1 if force_sc1 else 0}
L_qok:
    """)
    stamp(4)
    A(f"""
    v_perm_b32 v82, v82, v66, s61
    v_perm_b32 v83, v83, v70, s61
    v_add_f32 v64, v64, v68
    v_add_f32 v66, v66, v70
    v_add_f32 v65, v65, v69
    v_add_f32 v82, v82, v83
    v_permlane32_swap_b32 v64, v66
    ds_write_b32 v25, v67 offset:{FLG}
    v_permlane32_swap_b32 v65, v82
    v_add_f32 v64, v64, v66
    v_add_f32 v65, v65, v82
    v_cvt_pk_bf16_f32 v64, v64, v65
    ds_write_b32 v17, v64 offset:{QL}
    s_waitcnt lgkmcnt(0)
    s_barrier
    """)
    for i in range(8):
        A(f"ds_read_b128 v[{QF+4*i}:{QF+4*i+3}], v9 offset:{QL+64*i}")
    vreads = [(t, kb) for kb in range(kb_early) for t in range(4)]
    extra = 0
    for i in range(8):
        A(f"s_waitcnt lgkmcnt({7-i+extra})")
        A(f"v_mfma_f32_16x16x32_bf16 v[64:67], v[{32+4*i}:{35+4*i}], v[{QF+4*i}:{QF+4*i+3}], {'0' if i == 0 else 'v[64:67]'}")
        for t, kb in vreads[2*i:2*i+2]:
            A(f"ds_read_b64_tr_b16 v[{vreg(t,kb)}:{vreg(t,kb)+1}], v{20+t} offset:{8192*kb}"); extra += 1
    A(f"""
    v_mov_b32 v83, 0
    ds_read_b128 v[56:59], v83 offset:{FLG}
    s_mov_b32 exec_lo, 0x01010101
    s_mov_b32 exec_hi, 0x01010101
    v_cvt_pk_bf16_f32 v68, v64, v65
    v_cvt_pk_bf16_f32 v69, v66, v67
    v_lshlrev_b32 v64, 16, v68
    v_and_b32 v65, 0xffff0000, v68
    v_lshlrev_b32 v66, 16, v69
    v_and_b32 v67, 0xffff0000, v69
    v_mul_f32 v64, s53, v64
    v_mul_f32 v65, s53, v65
    v_mul_f32 v66, s53, v66
    v_mul_f32 v67, s53, v67
    v_max_f32 v68, v64, v65
    v_max3_f32 v68, v66, v67, v68
    ds_write_b128 v11, v[64:67] offset:{SL}
    ds_max_f32 v13, v68 offset:{ML}
    s_mov_b64 exec, -1
    s_waitcnt lgkmcnt(0)
    s_barrier
    ds_read_b128 v[64:67], v12 offset:{ML}
    """)
    Y = 32; PB = 48; ACC = 84
    for w in range(4):
        A(f"ds_read_b128 v[{Y+4*w}:{Y+4*w+3}], v10 offset:{SL+16*w}")
    A(f"""
    v_or3_b32 v56, v56, v57, v58
    v_or_b32 v56, v56, v59
    s_waitcnt lgkmcnt(4)
    v_max_f32 v68, v64, v65
    v_max3_f32 v68, v66, v67, v68           ; M
    v_readfirstlane_b32 s62, v56
    """)
    for c in range(4):
        A(f"s_waitcnt lgkmcnt({3-c})")
        for i in range(4): A(f"v_sub_f32 v{Y+4*c+i}, v{Y+4*c+i}, v68")
        for i in range(4): A(f"v_exp_f32 v{Y+4*c+i}, v{Y+4*c+i}")
        if c == 1:
            for i in range(4): A(f"v_cvt_pk_bf16_f32 v{PB+i}, v{Y+2*i}, v{Y+2*i+1}")
    assert kb_early >= 2
    fill = [f"v_cvt_pk_bf16_f32 v{PB+4+i}, v{Y+8+2*i}, v{Y+9+2*i}" for i in range(4)]
    fill += [f"v_add_f32 v{Y+i}, v{Y+i}, v{Y+8+i}" for i in range(8)]
    for t in range(4):
        A(f"v_mfma_f32_16x16x32_bf16 v[{ACC+4*t}:{ACC+4*t+3}], v[{VF+4*t}:{VF+4*t+3}], v[{PB}:{PB+3}], 0")
        for x in fill[3*t:3*t+3]: A(x)
    for i in range(4): A(f"v_add_f32 v{Y+i}, v{Y+i}, v{Y+4+i}")
    A(f"""
    v_add_f32 v{Y}, v{Y}, v{Y+2}
    v_add_f32 v{Y+1}, v{Y+1}, v{Y+3}
    v_add_f32 v{Y}, v{Y}, v{Y+1}
    v_mov_b32 v{Y+1}, v{Y}
    v_mov_b32 v63, {TAG}
    v_mov_b32 v67, {TAG}
    v_permlane16_swap_b32 v{Y+1}, v{Y}
    v_add_f32 v{Y}, v{Y}, v{Y+1}
    v_mov_b32 v{Y+1}, v{Y}
    s_cmp_eq_u32 s62, 0
    v_permlane32_swap_b32 v{Y+1}, v{Y}
    v_add_f32 v{Y}, v{Y}, v{Y+1}            ; l
    v_log_f32 v62, v{Y}
    v_rcp_f32 v{Y+2}, v{Y}
    s_mov_b64 exec, 0x0101
    v_add_f32 v62, v62, v68
    s_cbranch_scc0 L_lslow
    """)
    va.op("L", "global_store_dwordx2 v15, v[62:63], s[28:29]")
    A(f"""
L_ldone:
    s_mov_b64 exec, -1
    """)
    stamp(5)
    A(f"""
    s_cmp_eq_u32 s43, 0
    s_cbranch_scc1 L_vw
    s_waitcnt vmcnt(1)
L_vw:
    """)
    va.wait("H")
    A("s_barrier")
    late = [(t, kb) for t in range(4) for kb in range(kb_early, 4)]
    for t, kb in late: A(f"ds_read_b64_tr_b16 v[{vreg(t,kb)}:{vreg(t,kb)+1}], v{20+t} offset:{8192*kb}")
    stamp(6)
    A("s_cmp_eq_u32 s62, 0")
    per = len(late) // 4
    for t in range(4):
        if late: A(f"s_waitcnt lgkmcnt({lg(per*(3-t))})")
        A(f"v_mfma_f32_16x16x32_bf16 v[{ACC+4*t}:{ACC+4*t+3}], v[{VF+16+4*t}:{VF+16+4*t+3}], v[{PB+4}:{PB+7}], v[{ACC+4*t}:{ACC+4*t+3}]")
    A("s_mov_b32 exec_lo, 0x0f0f0f0f\ns_mov_b32 exec_hi, 0x0f0f0f0f")
    for r in range(4): A(f"v_cndmask_b32 v{ACC+r}, v{ACC+r}, v{ACC+4+r}, s[46:47]")
    for r in range(4): A(f"v_cndmask_b32 v{ACC+8+r}, v{ACC+8+r}, v{ACC+12+r}, s[46:47]")
    for r in (3, 0, 1, 2): A(f"v_cndmask_b32 v{ACC+r}, v{ACC+r}, v{ACC+8+r}, s[48:49]")
    for r in (3, 0, 1, 2): A(f"v_mul_f32 v{ACC+r}, v{ACC+r}, v{Y+2}")
    A(f"""
    v_perm_b32 v64, v{ACC}, v{ACC+3}, s50
    v_perm_b32 v65, v{ACC+1}, v{ACC+3}, s51
    v_perm_b32 v66, v{ACC+2}, v{ACC+3}, s52
    s_cbranch_scc0 L_oslow
    """)
    va.op("O", "global_store_dwordx4 v14, v[64:67], s[28:29]")
    A(f"""
L_odone:
    s_mov_b64 exec, -1
    """)
    stamp(7)
    def tagcheck(regs, fail):
        dst = ["vcc", "s[54:55]", "s[56:57]", "s[58:59]"]
        for r, d in zip(regs, dst): A(f"v_cmp_ne_u32 {d}, {TAG}, v{r}")
        if len(regs) == 4: A("s_or_b64 s[40:41], vcc, s[54:55]\ns_or_b64 s[34:35], s[56:57], s[58:59]\ns_or_b64 s[40:41], s[40:41], s[34:35]"); A(f"s_cbranch_scc1 {fail}")
        elif len(regs) == 2: A("s_or_b64 vcc, vcc, s[54:55]"); A(f"s_cbranch_scc1 {fail}")
        else: A(f"s_cbranch_vccnz {fail}")
    A(f"""
    s_cmp_lt_u32 s31, 28
    s_cbranch_scc1 L_gemv
    """)
    G = 32
    A(f"""
    global_load_dwordx4 v[48:51], v26, s[28:29] sc1
    global_load_dwordx4 v[52:55], v26, s[28:29] offset:16 sc1
    """)
    for a in range(4): A(f"global_load_dwordx4 v[{G+4*a}:{G+4*a+3}], v27, s[28:29] offset:{1024*a} sc1")
    A(f"""
    s_mov_b32 s45, 0
    s_waitcnt vmcnt(4)
L_lchk:
    """)
    tagcheck([49, 51, 53, 55], "L_lretry")
    A("L_lok:")
    stamp(8)
    A(f"""
    v_max_f32 v56, v48, v50
    v_max3_f32 v56, v52, v54, v56
    v_max_f32_dpp v56, v56, v56 row_ror:8 {DPP}
    v_mov_b32 v57, v56
    v_permlane16_swap_b32 v57, v56
    v_max_f32 v56, v56, v57
    v_mov_b32 v57, v56
    v_permlane32_swap_b32 v57, v56
    v_max_f32 v56, v56, v57
    """)
    for a in range(4): A(f"v_sub_f32 v{48+2*a}, v{48+2*a}, v56")
    for a in range(4): A(f"v_exp_f32 v{48+2*a}, v{48+2*a}")
    A(f"""
    v_add_f32 v56, v48, v50
    v_add_f32 v57, v52, v54
    v_add_f32 v56, v56, v57
    v_add_f32_dpp v56, v56, v56 row_ror:8 {DPP}
    v_mov_b32 v57, v56
    v_permlane16_swap_b32 v57, v56
    v_add_f32 v56, v56, v57
    v_mov_b32 v57, v56
    v_permlane32_swap_b32 v57, v56
    v_add_f32 v56, v56, v57
    v_rcp_f32 v56, v56
L_ochk:
    s_waitcnt vmcnt(0)
    """)
    tagcheck([G+3, G+7, G+11, G+15], "L_oretry")
    A("L_ook:")
    stamp(9)
    for a in range(4): A(f"v_perm_b32 v{G+4*a+3}, v{G+4*a}, v{G+4*a+1}, s60")
    for a in range(4): A(f"v_perm_b32 v{G+4*a+3}, v{G+4*a+3}, v{G+4*a+2}, s61")
    for r in range(4): A(f"v_mul_f32 v{60+r}, v48, v{G+r}")
    for a in range(1, 4):
        for r in (0, 2, 1, 3): A(f"v_fmac_f32 v{60+r}, v{48+2*a}, v{G+4*a+r}")
    A(f"""
    v_permlane32_swap_b32 v60, v62
    v_permlane32_swap_b32 v61, v63
    v_add_f32 v60, v60, v62
    v_add_f32 v61, v61, v63
    v_permlane16_swap_b32 v60, v61
    v_add_f32 v60, v60, v61
    v_add_f32_dpp v60, v60, v60 row_ror:8 {DPP}
    v_mul_f32 v60, v60, v56
    v_mov_b32 v61, v60
    v_mov_b32 v63, {TAG}
    s_cmp_eq_u32 s62, 0
    v_permlane16_swap_b32 v61, v60
    s_mov_b32 exec_lo, 0xff
    s_mov_b32 exec_hi, 0xff
    v_cvt_pk_bf16_f32 v62, v61, v60
    s_cbranch_scc0 L_fslow
    global_store_dwordx2 v28, v[62:63], s[28:29]
L_fdone:
    s_mov_b64 exec, -1
    s_cmp_lt_u32 s44, 28
    s_cbranch_scc0 {fin}
    s_cmp_eq_u32 s3, 0
    s_cbranch_scc0 {fin}
    v_lshlrev_b32 v30, 16, v30
    v_lshlrev_b32 v31, 16, v31
    v_add_f32 v30, v30, v31                 ; x + b2
    s_mov_b32 s45, 0
L_ppoll:
    global_load_dwordx4 v[{G}:{G+3}], v29, s[28:29] sc1
    global_load_dwordx4 v[{G+4}:{G+7}], v29, s[28:29] offset:2048 sc1
    s_add_u32 s45, s45, 1
    s_cmp_ge_u32 s45, {spin}
    s_cbranch_scc1 L_pok
    s_waitcnt vmcnt(0)
    """)
    tagcheck([G+3, G+7], "L_ppoll")
    A("L_pok:")
    stamp(10)
    A(f"""
    v_perm_b32 v{G+3}, v{G}, v{G+1}, s60
    v_perm_b32 v{G+7}, v{G+4}, v{G+5}, s60
    v_add_f32 v{G}, v{G}, v{G+4}
    v_perm_b32 v{G+3}, v{G+3}, v{G+2}, s61
    v_perm_b32 v{G+7}, v{G+7}, v{G+6}, s61
    v_add_f32 v{G+2}, v{G+2}, v{G+6}
    v_add_f32 v{G+1}, v{G+1}, v{G+5}
    v_add_f32 v{G+3}, v{G+3}, v{G+7}
    v_permlane32_swap_b32 v{G}, v{G+2}
    v_permlane32_swap_b32 v{G+1}, v{G+3}
    v_add_f32 v{G}, v{G}, v{G+2}
    v_add_f32 v{G+1}, v{G+1}, v{G+3}
    v_permlane16_swap_b32 v{G}, v{G+1}
    v_add_f32 v{G}, v{G}, v{G+1}
    """)
    for sh in (4, 8):
        A(f"v_add_f32_dpp v{G}, v{G}, v{G} row_ror:{sh} {DPP}")
    A(f"""
    s_mov_b32 exec_lo, 0x000f000f
    s_mov_b32 exec_hi, 0x000f000f
    v_add_f32 v{G}, v{G}, v30
    v_cvt_pk_bf16_f32 v{G}, v{G}, v{G}
    global_store_short v3, v{G}, s[24:25]
    s_cmp_eq_u32 s44, 0
    s_cbranch_scc0 {fin}
    s_mov_b64 exec, 1
    v_mov_b32 v2, 0
    global_store_dword v2, v63, s[28:29]
    s_branch {fin}
L_lretry:
    s_add_u32 s45, s45, 1
    s_cmp_ge_u32 s45, {spin}
    s_cbranch_scc1 L_lok
    global_load_dwordx4 v[48:51], v26, s[28:29] sc1
    global_load_dwordx4 v[52:55], v26, s[28:29] offset:16 sc1
    s_waitcnt vmcnt(0)
    s_branch L_lchk
L_oretry:
    """)
    for a, m in enumerate(["vcc", "s[54:55]", "s[56:57]", "s[58:59]"]):
        A(f"s_mov_b64 exec, {m}")
        A(f"s_cbranch_execz L_or{a}")
        A(f"global_load_dwordx4 v[{G+4*a}:{G+4*a+3}], v27, s[28:29] offset:{1024*a} sc1")
        A(f"L_or{a}:")
    A(f"""
    s_mov_b64 exec, -1
    s_add_u32 s45, s45, 1
    s_cmp_ge_u32 s45, {spin}
    s_cbranch_scc0 L_ochk
    s_waitcnt vmcnt(0)
    s_branch L_ook
L_fslow:
    global_store_dwordx2 v28, v[62:63], s[28:29] sc1
    s_branch L_fdone
    """)
    A("L_gemv:\nL_hchk:")
    tagcheck([75, 79], "L_hretry")
    A(f"""
L_hok:
    v_perm_b32 v75, v72, v73, s60
    v_perm_b32 v79, v76, v77, s60
    v_perm_b32 v75, v75, v74, s61
    v_perm_b32 v79, v79, v78, s61
    """)
    for r in range(4): A(f"v_add_f32 v{72+r}, v{72+r}, v{76+r}")
    for sh in (4, 8):
        for r in range(4): A(f"v_add_f32_dpp v{72+r}, v{72+r}, v{72+r} row_ror:{sh} {DPP}")
    def rnd():
        A("""
        v_cvt_pk_bf16_f32 v82, v72, v73
        v_cvt_pk_bf16_f32 v83, v74, v75
        v_lshlrev_b32 v72, 16, v82
        v_and_b32 v73, 0xffff0000, v82
        v_lshlrev_b32 v74, 16, v83
        v_and_b32 v75, 0xffff0000, v83
        """)
    rnd()
    A("""
    v_lshlrev_b32 v76, 16, v80
    v_and_b32 v77, 0xffff0000, v80
    v_lshlrev_b32 v78, 16, v81
    v_and_b32 v79, 0xffff0000, v81
    """)
    for r in range(4): A(f"v_add_f32 v{72+r}, v{72+r}, v{76+r}")
    rnd()
    c1 = -2 * LOG2E * 0.7978845608028654
    A(f"v_mov_b32 v80, {f2u(c1)}")
    for r in range(4): A(f"v_mul_f32 v{76+r}, v{72+r}, v{72+r}")
    for r in range(4): A(f"v_fmamk_f32 v{76+r}, v{76+r}, {f2u(c1*0.044715)}, v80")
    for r in range(4): A(f"v_mul_f32 v{76+r}, v{76+r}, v{72+r}")
    for r in range(4): A(f"v_exp_f32 v{76+r}, v{76+r}")
    for r in range(4): A(f"v_add_f32 v{76+r}, 1.0, v{76+r}")
    for r in range(4): A(f"v_rcp_f32 v{76+r}, v{76+r}")
    for r in range(4): A(f"v_mul_f32 v{76+r}, v{76+r}, v{72+r}")
    A(f"""
    v_cvt_pk_bf16_f32 v82, v76, v77
    v_cvt_pk_bf16_f32 v83, v78, v79
    v_and_b32 v82, s63, v82
    v_and_b32 v83, s63, v83
    """)
    va.wait("W7")
    A("s_barrier")
    WF2 = 116
    for b in range(4): A(f"ds_read_b64_tr_b16 v[{WF2+2*b}:{WF2+2*b+1}], v24 offset:{W2L+2048*b}")
    for m in range(4):
        A(f"v_mov_b32_dpp v{72+2*m}, v82 row_newbcast:{m} {DPP}")
        A(f"v_mov_b32_dpp v{73+2*m}, v83 row_newbcast:{m} {DPP}")
    A(f"""
    s_waitcnt lgkmcnt(0)
    v_mfma_f32_16x16x32_bf16 v[48:51], v[{WF2}:{WF2+3}], v[72:75], 0
    v_mfma_f32_16x16x32_bf16 v[48:51], v[{WF2+4}:{WF2+7}], v[76:79], v[48:51]
    s_mov_b32 s45, 0
    v_mov_b32 v55, {TAG}
    """)
    va.wait(f"W{fpoll}")
    A("s_barrier")
    va.op("F", "global_load_dwordx4 v[64:67], v28, s[28:29] sc1")
    nb_early = max(0, (fpoll + 1 - 8) // 2)
    for b in range(nb_early): A(f"ds_read_b64_tr_b16 v[{WF2+8+2*b}:{WF2+9+2*b}], v24 offset:{WOL+2048*b}")
    va.wait("W23")
    A("s_barrier")
    for b in range(nb_early, 8): A(f"ds_read_b64_tr_b16 v[{WF2+8+2*b}:{WF2+9+2*b}], v24 offset:{WOL+2048*b}")
    stamp(8)
    A(f"""
L_fchk:
    s_waitcnt vmcnt(0)
    """)
    tagcheck([65, 67], "L_fretry")
    A("L_fok:")
    stamp(9)
    for kk in range(4):
        for h in range(2):
            A(f"v_mov_b32_dpp v{84+4*kk+2*h}, v64 row_newbcast:{2*kk+h} {DPP}")
            A(f"v_mov_b32_dpp v{85+4*kk+2*h}, v66 row_newbcast:{2*kk+h} {DPP}")
        if kk == 1: A("s_waitcnt lgkmcnt(0)")
        if kk >= 1: A(f"v_mfma_f32_16x16x32_bf16 v[48:51], v[{WF2+8+4*(kk-1)}:{WF2+11+4*(kk-1)}], v[{84+4*(kk-1)}:{87+4*(kk-1)}], v[48:51]")
    A(f"""
    v_mfma_f32_16x16x32_bf16 v[48:51], v[{WF2+20}:{WF2+23}], v[96:99], v[48:51]
    s_mov_b32 exec_lo, 0x00010001
    s_mov_b32 exec_hi, 0x00010001
    v_perm_b32 v52, v48, v51, s50
    v_perm_b32 v53, v49, v51, s51
    v_perm_b32 v54, v50, v51, s52
    global_store_dwordx4 v29, v[52:55], s[28:29] sc1
    """)
    stamp(10)
    if stamps: A("s_branch L_stamps")
    else: A("s_endpgm")
    A(f"""
L_fretry:
    global_load_dwordx4 v[64:67], v28, s[28:29] sc1
    s_add_u32 s45, s45, 1
    s_cmp_ge_u32 s45, {spin}
    s_cbranch_scc0 L_fchk
    s_waitcnt vmcnt(0)
    s_branch L_fok
L_hretry:
    s_add_u32 s45, s45, 1
    s_cmp_ge_u32 s45, {spin}
    s_cbranch_scc1 L_hok
    global_load_dwordx4 v[72:75], v26, s[28:29] sc1
    global_load_dwordx4 v[76:79], v27, s[28:29] sc1
    {"s_add_u32 s91, s91, 0x10000" if stamps else ""}
    s_waitcnt vmcnt(0)
    s_branch L_hchk
L_nohst:
    global_load_dword v148, v15, s[28:29]
    s_branch L_hstd
L_oslow:
    global_store_dwordx4 v14, v[64:67], s[28:29] sc1
    s_branch L_odone
L_lslow:
    global_store_dwordx2 v15, v[62:63], s[28:29] sc1
    s_branch L_ldone
L_qslow:
    v_subrev_u32 v67, {TAG}, v67
    v_subrev_u32 v71, {TAG}, v71
    v_or_b32 v67, v67, v71
    v_cmp_lt_u32 vcc, 15, v67
    v_mov_b32 v67, 1
    s_cbranch_vccz L_qok
    s_add_u32 s45, s45, 1
    s_cmp_ge_u32 s45, {spin}
    s_cbranch_scc1 L_qok
    global_load_dwordx4 v[64:67], v18, s[28:29] sc1
    global_load_dwordx4 v[68:71], v19, s[28:29] sc1
    {"s_add_u32 s91, s91, 1" if stamps else ""}
    s_waitcnt vmcnt(0)
    s_branch L_qchk
    """)
    if stamps:
        A(f"""
L_stamps:
    s_memrealtime s[86:87]
    s_mov_b64 exec, -1
    s_waitcnt vmcnt(0)
    s_memrealtime s[88:89]
    s_waitcnt lgkmcnt(0)
    s_lshl2_add_u32 s35, s2, s3
    s_lshl_b32 s35, s35, 6
    s_add_u32 s35, s35, {WS_ST}
    v_mov_b32 v2, s35
    """)
        for i in range(13):
            A(f"v_mov_b32 v3, s{64+2*i}")
            A(f"global_store_dword v2, v3, s[28:29] offset:{4*i}")
        A("v_mov_b32 v3, s45"); A("global_store_dword v2, v3, s[28:29] offset:52")
        A("v_mov_b32 v3, s91"); A("global_store_dword v2, v3, s[28:29] offset:56")
    if diag is not None:
        base, mult, idx = diag
        A(f"""
    s_waitcnt vmcnt(0) lgkmcnt(0)
    s_sub_u32 s34, s{64+2*idx}, s64
    s_cmp_eq_u32 s{64+2*idx}, 0
    s_cselect_b32 s34, 0, s34
    s_mul_i32 s34, s34, {mult}
    s_add_u32 s34, s34, {base}
L_diag:
    s_memrealtime s[36:37]
    s_waitcnt lgkmcnt(0)
    s_sub_u32 s36, s36, s64
    s_cmp_lt_u32 s36, s34
    s_cbranch_scc1 L_diag
    """)
    A("L_end:")
    A("s_endpgm")
    if stamps:
        idx = A.L.index("L_setup:") + 1
        for i in range(1, 13): A.L.insert(idx, f"s_mov_b32 s{64+2*i}, 0")
        A.L.insert(idx, "s_mov_b32 s91, 0")
    nfix = A.check()
    head = f"""; fused layernorm + sliding-window GQA decode attention + GELU MLP, one persistent launch (256 workgroups)
; @launch grid=(256,1,1) block=(256,1,1) lds={LDS_TOTAL}
.amdgcn_target "amdgcn-amd-amdhsa--gfx950"
.text
.globl {NAME}_kernel
.p2align 12
.type {NAME}_kernel,@function
{NAME}_kernel:
"""
    tail = f""".fill 1024, 4, 0xbf800000
.section .rodata,"a"
.p2align 6
.amdhsa_kernel {NAME}_kernel
  .amdhsa_next_free_vgpr 152
  .amdhsa_next_free_sgpr 96
  .amdhsa_accum_offset 152
  .amdhsa_group_segment_fixed_size 0
  .amdhsa_kernarg_size 104
  .amdhsa_user_sgpr_count 2
  .amdhsa_user_sgpr_kernarg_segment_ptr 1
  .amdhsa_system_sgpr_workgroup_id_x 1
  .amdhsa_float_denorm_mode_32 3
.end_amdhsa_kernel
"""
    return head + A.text() + tail

if __name__ == "__main__":
    out = sys.argv[1]
    kw = {}
    for a in sys.argv[2:]:
        k, v = a.split("=", 1)
        kw[k] = eval(v)
    open(out, "w").write(gen(**kw))
```

```python
import sys, struct, copy
from asmlib import *

W1L = 0; WQL = 7168; XNL = 21504; QL = 22528; QHS = 576; SL = 23680; SHS = 384; ML = 24448; FLG = 24480
W2L = 24576; WOL = 32768; KL = 49152; VL = 81920; LDS_TOTAL = 114688
WS_Q = 0x60000; WS_H = 0x20000; WS_L = 0x30000; WS_F = 0x38000; WS_P = 0x40000; WS_O = 0x80000; WS_ST = 0x400000
LOG2E = 1.4426950408889634
def f2u(x): return "0x%08x" % struct.unpack("<I", struct.pack("<f", x))[0]

class VM:
    def __init__(self, A): self.A = A; self.ops = []; self.done = -1
    def op(self, name, text): self.A(text); self.ops.append(name)
    def idx(self, name): return max(i for i, n in enumerate(self.ops) if n == name)
    def wait(self, name):
        i = self.idx(name)
        if i <= self.done: return
        n = len(self.ops) - 1 - i; assert n <= 63, n
        self.A(f"s_waitcnt vmcnt({n})"); self.done = i
    def fork(self):
        o = VM(self.A); o.ops = list(self.ops); o.done = self.done; return o

def gen(nt_w="", nt_kv="", nt_l="", stamps=False, spin=1 << 15, win=32, win0=None, qpos=15, diag=None, force_sc1=False, fpoll=19,
        kxor=True, near=True, nprobe=2, pdepth=1, outsc="", fine=0, winW=None, fdepth=1, ka=0, oearly=True, osc1=False, nWpre=24, nWearly=0, cyc=False, oclean=False, bridge=16, r0=False, wlim=24.0, qtrig=None, nb2=0, trig2=True, qposB=None, qplain=False, cap=None, hpos="k", eearly=True):
    A = Asm()
    if win0 is None: win0 = win
    if winW is None: winW = win
    ntw = " " + nt_w if nt_w else ""; ntk = " " + nt_kv if nt_kv else ""; ntl = " " + nt_l if nt_l else ""
    def stamp(i, force=False):
        if fine == 2 and i in (3, 4, 5) and not force: return
        if stamps: A(f"{'s_memtime' if cyc else 's_memrealtime'} s[{64+2*i}:{65+2*i}]")
    lg = (lambda n: 0) if stamps else (lambda n: n)
    TAG = "s38"
    fin = "L_stamps" if stamps else "L_end"
    def finish():
        if stamps: A("s_branch L_stamps")
        else: A("s_endpgm")
    DPP = "row_mask:0xf bank_mask:0xf"
    KA32 = "v_mfma_f32_32x32x16_bf16 v[160:175], v[152:155], v[152:155], v[160:175]"
    def keep(n, bit=2):
        if ka & bit:
            for _ in range(n): A(KA32)
    def tagcheck(regs, fail):
        dst = ["vcc", "s[54:55]", "s[56:57]", "s[58:59]"]
        for r, d in zip(regs, dst): A(f"v_cmp_ne_u32 {d}, {TAG}, v{r}")
        if len(regs) == 4: A("s_or_b64 s[40:41], vcc, s[54:55]\ns_or_b64 s[34:35], s[56:57], s[58:59]\ns_or_b64 s[40:41], s[40:41], s[34:35]"); A(f"s_cbranch_scc1 {fail}")
        elif len(regs) == 2: A("s_or_b64 vcc, vcc, s[54:55]"); A(f"s_cbranch_scc1 {fail}")
        else: A(f"s_cbranch_vccnz {fail}")
    stamp(0)
    A(f"""
    s_load_dwordx16 s[4:19], s[0:1], 0      ; x k v wq wo Bx w1 b1
    s_load_dwordx8 s[20:27], s[0:1], 64     ; w2 b2 out dbg
    s_load_dwordx2 s[28:29], s[0:1], 96     ; ws
    s_cmp_ge_u32 s2, 256
    s_cbranch_scc1 L_end
    v_lshrrev_b32 v1, 6, v0
    v_and_b32 v0, 63, v0                    ; lane
    v_readfirstlane_b32 s3, v1              ; wave
    s_and_b32 s30, s2, 7                    ; g
    s_lshr_b32 s31, s2, 3                   ; j
    v_lshrrev_b32 v2, 4, v0                 ; s
    v_and_b32 v5, 7, v0
    v_lshrrev_b32 v7, 3, v0
    s_lshr_b32 s33, s31, 2                  ; cg
    s_min_u32 s35, s31, 27
    s_mul_i32 s32, s30, 28
    s_add_u32 s32, s32, s35                 ; u
    s_and_b32 s42, s32, 7                   ; r8
    s_lshr_b32 s43, s32, 3                  ; B
    s_and_b32 s32, s31, 3                   ; rg
    s_lshl2_add_u32 s44, s30, s32           ; 4g + rg
    s_cmp_eq_u32 s3, 0
    s_cbranch_scc1 L_loader
    s_getpc_b64 s[40:41]
    s_lshl_b32 s34, s31, 8
    v_lshl_add_u32 v3, v0, 2, s34
    global_load_dword v148, v3, s[40:41] offset:768    ; the 32 workgroups of an XCD pull the code into its L2
    v_lshlrev_b32 v3, 4, v0
    v_mov_b32 v140, 0
    v_mov_b32 v141, 0
    v_mov_b32 v142, 0
    v_mov_b32 v143, 0
    s_bfm_b64 exec, 56, 0
    s_waitcnt lgkmcnt(0)
    global_load_dwordx4 v[140:143], v3, s[4:5]
    {"s_load_dword s38, s[28:29], 0           ; epoch" if eearly else ""}
    s_mov_b64 exec, -1
    s_branch L_comp
    """)
    va = VM(A)
    A(f"""
L_loader:
    v_lshlrev_b32 v6, 1, v2
    v_xor_b32 v6, v5, v6
    v_lshlrev_b32 v6, 4, v6
    s_mul_i32 s34, s32, {112*8192}
    s_lshl_b32 s35, s30, 10
    s_add_u32 s34, s34, s35
    s_xor_b32 s35, s33, 4
    s_lshl_b32 s35, s35, 7
    s_add_u32 s34, s34, s35
    v_lshl_add_u32 v8, v7, 13, s34
    v_add_u32 v8, v8, v6                    ; wq voffset
    s_mul_i32 s34, s42, {56*3584}
    s_lshl_b32 s35, s43, 7
    s_add_u32 s34, s34, s35
    s_movk_i32 s35, 3584
    v_mad_u32_u24 v9, v7, s35, v6
    v_add_u32 v9, s34, v9                   ; w1 voffset
    s_lshl_b32 s34, s30, 22
    s_lshl_b32 s35, s31, 15
    s_add_u32 s34, s34, s35
    s_add_u32 s34, s34, 0x300000
    s_movk_i32 s35, {4096 + (512 if kxor else 0)}
    v_mad_u32_u24 v4, v7, s35, v6
    v_add_u32 v4, s34, v4
    s_mov_b32 s37, {65536-1024}
    s_movk_i32 s36, {28672-1024}
    s_movk_i32 s46, -896
    s_movk_i32 m0, {WQL}
    s_waitcnt lgkmcnt(0)
    """)
    seq = [f"wq{i}" for i in range(14)] + [f"w1{i}" for i in range(7)] + [f"K{i}" for i in range(32)] + [f"W{i}" for i in range(nWearly)] + [f"V{i}" for i in range(32)] + [f"W{i}" for i in range(nWearly, 24)]
    pos = {n: i for i, n in enumerate(seq)}
    def issue(vm, n):
        kind = n.rstrip("0123456789") if not n.startswith("w1") else "w1"
        i = int(n[len(kind):])
        if kind == "wq":
            vm.op(n, f"global_load_lds_dwordx4 v8, s[10:11] offset:{1024*(i&3)}{ntw}")
            if i == 13: pass
            elif i & 3 == 3: A("s_addk_i32 m0, 4096"); A(f"v_add_u32 v8, {65536+3072}, v8")
            else: A("v_add_u32 v8, s37, v8")
        elif kind == "w1":
            if i == 0: A(f"s_movk_i32 m0, {W1L}\ns_cmp_lt_u32 s31, 28\ns_cselect_b64 exec, -1, 1")
            vm.op(n, f"global_load_lds_dwordx4 v9, s[16:17] offset:{1024*(i&3)}{ntw}")
            if i == 6: A(f"s_mov_b64 exec, -1\ns_mov_b32 m0, {KL}\nv_mov_b32 v3, v4")
            elif i & 3 == 3: A("s_addk_i32 m0, 4096"); A(f"v_add_u32 v9, {28672+3072}, v9")
            else: A("v_add_u32 v9, s36, v9")
        elif kind == "V" and i >= 16:
            q, ii = (i - 16) >> 2, (i - 16) & 3
            vm.op(n, f"global_load_lds_dwordx4 v{10+ii}, s[8:9] offset:{128*q}{ntk}")
            if i < 31: A(f"s_addk_i32 m0, {4096 if ii < 3 else 896 - 3*4096}")
        elif kind in "KV":
            vm.op(n, f"global_load_lds_dwordx4 v3, {'s[6:7]' if kind == 'K' else 's[8:9]'} offset:{1024*(i&3)}{ntk}")
            if i & 3 == 3:
                A("s_addk_i32 m0, 4096")
                nx = ((i + 1) >> 2) & 7
                if n != "V15": A(f"v_xor_b32 v3, {nx << 9:#x}, v4" if nx else "v_mov_b32 v3, v4")
            else: A("v_add_u32 v3, s46, v3")
        else:
            reg, ptr = ("v8", "s[20:21]") if i < 8 else ("v9", "s[12:13]")
            if nWearly and i == 0: A(f"s_movk_i32 m0, {W2L}\ns_cmp_lt_u32 s31, 28\ns_cselect_b64 exec, -1, 1")
            vm.op(n, f"global_load_lds_dwordx4 {reg}, {ptr} offset:{1024*(i&3)}{ntl}")
            if i < 23:
                if i & 3 == 3: A("s_addk_i32 m0, 4096")
                if i < 7:
                    grow = lambda i: (32*(i&1) + 4*(i>>1)) * 896 - 1024*(i&3)
                    A(f"v_add_u32 {reg}, {(grow(i+1)-grow(i)) & 0xffffffff:#x}, {reg}")
                elif i > 7:
                    grow = lambda i: (64*((i>>1)&3) + 16*(i>>3) + 8*(i&1)) * 896 - 1024*(i&3)
                    A(f"v_add_u32 {reg}, {(grow(i-7)-grow(i-8)) & 0xffffffff:#x}, {reg}")
            if i == nWearly - 1: A(f"s_mov_b64 exec, -1\ns_mov_b32 m0, {VL}")
    assert win0 >= 21
    assert nWearly == 0 and -1 <= qpos <= 27
    qidx = pos["V0"] + qpos
    vsep = qpos < 15
    acts = []
    tprev = -1
    for k, n in enumerate(seq):
        t = -1 if k < win0 else k - (winW if k > pos["V31"] else win)
        t = max(t, tprev); tprev = t
        if n[0] == "W" and int(n[1:]) >= nWpre:
            tprev = pos["V31"]; acts.append((tprev, 5, k, "issue", n)); continue
        if nWpre < 24 and k > pos["V31"]: assert t <= pos["V31"]
        if cap is not None and k > cap and t <= 20:
            tprev = 20; acts.append((20, 1.5, k, "issue", n)); continue
        acts.append((t, 0, k, "issue", n))
        if k == qidx:
            tprev = max(t, 20, qtrig if qtrig is not None else 0); acts.append((tprev, 2, k, "bar", "trig"))
        if qposB is not None and k == pos["V0"] + qposB: acts.append((t, 3, k + 0.5, "bar", "trigB"))
        if k == win0 - 1: acts.append((t, 0, k + 0.5, "setup", None))
    evs = [(13, "wq"), (20, "w1"), (52, "k"), (qidx, "b1"), (qidx, "b2")] + ([(pos["V15"], "v1")] if vsep else []) + [(pos["V27"], "v3"), (pos["V31"], "v")]
    for e, (t, nm) in enumerate(evs): acts.append((t, 1, e, "bar", nm))
    for e, (n, nm) in enumerate((("W7", "w2"), (f"W{fpoll}", "pre"), ("W23", "wo"))): acts.append((max(pos[n], pos["V31"]), 6, e, "bar", nm))
    if nWpre < 24: acts.append((pos["V31"], 4, 0, "bar", "o"))
    tq = [a for a in acts if a[4] == "trig"][0]
    acts = [(a[0], 3, a[2], a[3], a[4]) if (a[3] == "issue" and a[0] == tq[0] and a[2] > tq[2]) else a for a in acts]
    acts.sort(key=lambda a: a[:3])
    ib2 = [n for n, a in enumerate(acts) if a[4] == "b2"][0]
    mv = [a for a in acts[ib2:] if a[3] == "issue" and a[1] == 0][:nb2]
    acts = acts[:ib2] + [(qidx,) + a[1:] for a in mv] + [a for a in acts[ib2:] if a not in mv]
    order = [a[4] for a in acts if a[3] == "bar"]
    nfirst = 4 if qposB is None else 5
    nsp = [0]
    def play(vm, a, comb):
        t, _, _, kind, arg = a
        if comb and (kind == "issue" or arg in ("w2", "pre", "wo")): return
        if kind == "bar" and (ka & 16) and arg in ("v3", "v", "pre", "wo") and vm.idx(seq[t]) > vm.done:
            n = len(vm.ops) - 1 - vm.idx(seq[t]); nsp[0] += 1
            A(f"""
L_sp{nsp[0]}:
            {KA32}
            s_getreg_b32 s40, hwreg(HW_REG_IB_STS)
            s_and_b32 s40, s40, 0xc0000f
            s_cmp_gt_u32 s40, {(n & 15) | ((n >> 4) << 22):#x}
            s_cbranch_scc1 L_sp{nsp[0]}
            """)
        if t >= 0: vm.wait(seq[t])
        if kind == "issue":
            issue(vm, arg)
            if arg == "W23": stamp(3)
        elif kind == "bar":
            if arg == "wq" and fine == 2: stamp(4, True)
            if arg == "w1" and fine == 2: stamp(5, True)
            if arg == "v": stamp(6)
            if arg == "wo": stamp(8)
            A("s_barrier")
            if arg == "trig" and trig2: A("s_barrier")
            if (ka & 16) and arg in ("v", "wo"):
                for e in range(bridge): A("v_mov_b32 v14, v0")
        else:
            A(f"""
            s_load_dword s38, s[28:29], 0
            s_lshr_b32 s34, s30, 1
            s_mul_i32 s34, s34, 7
            s_and_b32 s35, s30, 1
            s_lshl2_add_u32 s35, s35, s32
            s_min_u32 s35, s35, 6
            s_add_u32 s34, s34, s35                 ; B2
            s_min_u32 s36, s33, 6
            s_lshl_b32 s36, s36, 7
            v_mul_u32_u24 v9, 896, v7
            v_add3_u32 v9, v9, v6, s36
            s_mul_i32 s34, s34, {64*896}
            v_lshrrev_b32 v8, 5, v0
            v_mul_u32_u24 v8, {12*896}, v8
            v_add3_u32 v8, v8, v9, s34              ; w2 voffset: LDS row 16m+4s+r holds unit 16s+4m+r
            s_lshr_b32 s34, s44, 1
            s_lshl_b32 s34, s34, 3
            s_and_b32 s35, s32, 1
            s_add_u32 s34, s34, s35
            s_mul_i32 s34, s34, {32*896}
            v_add_u32 v9, s34, v9                   ; wo voffset: LDS row 64a+16t+c holds dim 64t + 32*(rg&1) + 16a + c
            v_xor_b32 v10, 0x800, v4
            v_xor_b32 v11, 0xa00, v4
            v_xor_b32 v12, 0xc00, v4
            v_xor_b32 v13, 0xe00, v4
            v_mov_b32 v152, 0
            v_mov_b32 v153, 0
            v_mov_b32 v154, 0
            v_mov_b32 v155, 0
            """)
            stamp(1)
    split = [n for n, a in enumerate(acts) if a[4] == "V31"][0] + 1
    for a in acts[:split]: play(va, a, False)
    stamp(2)
    assert nWearly % 4 == 0
    A(f"s_mov_b32 m0, {W2L + 1024*nWearly}\ns_cmp_lt_u32 s31, 28\ns_cbranch_scc0 L_cload")
    vc = va.fork()
    for a in acts[split:]: play(va, a, False)
    finish()
    G = 32
    A(f"""
L_cload:
    s_min_u32 s34, s44, 27                  ; tile
    s_lshr_b32 s35, s34, 2
    s_lshl_b32 s35, s35, 14
    s_and_b32 s47, s34, 3
    s_lshl_b32 s47, s47, 11
    s_add_u32 s47, s47, s35
    s_add_u32 s47, s47, {WS_P}
    v_lshl_add_u32 v29, v0, 4, s47
    s_lshl_b32 s34, s34, 4
    v_and_b32 v16, 3, v0
    v_lshl_add_u32 v19, v16, 2, v2
    v_add_lshl_u32 v19, v19, s34, 1
    """)
    for a in acts[split:]: play(vc, a, True)
    A("global_load_ushort v30, v19, s[4:5]\nglobal_load_ushort v31, v19, s[22:23]")
    A(f"""
    s_cmp_lt_u32 s44, 28
    s_cbranch_scc0 {fin}
    s_mov_b32 s60, 0x0c0c0400
    s_mov_b32 s61, 0x0504000c
    s_mov_b32 s45, 0
    s_waitcnt lgkmcnt(0)
    s_mul_i32 s38, s38, 1664525
    s_add_u32 s38, s38, 1013904223          ; tag
    """)
    if near:
        A("s_add_u32 s48, s47, 0x2000\ns_mov_b32 s50, -1\ns_mov_b32 s51, -1")
        for r in range(nprobe):
            for c in range(2):
                A(f"""
                s_memtime s[52:53]
                s_load_dword s49, s[28:29], s{47+c} glc
                s_waitcnt lgkmcnt(0)
                s_memtime s[54:55]
                s_waitcnt lgkmcnt(0)
                s_sub_u32 s49, s54, s52
                s_min_u32 s{50+c}, s{50+c}, s49
                """)
        A("s_cmp_lt_u32 s51, s50\ns_cselect_b32 s49, 0x2000, 0\nv_add_u32 v29, s49, v29")
        if stamps: A("s_lshl_b32 s91, s51, 16\ns_add_u32 s91, s91, s50")
    A("""
    s_waitcnt vmcnt(0)
    v_lshlrev_b32 v30, 16, v30
    v_lshlrev_b32 v31, 16, v31
    v_add_f32 v30, v30, v31                 ; x + b2
    """)
    stamp(7)
    A("s_barrier")
    stamp(9)
    def pissue(k):
        A(f"global_load_dwordx4 v[{G+8*k}:{G+8*k+3}], v29, s[28:29] sc1")
        A(f"global_load_dwordx4 v[{G+8*k+4}:{G+8*k+7}], v29, s[28:29] offset:1024 sc1")
    A("L_ppoll:")
    pissue(0)
    A(f"""
    s_add_u32 s45, s45, 1
    s_cmp_ge_u32 s45, {spin}
    s_cbranch_scc1 L_pok
    s_waitcnt vmcnt(0)
    """)
    A(f"""
    v_cmp_ne_u32 vcc, {TAG}, v{G+3}
    v_cmp_ne_u32 s[54:55], {TAG}, v{G+7}
    v_perm_b32 v{G+3}, v{G}, v{G+1}, s60
    v_perm_b32 v{G+7}, v{G+4}, v{G+5}, s60
    v_perm_b32 v{G+3}, v{G+3}, v{G+2}, s61
    v_perm_b32 v{G+7}, v{G+7}, v{G+6}, s61
    v_pk_add_f32 v[{G}:{G+1}], v[{G}:{G+1}], v[{G+4}:{G+5}]
    v_pk_add_f32 v[{G+2}:{G+3}], v[{G+2}:{G+3}], v[{G+6}:{G+7}]
    s_or_b64 vcc, vcc, s[54:55]
    s_cbranch_scc1 L_ppoll
L_pok:
    """)
    stamp(10)
    A(f"""
    v_permlane32_swap_b32 v{G}, v{G+2}
    v_permlane32_swap_b32 v{G+1}, v{G+3}
    v_pk_add_f32 v[{G}:{G+1}], v[{G}:{G+1}], v[{G+2}:{G+3}]
    v_permlane16_swap_b32 v{G}, v{G+1}
    v_add_f32 v{G}, v{G}, v{G+1}
    """)
    for sh in (4, 8):
        A(f"v_add_f32_dpp v{G}, v{G}, v{G} row_ror:{sh} {DPP}")
    A(f"""
    s_mov_b32 exec_lo, 0x000f000f
    s_mov_b32 exec_hi, 0x000f000f
    v_add_f32 v{G}, v{G}, v30
    v_cvt_pk_bf16_f32 v{G}, v{G}, v{G}
    global_store_short v19, v{G}, s[24:25] {outsc}
    s_cmp_eq_u32 s44, 0
    s_cbranch_scc0 {fin}
    s_mov_b64 exec, 1
    v_mov_b32 v2, 0
    v_mov_b32 v63, s38
    global_store_dword v2, v63, s[28:29] {outsc}
    """)
    finish()
    A(f"""
L_comp:
    """)
    if fine == 2: stamp(3, True)
    A(f"""
    {"s_load_dword s38, s[28:29], 0           ; epoch" if not eearly else ""}
    s_sub_u32 s3, s3, 1                     ; w
    v_and_b32 v1, 15, v0                    ; n
    v_lshrrev_b32 v8, 3, v1                 ; head = n>>3
    v_and_b32 v16, 3, v0
    s_lshl_b32 s34, s30, 13
    s_xor_b32 s35, s33, 4
    s_lshl3_add_u32 s35, s32, s35
    s_lshl_b32 s35, s35, 8
    s_add_u32 s35, s34, s35
    s_lshl_b32 s36, s3, 6
    s_add_u32 s35, s35, s36
    s_add_u32 s35, s35, {WS_Q}
    v_lshl_add_u32 v30, v2, 4, s35
    s_mul_i32 s35, s42, 7168
    s_add_u32 s35, s35, s36
    s_lshl_b32 s36, s43, 8
    s_add_u32 s35, s35, s36
    s_add_u32 s35, s35, {WS_H}
    v_lshl_add_u32 v31, v2, 4, s35
    global_load_dword v148, v30, s[28:29]
    global_load_dword v148, v31, s[28:29]
    v_bfe_u32 v14, v0, 2, 3
    v_lshlrev_b32 v14, 7, v14
    v_and_b32 v15, 3, v7
    v_lshl_add_u32 v14, v15, 5, v14
    v_lshl_add_u32 v14, v16, 3, v14
    v_lshrrev_b32 v15, 5, v0
    s_lshl_b32 s36, s3, 5
    v_xor_b32 v24, s36, v14
    v_lshl_add_u32 v20, v15, 12, v24
    v_add_u32 v20, {VL}, v20
    v_lshl_add_u32 v24, v15, 10, v24
    s_mul_i32 s35, s32, 224
    v_lshl_add_u32 v28, v2, 3, s35
    s_mul_i32 s35, s42, 112
    v_lshl_add_u32 v29, v2, 3, s35
    s_mov_b32 s50, 0x07060503
    s_mov_b32 s51, 0x07060502
    s_mov_b32 s52, 0x07060501
    s_getreg_b32 s39, hwreg(HW_REG_XCC_ID, 0, 4)
    v_mov_b32 v46, 0
    v_mov_b32 v47, 0
    v_mov_b32 v78, 0
    v_mov_b32 v79, 0
    v_mov_b32 v54, 0
    v_mov_b32 v55, 0
    s_mov_b32 s37, 0
    v_mov_b32 v6, 0
    v_mov_b32 v26, 0
    v_mov_b32 v27, 0
    s_cmp_eq_u32 s3, 0
    s_cbranch_scc0 L_noln
    """)
    if fine == 2: stamp(4, True)
    A("s_waitcnt vmcnt(2)")
    if fine == 2: stamp(5, True)
    X = 32
    for i in range(4):
        A(f"v_lshlrev_b32 v{X+2*i}, 16, v{140+i}")
        A(f"v_and_b32 v{X+1+2*i}, 0xffff0000, v{140+i}")
    def allreduce_add(r, t):
        for sh in (1, 2, 4, 8):
            A(f"v_add_f32_dpp v{r}, v{r}, v{r} row_ror:{sh} {DPP}")
        A(f"v_mov_b32 v{t}, v{r}")
        A(f"v_permlane16_swap_b32 v{t}, v{r}")
        A(f"v_add_f32 v{r}, v{r}, v{t}")
        A(f"v_mov_b32 v{t}, v{r}")
        A(f"v_permlane32_swap_b32 v{t}, v{r}")
        A(f"v_add_f32 v{r}, v{r}, v{t}")
    A(f"v_add_f32 v40, v{X}, v{X+1}")
    for i in range(2, 8): A(f"v_add_f32 v40, v40, v{X+i}")
    allreduce_add(40, 41)
    A(f"""
    v_mul_f32 v40, {f2u(1/448)}, v40        ; mean
    v_mov_b32 v42, 0
    s_bfm_b64 exec, 56, 0
    """)
    for i in range(8):
        A(f"v_sub_f32 v43, v{X+i}, v40")
        A("v_fmac_f32 v42, v43, v43")
    A("s_mov_b64 exec, -1")
    allreduce_add(42, 41)
    A(f"""
    v_mul_f32 v42, {f2u(1/448)}, v42        ; var
    v_cvt_pk_bf16_f32 v40, v40, v42
    v_and_b32 v42, 0xffff0000, v40          ; bf16(var)
    v_lshlrev_b32 v40, 16, v40              ; bf16(mean)
    v_add_f32 v42, {f2u(1e-5)}, v42
    v_cvt_pk_bf16_f32 v42, v42, v42
    v_lshlrev_b32 v42, 16, v42
    v_sqrt_f32 v42, v42
    v_cvt_pk_bf16_f32 v42, v42, v42
    v_lshlrev_b32 v42, 16, v42
    v_rcp_f32 v42, v42
    """)
    for i in range(8): A(f"v_sub_f32 v{X+i}, v{X+i}, v40")
    for i in range(4): A(f"v_cvt_pk_bf16_f32 v{56+i}, v{X+2*i}, v{X+1+2*i}")
    for i in range(4):
        A(f"v_lshlrev_b32 v{X+2*i}, 16, v{56+i}")
        A(f"v_and_b32 v{X+1+2*i}, 0xffff0000, v{56+i}")
    for i in range(8): A(f"v_mul_f32 v{X+i}, v{X+i}, v42")
    for i in range(4): A(f"v_cvt_pk_bf16_f32 v{56+i}, v{X+2*i}, v{X+1+2*i}")
    A(f"""
    ds_write_b128 v3, v[56:59] offset:{XNL}
L_noln:
    s_waitcnt lgkmcnt(0)
    s_mul_i32 s38, s38, 1664525
    s_add_u32 s38, s38, 1013904223          ; tag
    s_add_u32 s39, s39, s38
    """)
    stamp(1)
    assert order[:2] == ["wq", "w1"] and sorted(order[2:nfirst]) == ["k", "trig", "trigB"][:nfirst-2] and [o for o in order[nfirst:] if o not in ("o", "v1")] == ["b1", "b2", "v3", "v", "w2", "pre", "wo"], order
    A("s_barrier")
    XQ = 32; XH = 48; WF = 64
    for b in range(7):
        A(f"ds_read_b64 v[{XQ+2*b}:{XQ+2*b+1}], v28 offset:{XNL+32*b}")
        A(f"ds_read_b64_tr_b16 v[{WF+2*b}:{WF+2*b+1}], v24 offset:{WQL+2048*b}")
    A("v_mov_b32 v63, s39")
    for kk in range(4):
        A(f"s_waitcnt lgkmcnt({lg(max(0, 14-4*(kk+1)))})")
        c = "0" if kk == 0 else "v[56:59]"
        A(f"v_mfma_f32_16x16x32_bf16 v[56:59], v[{WF+4*kk}:{WF+4*kk+3}], v[{XQ+4*kk}:{XQ+4*kk+3}], {c}")
    for b in range(3): A(f"ds_read_b64 v[{XH+2*b}:{XH+2*b+1}], v29 offset:{XNL+32*b}")
    A(f"""
    s_mov_b32 exec_hi, 0
    ds_read_b64 v[{XH+6}:{XH+7}], v29 offset:{XNL+96}
    s_mov_b32 exec_lo, 0x00010001
    s_mov_b32 exec_hi, 0x00010001
    v_perm_b32 v60, v56, v59, s50
    v_perm_b32 v61, v57, v59, s51
    v_perm_b32 v62, v58, v59, s52
    """)
    if qplain:
        A("global_store_dwordx4 v30, v[60:63], s[28:29]\nv_add_u32 v30, 0x10000, v30")
    A("""
    global_store_dwordx4 v30, v[60:63], s[28:29] sc1
    s_mov_b64 exec, -1
    """)
    stamp(2)
    A(f"""
    s_cmp_lt_u32 s31, 28
    s_barrier
    s_cbranch_scc0 L_noh
    """)
    for b in range(4): A(f"ds_read_b64_tr_b16 v[{WF+2*b}:{WF+2*b+1}], v24 offset:{W1L+2048*b}")
    A(f"""
    v_mov_b32 v63, s38
    s_waitcnt lgkmcnt({lg(2)})
    v_mfma_f32_16x16x32_bf16 v[56:59], v[{WF}:{WF+3}], v[{XH}:{XH+3}], 0
    s_waitcnt lgkmcnt(0)
    v_mfma_f32_16x16x32_bf16 v[56:59], v[{WF+4}:{WF+7}], v[{XH+4}:{XH+7}], v[56:59]
    s_mov_b32 exec_lo, 0x00010001
    s_mov_b32 exec_hi, 0x00010001
    v_perm_b32 v60, v56, v59, s50
    v_perm_b32 v61, v57, v59, s51
    v_perm_b32 v62, v58, v59, s52
    global_store_dwordx4 v31, v[60:63], s[28:29] sc1
    s_mov_b64 exec, -1
    s_branch L_hdone
L_noh:
    s_lshl_b32 s36, s30, 11
    s_and_b32 s35, s32, 1
    s_lshl_b32 s35, s35, 10
    s_add_u32 s36, s36, s35
    s_lshr_b32 s35, s3, 1
    s_lshl_b32 s35, s35, 9
    s_add_u32 s36, s36, s35
    s_lshr_b32 s35, s32, 1
    s_lshl_b32 s35, s35, 8
    s_add_u32 s36, s36, s35
    s_add_u32 s37, s36, {WS_L}
    v_lshl_add_u32 v26, v7, 5, s37          ; L poll
    s_lshl2_add_u32 s36, s44, s3
    s_lshl_b32 s35, s36, 12
    s_add_u32 s35, s35, {WS_O}
    v_lshl_add_u32 v30, v0, 4, s35          ; O gather
    s_lshl_b32 s35, s36, 7
    s_add_u32 s35, s35, {WS_F}
    v_lshl_add_u32 v28, v5, 4, s35
    v_lshl_add_u32 v28, v15, 3, v28         ; F store
    global_load_dword v148, v26, s[28:29]
    global_load_dword v148, v28, s[28:29]
    s_min_u32 s36, s44, 27
    s_lshr_b32 s35, s36, 2
    s_lshl_b32 s35, s35, 14
    s_and_b32 s40, s36, 3
    s_lshl_b32 s40, s40, 11
    s_add_u32 s35, s35, s40
    s_lshl_b32 s40, s3, 9
    s_add_u32 s35, s35, s40
    s_add_u32 s37, s35, {WS_P}
    s_lshl_b32 s36, s36, 5
    s_lshr_b32 s33, s32, 1
    s_lshl_b32 s33, s33, 3
    s_load_dword s41, s[22:23], s36
    s_load_dword s41, s[24:25], s36
    """)
    for e in range(8): A(f"s_load_dword s41, s[28:29], s37 offset:{64*e}")
    A(f"""
L_hdone:
    s_lshl_b32 s35, s3, 9
    s_add_u32 s34, s34, s35
    s_add_u32 s34, s34, {WS_Q}
    v_and_b32 v10, 31, v0
    v_lshl_add_u32 v18, v15, 11, s34
    v_lshl_add_u32 v18, v10, 4, v18
    v_add_u32 v19, 0x1000, v18
    s_lshl_b32 s34, s30, 16
    s_lshl_b32 s35, s3, 13
    s_add_u32 s35, s35, s34
    s_lshl_b32 s36, s31, 7
    s_add_u32 s35, s35, s36
    s_add_u32 s35, s35, {WS_O}
    v_lshl_add_u32 v14, v8, 15, s35
    v_lshl_add_u32 v14, v15, 12, v14
    v_and_b32 v9, 1, v2
    v_lshl_add_u32 v14, v9, 6, v14
    v_lshl_add_u32 v14, v16, 4, v14
    global_load_dword v148, v14, s[28:29]
    """)
    def setup2():
        A(f"""
    s_lshr_b32 s34, s3, 1
    s_mul_i32 s34, s34, {QHS}
    s_and_b32 s35, s3, 1
    s_lshl_b32 s35, s35, 8
    s_add_u32 s34, s34, s35
    v_lshl_add_u32 v10, v10, 3, s34
    v_lshl_add_u32 v17, v15, 2, v10
    v_mul_u32_u24 v9, {QHS}, v8
    v_lshl_add_u32 v9, v2, 4, v9
    v_mul_u32_u24 v10, {SHS}, v8
    v_lshl_add_u32 v10, v2, 6, v10
    s_lshl_b32 s36, s3, 4
    v_add_u32 v11, s36, v10
    v_lshlrev_b32 v12, 2, v8
    v_mov_b32 v13, 0xff800000
    ds_write_b32 v12, v13 offset:{ML}
    s_lshl_b32 s36, s3, 2
    v_mov_b32 v25, s36
    s_lshl_b32 s36, s3, 13
    s_add_u32 s36, s36, {KL}
    v_lshl_add_u32 v3, v8, 12, s36
    v_lshl_add_u32 v3, v5, 7, v3
    v_and_b32 v4, 6, v0
    v_xor_b32 v4, v4, v2
    v_lshl_add_u32 v3, v4, 4, v3
    v_xor_b32 v4, 64, v3
    s_lshl_b32 s34, s30, 11
    s_lshl_b32 s35, s3, 9
    s_add_u32 s34, s34, s35
    s_and_b32 s35, s31, 7
    s_lshl_b32 s35, s35, 5
    s_add_u32 s34, s34, s35
    s_and_b32 s35, s31, 24
    s_add_u32 s34, s34, s35
    s_add_u32 s34, s34, {WS_L}
    v_lshl_add_u32 v13, v8, 8, s34
    s_mov_b32 s46, 0x01010101
    s_mov_b32 s47, s46
    s_mov_b32 s48, 0x0f0f0f0f
    s_mov_b32 s49, s48
    s_mov_b32 s53, {f2u(LOG2E/16)}
    s_mov_b32 s60, 0x0c0c0400
    s_mov_b32 s61, 0x0504000c
    s_mov_b32 s45, 0
    v_mov_b32 v152, 0x3f803f80
    v_mov_b32 v153, v152
    v_mov_b32 v154, v152
    v_mov_b32 v155, v152
    s_cmp_lt_u32 s31, 28
    s_cbranch_scc1 L_gsetup
    """)
        for e in range(8): A(f"s_load_dword s41, s[28:29], s37 offset:{8192+64*e}")
        A(f"""
    s_branch L_sdone
L_gsetup:
    s_lshr_b32 s34, s30, 1
    s_mul_i32 s34, s34, 7
    s_and_b32 s35, s30, 1
    s_lshl2_add_u32 s35, s35, s32           ; 4*(g&1) + rg
    s_cmp_eq_u32 s35, 7
    s_cselect_b32 s63, 0, -1                ; no hidden block for this workgroup -> h = 0
    s_min_u32 s35, s35, 6
    s_add_u32 s34, s34, s35                 ; B2
    s_lshl_b32 s35, s34, 8
    s_add_u32 s35, s35, {WS_H}
    v_lshrrev_b32 v26, 2, v1
    v_mul_u32_u24 v26, 7168, v26
    v_lshl_add_u32 v26, v2, 6, v26
    v_lshl_add_u32 v26, v16, 4, v26
    v_add_u32 v26, s35, v26                 ; H poll a=0
    v_add_u32 v27, {4*7168}, v26            ; H poll a=1
    s_lshl_b32 s35, s34, 7
    v_lshl_add_u32 v6, v16, 3, s35
    v_lshl_add_u32 v6, v2, 5, v6            ; b1 offset: unit 64*B2 + 16s + 4*(n&3)
    s_lshl_b32 s35, s44, 9
    s_add_u32 s35, s35, {WS_F}
    v_bfe_u32 v28, v0, 2, 1
    v_lshl_add_u32 v28, v28, 8, s35
    v_lshl_add_u32 v28, v2, 6, v28
    v_lshl_add_u32 v28, v16, 4, v28
    s_lshl_b32 s35, s33, 14
    s_lshl_b32 s36, s3, 11
    s_add_u32 s35, s35, s36
    s_lshl_b32 s36, s44, 6
    s_add_u32 s35, s35, s36
    s_add_u32 s35, s35, {WS_P}
    v_lshl_add_u32 v29, v2, 4, s35
    v_add_u32 v30, 0x2000, v29
L_sdone:
    """)
    vw = VM(A)
    def hpolls():
        A("s_cmp_lt_u32 s31, 28\ns_cbranch_scc0 L_nohp")
        vw.op("H", "global_load_dwordx4 v[72:75], v26, s[28:29] sc1")
        vw.op("H", "global_load_dwordx4 v[76:79], v27, s[28:29] sc1")
        vw.op("H", "global_load_dwordx2 v[80:81], v6, s[18:19]")
        A("L_nohp:")
    for ev in order[2:nfirst]:
        if ev == "trig":
            A("s_barrier")
            vw.op("Q", "global_load_dwordx4 v[64:67], v18, s[28:29] sc1")
            vw.op("Q", "global_load_dwordx4 v[68:71], v19, s[28:29] sc1")
            if trig2: A("s_barrier")
            stamp(3)
        elif ev == "trigB":
            A("s_barrier")
            vw.op("QB", "global_load_dwordx4 v[176:179], v18, s[28:29] sc1")
            vw.op("QB", "global_load_dwordx4 v[180:183], v19, s[28:29] sc1")
        else:
            setup2()
            A("s_barrier")
            if hpos == "k": hpolls()
            for i in range(8): A(f"ds_read_b128 v[{32+4*i}:{35+4*i}], v{3+(i&1)} offset:{1024*(i>>1)}")
    nq = len(vw.ops) - 1 - vw.idx("Q")
    if ka & 1:
        A(f"""
        s_cmp_lt_u32 s31, 28
        s_cselect_b32 s34, {nq}, 0
        s_movk_i32 s35, 200
L_qspin:
        v_mfma_f32_32x32x16_bf16 v[160:175], v[152:155], v[152:155], v[160:175]
        s_sub_u32 s35, s35, 1
        s_cbranch_scc1 L_qspun
        s_getreg_b32 s36, hwreg(HW_REG_IB_STS, 0, 4)
        s_cmp_gt_u32 s36, s34
        s_cbranch_scc1 L_qspin
L_qspun:
        """)
    nqc = len([o for o in vw.ops[vw.idx("Q")+1:] if o != "H"])
    if nq != nqc:
        A(f"s_cmp_lt_u32 s31, 28\ns_cbranch_scc1 L_qw\ns_waitcnt vmcnt({nqc})\nL_qw:")
    vw.wait("Q")
    if qposB is not None: nqb = len(vw.ops) - 1 - vw.idx("QB")
    QF = 84; VF = 116
    vreg = lambda t, kb: VF + 16*(kb >> 1) + 4*t + 2*(kb & 1)
    A(f"""
L_qchk:
    v_cmp_ne_u32 vcc, s39, v67
    v_cmp_ne_u32 s[54:55], s39, v71
    v_perm_b32 v82, v64, v65, s60
    v_perm_b32 v83, v68, v69, s60
    v_perm_b32 v82, v82, v66, s61
    v_perm_b32 v83, v83, v70, s61
    s_or_b64 vcc, vcc, s[54:55]
    s_cbranch_scc1 L_qslow
    v_mov_b32 v67, {1 if force_sc1 else 0}
L_qok:
    """)
    stamp(4)
    A(f"""
    v_add_f32 v64, v64, v68
    v_add_f32 v66, v66, v70
    v_add_f32 v65, v65, v69
    v_add_f32 v82, v82, v83
    v_permlane32_swap_b32 v64, v66
    ds_write_b32 v25, v67 offset:{FLG}
    v_permlane32_swap_b32 v65, v82
    v_add_f32 v64, v64, v66
    v_add_f32 v65, v65, v82
    v_cvt_pk_bf16_f32 v64, v64, v65
    ds_write_b32 v17, v64 offset:{QL}
    v_mov_b32 v83, 0
    s_waitcnt lgkmcnt(0)
    s_barrier
    """)
    if fine == 1: stamp(1)
    for i in range(8):
        A(f"ds_read_b128 v[{QF+4*i}:{QF+4*i+3}], v9 offset:{QL+64*i}")
    if hpos == "b1": hpolls()
    vreads = [(t, kb) for kb in range(2) for t in range(4)]
    extra = 0
    for i in range(8):
        A(f"s_waitcnt lgkmcnt({7-i+extra})")
        A(f"v_mfma_f32_16x16x32_bf16 v[64:67], v[{32+4*i}:{35+4*i}], v[{QF+4*i}:{QF+4*i+3}], {'0' if i == 0 else 'v[64:67]'}")
        if 2 <= i < 6 and not vsep:
            for t, kb in vreads[2*i-4:2*i-2]: A(f"ds_read_b64_tr_b16 v[{vreg(t,kb)}:{vreg(t,kb)+1}], v20 offset:{8192*kb+1024*t}"); extra += 1
        if i == 6: A(f"ds_read_b128 v[156:159], v83 offset:{FLG}"); extra += 1
    if fine == 1: stamp(2)
    keep(1)
    A(f"""
    v_cvt_pk_bf16_f32 v68, v64, v65
    v_cvt_pk_bf16_f32 v69, v66, v67
    v_lshlrev_b32 v64, 16, v68
    v_and_b32 v65, 0xffff0000, v68
    v_lshlrev_b32 v66, 16, v69
    v_and_b32 v67, 0xffff0000, v69
    v_max_f32 v68, v64, v65
    v_max3_f32 v68, v66, v67, v68
    v_mul_f32 v68, s53, v68
    v_ceil_f32 v68, v68
    v_fma_f32 v64, v64, s53, -v68
    v_fma_f32 v65, v65, s53, -v68
    v_fma_f32 v66, v66, s53, -v68
    v_fma_f32 v67, v67, s53, -v68
    v_mul_f32 v70, 0x43000000, v68
    s_mov_b64 exec, s[46:47]
    ds_max_f32 v12, v70 offset:{ML}
    v_exp_f32 v64, v64
    v_exp_f32 v65, v65
    v_exp_f32 v66, v66
    v_exp_f32 v67, v67
    v_cvt_pk_bf16_f32 v68, v64, v65
    v_cvt_pk_bf16_f32 v69, v66, v67
    ds_write_b96 v11, v[68:70] offset:{SL}
    s_mov_b64 exec, -1
    """)
    keep(3)
    A(f"""
    s_waitcnt lgkmcnt(0)
    s_barrier
    ds_read_b32 v68, v12 offset:{ML}
    """)
    if fine == 1: stamp(3)
    Y = 32; PB = 48; ACC = 84
    for w in range(4):
        A(f"ds_read_b128 v[{Y+4*w}:{Y+4*w+3}], v10 offset:{SL+16*w}")
    rest = vreads[8:]
    for t, kb in rest: A(f"ds_read_b64_tr_b16 v[{vreg(t,kb)}:{vreg(t,kb)+1}], v20 offset:{8192*kb+1024*t}")
    keep(2)
    A(f"""
    v_or3_b32 v56, v156, v157, v158
    v_or_b32 v56, v56, v159
    v_mov_b32 v63, {TAG}
    v_readfirstlane_b32 s62, v56
    v_mov_b32 v67, {TAG}
    """)
    for c in range(2):
        A(f"s_waitcnt lgkmcnt({2-2*c+len(rest)})")
        a, b = Y + 8*c, Y + 8*c + 4
        A(f"""
        v_sub_f32 v{a+2}, v68, v{a+2}
        v_sub_f32 v{b+2}, v68, v{b+2}
        v_cvt_u32_f32 v{a+2}, v{a+2}
        v_cvt_u32_f32 v{b+2}, v{b+2}
        v_cvt_pk_u16_u32 v{a+2}, v{a+2}, v{b+2}
        v_pk_sub_u16 v{PB+4*c}, v{a}, v{a+2} op_sel_hi:[1,0] clamp
        v_pk_sub_u16 v{PB+4*c+1}, v{a+1}, v{a+2} op_sel_hi:[1,0] clamp
        v_pk_sub_u16 v{PB+4*c+2}, v{b}, v{a+2} op_sel:[0,1] clamp
        v_pk_sub_u16 v{PB+4*c+3}, v{b+1}, v{a+2} op_sel:[0,1] clamp
        """)
        if c == 1:
            A(f"v_mfma_f32_16x16x32_bf16 v[56:59], v[152:155], v[{PB}:{PB+3}], 0")
            A("s_cmp_eq_u32 s62, 0")
            A(f"v_mfma_f32_16x16x32_bf16 v[56:59], v[152:155], v[{PB+4}:{PB+7}], v[56:59]")
    def pv0(t): A(f"v_mfma_f32_16x16x32_bf16 v[{ACC+4*t}:{ACC+4*t+3}], v[{VF+4*t}:{VF+4*t+3}], v[{PB}:{PB+3}], 0")
    if not vsep:
        for t in range(4): pv0(t)
    A(f"""
    v_log_f32 v62, v56
    v_rcp_f32 v60, v56
    v_fmac_f32 v62, 0x3c000000, v68
    s_mov_b64 exec, 0x0101
    s_cbranch_scc0 L_lslow
    """)
    vw.op("L", "global_store_dwordx2 v13, v[62:63], s[28:29]")
    OG = 100; LG = 72
    A(f"""
L_ldone:
    s_mov_b64 exec, -1
    v_readlane_b32 s37, v62, s33
    """)
    stamp(5)
    def pv1(t): A(f"v_mfma_f32_16x16x32_bf16 v[{ACC+4*t}:{ACC+4*t+3}], v[{VF+16+4*t}:{VF+16+4*t+3}], v[{PB+4}:{PB+7}], v[{ACC+4*t}:{ACC+4*t+3}]")
    def fin_t(t):
        a = ACC + 4*t
        A(f"""
        v_pk_mul_f32 v[{a+2}:{a+3}], v[{a+2}:{a+3}], v[60:61] op_sel_hi:[1,0]
        v_pk_mul_f32 v[{a}:{a+1}], v[{a}:{a+1}], v[60:61] op_sel_hi:[1,0]
        v_perm_b32 v66, v{a+2}, v{a+3}, s52
        v_perm_b32 v64, v{a}, v{a+3}, s50
        v_perm_b32 v65, v{a+1}, v{a+3}, s51
        """)
    if vsep:
        A("s_barrier")
        for t in range(4):
            for kb in (0, 1): A(f"ds_read_b64_tr_b16 v[{vreg(t,kb)}:{vreg(t,kb)+1}], v20 offset:{8192*kb+1024*t}")
        for t in range(4):
            A(f"s_waitcnt lgkmcnt({lg(6-2*t)})"); pv0(t)
    A("s_barrier")
    for t in range(3):
        for kb in (2, 3): A(f"ds_read_b64_tr_b16 v[{vreg(t,kb)}:{vreg(t,kb)+1}], v20 offset:{8192*kb+1024*t}")
    for t in range(3):
        A(f"s_waitcnt lgkmcnt({lg(4-2*t)})"); pv1(t)
    for t in range(3):
        A("s_mov_b64 exec, s[46:47]" if t == 0 else "s_lshl_b64 exec, exec, 1"); fin_t(t)
    A("s_mov_b64 exec, -1\ns_lshl_b64 s[46:47], s[46:47], 3\ns_cmp_eq_u32 s62, 0\ns_barrier")
    for kb in (2, 3): A(f"ds_read_b64_tr_b16 v[{vreg(3,kb)}:{vreg(3,kb)+1}], v20 offset:{8192*kb+1024*3}")
    stamp(6)
    A("s_waitcnt lgkmcnt(0)"); pv1(3)
    A("s_mov_b64 exec, s[46:47]"); fin_t(3)
    A("s_mov_b64 exec, s[48:49]\ns_cbranch_scc0 L_oslow")
    vw.op("O", "global_store_dwordx4 v14, v[64:67], s[28:29]")
    A("L_odone:")
    if nWpre < 24: A("s_barrier")
    A("s_mov_b64 exec, -1")
    stamp(7)
    A(f"""
    s_cmp_lt_u32 s31, 28
    s_cbranch_scc1 L_gemv
    """)
    ms = ["s[40:41]", "s[42:43]", "s[56:57]", "s[58:59]"]
    def ocmp():
        for a in range(4): A(f"v_cmp_ne_u32 {ms[a]}, {TAG}, v{OG+4*a+3}")
    def oissue():
        for a in range(4):
            A(f"s_or_b64 exec, {ms[a]}, 1")
            A(f"global_load_dwordx4 v[{OG+4*a}:{OG+4*a+3}], v30, s[28:29] offset:{1024*a} sc1")
        A("s_mov_b64 exec, -1")
    def lissue():
        A(f"global_load_dwordx4 v[{LG}:{LG+3}], v26, s[28:29] sc1")
        A(f"global_load_dwordx4 v[{LG+4}:{LG+7}], v26, s[28:29] offset:16 sc1")
    lissue()
    for a in range(4): A(f"global_load_dwordx4 v[{OG+4*a}:{OG+4*a+3}], v30, s[28:29] offset:{1024*a} sc1")
    WG = 40
    A(f"""
    s_mov_b32 s45, 0
    s_mov_b32 s36, {f2u(wlim)}
    v_mov_b32 v59, {TAG}
    """)
    keep(6, 4)
    A(f"""
L_ochk:
    s_waitcnt vmcnt(4)
    v_xor_b32 v56, {TAG}, v{LG+1}
    v_xor_b32 v57, {TAG}, v{LG+3}
    v_xor_b32 v58, {TAG}, v{LG+5}
    v_or3_b32 v56, v56, v57, v58
    v_xor_b32 v57, {TAG}, v{LG+7}
    """)
    for a in range(4): A(f"v_subrev_f32 v{WG+2*a}, s37, v{LG+2*a}")
    A(f"""
    v_or_b32 v56, v56, v57
    v_max_f32 v58, v{WG}, v{WG+2}
    v_cmp_ne_u32 s[54:55], 0, v56
    v_max3_f32 v58, v{WG+4}, v{WG+6}, v58
    """)
    for a in range(4): A(f"v_exp_f32 v{WG+2*a}, v{WG+2*a}")
    A(f"""
    v_cmp_nge_f32 s[34:35], 64, v58
    s_waitcnt vmcnt(0)
    """.replace("64, v58", "s36, v58"))
    ocmp()
    for a in range(4): A(f"v_perm_b32 v{33+2*a}, v{OG+4*a}, v{OG+4*a+1}, s60")
    A(f"""
    v_add_f32 v56, v{WG}, v{WG+2}
    s_or_b64 vcc, {ms[0]}, {ms[1]}
    s_or_b64 s[54:55], s[54:55], {ms[2]}
    s_or_b64 vcc, vcc, {ms[3]}
    s_or_b64 vcc, vcc, s[54:55]
    s_cbranch_scc1 L_oretry
L_ook:
    s_cmp_eq_u64 s[34:35], 0
    s_cbranch_scc0 L_truemax
L_wok:
    """)
    stamp(9)
    A(f"v_add_f32 v57, v{WG+4}, v{WG+6}")
    for a in range(4): A(f"v_perm_b32 v{OG+4*a+3}, v{33+2*a}, v{OG+4*a+2}, s61")
    A(f"""
    v_add_f32 v56, v56, v57
    v_pk_mul_f32 v[60:61], v[{OG}:{OG+1}], v[{WG}:{WG+1}] op_sel_hi:[1,0]
    v_pk_mul_f32 v[62:63], v[{OG+2}:{OG+3}], v[{WG}:{WG+1}] op_sel_hi:[1,0]
    v_add_f32_dpp v56, v56, v56 row_ror:8 {DPP}
    """)
    den = [["v_mov_b32 v57, v56"], ["v_permlane16_swap_b32 v57, v56", "v_add_f32 v56, v56, v57", "v_add_f32 v57, v56, 0".replace("v_add_f32 v57, v56, 0", "v_mov_b32 v57, v56")], ["v_permlane32_swap_b32 v57, v56"]]
    A(den[0][0])
    for a in range(1, 4):
        A(f"v_pk_fma_f32 v[60:61], v[{OG+4*a}:{OG+4*a+1}], v[{WG+2*a}:{WG+2*a+1}], v[60:61] op_sel_hi:[1,0,1]")
        A(f"v_pk_fma_f32 v[62:63], v[{OG+4*a+2}:{OG+4*a+3}], v[{WG+2*a}:{WG+2*a+1}], v[62:63] op_sel_hi:[1,0,1]")
        if a < 3:
            for x in den[a]: A(x)
    A(f"""
    v_add_f32 v56, v56, v57
    s_cmp_eq_u32 s62, 0
    v_permlane32_swap_b32 v60, v62
    v_permlane32_swap_b32 v61, v63
    v_pk_add_f32 v[60:61], v[60:61], v[62:63]
    v_rcp_f32 v56, v56
    v_permlane16_swap_b32 v60, v61
    v_add_f32 v60, v60, v61
    v_add_f32_dpp v60, v60, v60 row_ror:8 {DPP}
    v_mul_f32 v61, v60, v56
    v_mul_f32 v60, v60, v56
    v_permlane16_swap_b32 v61, v60
    s_mov_b32 exec_lo, 0xff
    s_mov_b32 exec_hi, 0xff
    v_cvt_pk_bf16_f32 v58, v61, v60
    s_cbranch_scc0 L_fslow
    global_store_dwordx2 v28, v[58:59], s[28:29]
L_fdone:
    """)
    stamp(10)
    A("s_barrier")
    if oclean: A("s_mov_b64 exec, s[48:49]\nglobal_store_dwordx4 v14, v[64:67], s[28:29] sc1")
    finish()
    A("L_oretry:")
    lissue()
    oissue()
    keep(4, 4)
    A(f"""
    s_add_u32 s45, s45, 1
    s_cmp_ge_u32 s45, {spin}
    s_cbranch_scc0 L_ochk
    s_waitcnt vmcnt(0)
    s_branch L_ook
L_truemax:
    ; some split outweighs this workgroup's own by more than 2^24: take the true maximum as the reference
    v_max_f32 v56, v{LG}, v{LG+2}
    v_max3_f32 v56, v{LG+4}, v{LG+6}, v56
    v_max_f32_dpp v56, v56, v56 row_ror:8 {DPP}
    v_mov_b32 v57, v56
    v_permlane16_swap_b32 v57, v56
    v_max_f32 v56, v56, v57
    v_mov_b32 v57, v56
    v_permlane32_swap_b32 v57, v56
    v_max_f32 v56, v56, v57
    """)
    for a in range(4): A(f"v_sub_f32 v{WG+2*a}, v{LG+2*a}, v56")
    for a in range(4): A(f"v_exp_f32 v{WG+2*a}, v{WG+2*a}")
    A(f"""
    v_add_f32 v56, v{WG}, v{WG+2}
    s_branch L_wok
L_fslow:
    global_store_dwordx2 v28, v[58:59], s[28:29] sc1
    s_branch L_fdone
    """)
    A("L_gemv:")
    vw.wait("H")
    A("L_hchk:")
    tagcheck([75, 79], "L_hretry")
    A(f"""
L_hok:
    v_perm_b32 v75, v72, v73, s60
    v_perm_b32 v79, v76, v77, s60
    v_perm_b32 v75, v75, v74, s61
    v_perm_b32 v79, v79, v78, s61
    """)
    for r in range(4): A(f"v_add_f32 v{72+r}, v{72+r}, v{76+r}")
    for sh in (4, 8):
        for r in range(4): A(f"v_add_f32_dpp v{72+r}, v{72+r}, v{72+r} row_ror:{sh} {DPP}")
    def rnd():
        A("""
        v_cvt_pk_bf16_f32 v82, v72, v73
        v_cvt_pk_bf16_f32 v83, v74, v75
        v_lshlrev_b32 v72, 16, v82
        v_and_b32 v73, 0xffff0000, v82
        v_lshlrev_b32 v74, 16, v83
        v_and_b32 v75, 0xffff0000, v83
        """)
    rnd()
    A("""
    v_lshlrev_b32 v76, 16, v80
    v_and_b32 v77, 0xffff0000, v80
    v_lshlrev_b32 v78, 16, v81
    v_and_b32 v79, 0xffff0000, v81
    """)
    for r in range(4): A(f"v_add_f32 v{72+r}, v{72+r}, v{76+r}")
    rnd()
    c1 = -2 * LOG2E * 0.7978845608028654
    A(f"v_mov_b32 v80, {f2u(c1)}")
    for r in range(4): A(f"v_mul_f32 v{76+r}, v{72+r}, v{72+r}")
    for r in range(4): A(f"v_fmamk_f32 v{76+r}, v{76+r}, {f2u(c1*0.044715)}, v80")
    for r in range(4): A(f"v_mul_f32 v{76+r}, v{76+r}, v{72+r}")
    for r in range(4): A(f"v_exp_f32 v{76+r}, v{76+r}")
    for r in range(4): A(f"v_add_f32 v{76+r}, 1.0, v{76+r}")
    for r in range(4): A(f"v_rcp_f32 v{76+r}, v{76+r}")
    for r in range(4): A(f"v_mul_f32 v{76+r}, v{76+r}, v{72+r}")
    A(f"""
    v_cvt_pk_bf16_f32 v82, v76, v77
    v_cvt_pk_bf16_f32 v83, v78, v79
    v_and_b32 v82, s63, v82
    v_and_b32 v83, s63, v83
    s_barrier
    """)
    WF2 = 116
    for b in range(4): A(f"ds_read_b64_tr_b16 v[{WF2+2*b}:{WF2+2*b+1}], v24 offset:{W2L+2048*b}")
    for m in range(4):
        A(f"v_mov_b32_dpp v{72+2*m}, v82 row_newbcast:{m} {DPP}")
        A(f"v_mov_b32_dpp v{73+2*m}, v83 row_newbcast:{m} {DPP}")
    A(f"""
    s_waitcnt lgkmcnt(0)
    v_mfma_f32_16x16x32_bf16 v[48:51], v[{WF2}:{WF2+3}], v[72:75], 0
    v_mfma_f32_16x16x32_bf16 v[48:51], v[{WF2+4}:{WF2+7}], v[76:79], v[48:51]
    s_mov_b32 s45, 0
    v_mov_b32 v55, {TAG}
    s_barrier
    global_load_dwordx4 v[56:59], v28, s[28:29] sc1
    """)
    nb_early = max(0, (fpoll + 1 - 8) // 2)
    for b in range(nb_early): A(f"ds_read_b64_tr_b16 v[{WF2+8+2*b}:{WF2+9+2*b}], v24 offset:{WOL+2048*b}")
    A("s_barrier")
    for b in range(nb_early, 8): A(f"ds_read_b64_tr_b16 v[{WF2+8+2*b}:{WF2+9+2*b}], v24 offset:{WOL+2048*b}")
    stamp(8)
    FS = [56, 68, 100, 104][:fdepth]
    def fcheck(r, tgt, cond):
        A(f"""
        v_cmp_ne_u32 vcc, {TAG}, v{r+1}
        v_cmp_ne_u32 s[54:55], {TAG}, v{r+3}
        v_mov_b32 v108, v{r}
        v_mov_b32 v109, v{r+2}
        s_or_b64 vcc, vcc, s[54:55]
        s_cbranch_scc{cond} {tgt}
        """)
    A("s_waitcnt vmcnt(0)")
    fcheck(56, "L_fretry", 1)
    A("L_fok:")
    stamp(9)
    for kk in range(4):
        for h in range(2):
            A(f"v_mov_b64_dpp v[{84+4*kk+2*h}:{85+4*kk+2*h}], v[108:109] row_newbcast:{2*kk+h} {DPP}")
        if kk == 1: A("s_waitcnt lgkmcnt(0)")
        if kk >= 1: A(f"v_mfma_f32_16x16x32_bf16 v[48:51], v[{WF2+8+4*(kk-1)}:{WF2+11+4*(kk-1)}], v[{84+4*(kk-1)}:{87+4*(kk-1)}], v[48:51]")
    A(f"""
    v_mfma_f32_16x16x32_bf16 v[48:51], v[{WF2+20}:{WF2+23}], v[96:99], v[48:51]
    s_mov_b32 exec_lo, 0x00010001
    s_mov_b32 exec_hi, 0x00010001
    v_perm_b32 v52, v48, v51, s50
    v_perm_b32 v53, v49, v51, s51
    v_perm_b32 v54, v50, v51, s52
    global_store_dwordx4 v29, v[52:55], s[28:29] sc1
    """)
    if near: A("global_store_dwordx4 v30, v[52:55], s[28:29] sc1")
    if oclean: A("s_mov_b64 exec, s[48:49]\nglobal_store_dwordx4 v14, v[64:67], s[28:29] sc1")
    stamp(10)
    finish()
    A("L_fretry:")
    for r in FS[:-1]:
        A(f"global_load_dwordx4 v[{r}:{r+3}], v28, s[28:29] sc1")
        keep({2: 3, 3: 2, 4: 2}[fdepth], 8)
    A("L_floop:")
    for n, r in enumerate(FS):
        nx = FS[(n - 1) % fdepth]
        A(f"global_load_dwordx4 v[{nx}:{nx+3}], v28, s[28:29] sc1")
        keep({1: 6, 2: 3, 3: 2, 4: 2}[fdepth], 8)
        A(f"s_waitcnt vmcnt({fdepth-1})")
        fcheck(r, "L_fok", 0)
    A(f"s_add_u32 s45, s45, 1\ns_cmp_ge_u32 s45, {spin}\ns_cbranch_scc0 L_floop\ns_branch L_fok")
    A(f"""
L_hretry:
    s_add_u32 s45, s45, 1
    s_cmp_ge_u32 s45, {spin}
    s_cbranch_scc1 L_hok
    global_load_dwordx4 v[72:75], v26, s[28:29] sc1
    global_load_dwordx4 v[76:79], v27, s[28:29] sc1
    {"s_add_u32 s91, s91, 0x10000" if stamps else ""}
    s_waitcnt vmcnt(0)
    s_branch L_hchk
L_oslow:
    global_store_dwordx4 v14, v[64:67], s[28:29] sc1
    s_branch L_odone
L_lslow:
    global_store_dwordx2 v13, v[62:63], s[28:29] sc1
    s_branch L_ldone
L_qslow:
    ; valid when tag <= word < tag + 16 (the producer sits on another XCD)
    v_subrev_u32 v67, {TAG}, v67
    v_subrev_u32 v71, {TAG}, v71
    v_or_b32 v67, v67, v71
    v_cmp_lt_u32 vcc, 15, v67
    v_mov_b32 v67, 1
    s_cbranch_vccz L_qok
    s_add_u32 s45, s45, 1
    s_cmp_ge_u32 s45, {spin}
    s_cbranch_scc1 L_qok
    {"s_cmp_eq_u32 s45, 1" if qposB is not None else ""}
    {"s_cbranch_scc1 L_qsecond" if qposB is not None else ""}
    {"s_and_b32 s34, s45, 1" if qplain else ""}
    {"s_xor_b32 s34, s34, 1" if qplain else ""}
    {"s_lshl_b32 s34, s34, 16" if qplain else ""}
    {"v_and_b32 v18, 0xfffeffff, v18" if qplain else ""}
    {"v_and_b32 v19, 0xfffeffff, v19" if qplain else ""}
    {"v_or_b32 v18, s34, v18" if qplain else ""}
    {"v_or_b32 v19, s34, v19" if qplain else ""}
    global_load_dwordx4 v[64:67], v18, s[28:29] sc1
    global_load_dwordx4 v[68:71], v19, s[28:29] sc1
    {"s_add_u32 s91, s91, 1" if stamps else ""}
    s_waitcnt vmcnt(0)
    s_branch L_qchk
    """)
    if qposB is not None:
        A("L_qsecond:")
        if nqb: A(f"s_cmp_lt_u32 s31, 28\ns_cbranch_scc1 L_qw2\ns_waitcnt vmcnt(0)\nL_qw2:")
        A(f"s_waitcnt vmcnt({nqb})")
        if stamps: A("s_add_u32 s91, s91, 0x1000000")
        for e in range(4): A(f"v_mov_b64 v[{64+2*e}:{65+2*e}], v[{176+2*e}:{177+2*e}]")
        A("s_branch L_qchk")
    if stamps:
        A(f"""
L_stamps:
    s_memrealtime s[86:87]
    s_mov_b64 exec, -1
    s_waitcnt vmcnt(0)
    s_memrealtime s[88:89]
    s_waitcnt lgkmcnt(0)
    s_mul_i32 s35, s2, 5
    s_add_u32 s35, s35, s90
    s_lshl_b32 s35, s35, 6
    s_add_u32 s35, s35, {WS_ST}
    v_mov_b32 v2, s35
    """)
        for i in range(13):
            A(f"v_mov_b32 v3, s{64+2*i}")
            A(f"global_store_dword v2, v3, s[28:29] offset:{4*i}")
        A("v_mov_b32 v3, s45"); A("global_store_dword v2, v3, s[28:29] offset:52")
        A("v_mov_b32 v3, s91"); A("global_store_dword v2, v3, s[28:29] offset:56")
    if diag is not None:
        base, mult, idx = diag[:3]
        gsel, who = diag[3:] if len(diag) > 3 else (None, None)
        A(f"""
    s_waitcnt vmcnt(0) lgkmcnt(0)
    s_sub_u32 s34, s{64+2*idx}, s64
    s_cmp_eq_u32 s{64+2*idx}, 0
    s_cselect_b32 s34, 0, s34
    {f"s_cmp_eq_u32 s30, {gsel}" if gsel is not None else ""}
    {"s_cselect_b32 s34, s34, 0" if gsel is not None else ""}
    {"s_cmp_eq_u32 s90, 0" if who else ""}
    {("s_cselect_b32 s34, s34, 0" if who == "L" else "s_cselect_b32 s34, 0, s34") if who else ""}
    s_mul_i32 s34, s34, {mult}
    s_add_u32 s34, s34, {base}
L_diag:
    s_memrealtime s[36:37]
    s_waitcnt lgkmcnt(0)
    s_sub_u32 s36, s36, s64
    s_cmp_lt_u32 s36, s34
    s_cbranch_scc1 L_diag
    """)
    A("L_end:")
    A("s_endpgm")
    if stamps:
        idx = A.L.index("s_lshr_b32 s33, s31, 2                  ; cg")
        for i in range(1, 13): A.L.insert(idx, f"s_mov_b32 s{64+2*i}, 0")
        A.L.insert(idx, "s_mov_b32 s91, 0"); A.L.insert(idx, "s_mov_b32 s90, s3"); A.L.insert(idx, "s_mov_b32 s45, 0")
    nfix = A.check()
    head = f"""; fused layernorm + sliding-window GQA decode attention + GELU MLP, one persistent launch (256 workgroups)
; @launch grid=(256,1,1) block=(320,1,1) lds={LDS_TOTAL}
.amdgcn_target "amdgcn-amd-amdhsa--gfx950"
.text
.globl {NAME}_kernel
.p2align 12
.type {NAME}_kernel,@function
{NAME}_kernel:
"""
    tail = f""".fill 1024, 4, 0xbf800000
.section .rodata,"a"
.p2align 6
.amdhsa_kernel {NAME}_kernel
  .amdhsa_next_free_vgpr 184
  .amdhsa_next_free_sgpr 96
  .amdhsa_accum_offset 184
  .amdhsa_group_segment_fixed_size 0
  .amdhsa_kernarg_size 104
  .amdhsa_user_sgpr_count 2
  .amdhsa_user_sgpr_kernarg_segment_ptr 1
  .amdhsa_system_sgpr_workgroup_id_x 1
  .amdhsa_float_denorm_mode_32 3
.end_amdhsa_kernel
"""
    return head + A.text() + tail

if __name__ == "__main__":
    out = sys.argv[1]
    kw = {}
    for a in sys.argv[2:]:
        k, v = a.split("=", 1)
        kw[k] = eval(v)
    open(out, "w").write(gen(**kw))
```

```python
import sys, struct, copy
from asmlib import *

W1L = 0; WQL = 7168; XNL = 21504; QL = 22528; QHS = 576; SL = 23680; SHS = 384; ML = 24448; FLG = 24480
W2L = 24576; WOL = 32768; KL = 49152; VL = 81920; LDS_TOTAL = 114688
WS_Q = 0x60000; WS_H = 0x20000; WS_L = 0x30000; WS_F = 0x38000; WS_P = 0x40000; WS_O = 0x80000; WS_ST = 0x400000
LOG2E = 1.4426950408889634
def f2u(x): return "0x%08x" % struct.unpack("<I", struct.pack("<f", x))[0]

class VM:
    def __init__(self, A): self.A = A; self.ops = []; self.done = -1
    def op(self, name, text): self.A(text); self.ops.append(name)
    def idx(self, name): return max(i for i, n in enumerate(self.ops) if n == name)
    def wait(self, name):
        i = self.idx(name)
        if i <= self.done: return
        n = len(self.ops) - 1 - i; assert n <= 63, n
        self.A(f"s_waitcnt vmcnt({n})"); self.done = i
    def fork(self):
        o = VM(self.A); o.ops = list(self.ops); o.done = self.done; return o

def gen(nt_w="", nt_kv="", nt_l="", stamps=False, spin=1 << 15, win=32, win0=None, qpos=15, diag=None, force_sc1=False, fpoll=19,
        kxor=True, near=True, nprobe=2, pdepth=1, outsc="", fine=0, winW=None, fdepth=1, ka=0, oearly=True, osc1=False, nWpre=24, nWearly=0, cyc=False, oclean=False, bridge=16, r0=False, wlim=24.0, qtrig=None, nb2=0, trig2=True, qposB=None, qplain=False, cap=None, hpos="k", eearly=True, diag2=None):
    A = Asm()
    if win0 is None: win0 = win
    if winW is None: winW = win
    ntw = " " + nt_w if nt_w else ""; ntk = " " + nt_kv if nt_kv else ""; ntl = " " + nt_l if nt_l else ""
    def stamp(i, force=False):
        if fine == 2 and i in (3, 4, 5) and not force: return
        if stamps: A(f"{'s_memtime' if cyc else 's_memrealtime'} s[{64+2*i}:{65+2*i}]")
    lg = (lambda n: 0) if stamps else (lambda n: n)
    TAG = "s38"
    fin = "L_stamps" if stamps else "L_end"
    def finish():
        if stamps: A("s_branch L_stamps")
        else: A("s_endpgm")
    DPP = "row_mask:0xf bank_mask:0xf"
    KA32 = "v_mfma_f32_32x32x16_bf16 v[160:175], v[152:155], v[152:155], v[160:175]"
    def keep(n, bit=2):
        if ka & bit:
            for _ in range(n): A(KA32)
    def tagcheck(regs, fail):
        dst = ["vcc", "s[54:55]", "s[56:57]", "s[58:59]"]
        for r, d in zip(regs, dst): A(f"v_cmp_ne_u32 {d}, {TAG}, v{r}")
        if len(regs) == 4: A("s_or_b64 s[40:41], vcc, s[54:55]\ns_or_b64 s[34:35], s[56:57], s[58:59]\ns_or_b64 s[40:41], s[40:41], s[34:35]"); A(f"s_cbranch_scc1 {fail}")
        elif len(regs) == 2: A("s_or_b64 vcc, vcc, s[54:55]"); A(f"s_cbranch_scc1 {fail}")
        else: A(f"s_cbranch_vccnz {fail}")
    stamp(0)
    A(f"""
    s_load_dwordx16 s[4:19], s[0:1], 0      ; x k v wq wo Bx w1 b1
    s_load_dwordx8 s[20:27], s[0:1], 64     ; w2 b2 out dbg
    s_load_dwordx2 s[28:29], s[0:1], 96     ; ws
    s_cmp_ge_u32 s2, 256
    s_cbranch_scc1 L_end
    v_lshrrev_b32 v1, 6, v0
    v_and_b32 v0, 63, v0                    ; lane
    v_readfirstlane_b32 s3, v1              ; wave
    s_and_b32 s30, s2, 7                    ; g
    s_lshr_b32 s31, s2, 3                   ; j
    v_lshrrev_b32 v2, 4, v0                 ; s
    v_and_b32 v5, 7, v0
    v_lshrrev_b32 v7, 3, v0
    s_lshr_b32 s33, s31, 2                  ; cg
    s_min_u32 s35, s31, 27
    s_mul_i32 s32, s30, 28
    s_add_u32 s32, s32, s35                 ; u
    s_and_b32 s42, s32, 7                   ; r8
    s_lshr_b32 s43, s32, 3                  ; B
    s_and_b32 s32, s31, 3                   ; rg
    s_lshl2_add_u32 s44, s30, s32           ; 4g + rg
    s_cmp_eq_u32 s3, 0
    s_cbranch_scc1 L_loader
    s_getpc_b64 s[40:41]
    s_lshl_b32 s34, s31, 8
    v_lshl_add_u32 v3, v0, 2, s34
    global_load_dword v148, v3, s[40:41] offset:768    ; the 32 workgroups of an XCD pull the code into its L2
    v_lshlrev_b32 v3, 4, v0
    v_mov_b32 v140, 0
    v_mov_b32 v141, 0
    v_mov_b32 v142, 0
    v_mov_b32 v143, 0
    s_bfm_b64 exec, 56, 0
    s_waitcnt lgkmcnt(0)
    global_load_dwordx4 v[140:143], v3, s[4:5]
    {"s_load_dword s38, s[28:29], 0           ; epoch" if eearly else ""}
    s_mov_b64 exec, -1
    s_branch L_comp
    """)
    va = VM(A)
    A(f"""
L_loader:
    v_lshlrev_b32 v6, 1, v2
    v_xor_b32 v6, v5, v6
    v_lshlrev_b32 v6, 4, v6
    s_mul_i32 s34, s32, {112*8192}
    s_lshl_b32 s35, s30, 10
    s_add_u32 s34, s34, s35
    s_xor_b32 s35, s33, 4
    s_lshl_b32 s35, s35, 7
    s_add_u32 s34, s34, s35
    v_lshl_add_u32 v8, v7, 13, s34
    v_add_u32 v8, v8, v6                    ; wq voffset
    s_mul_i32 s34, s42, {56*3584}
    s_lshl_b32 s35, s43, 7
    s_add_u32 s34, s34, s35
    s_movk_i32 s35, 3584
    v_mad_u32_u24 v9, v7, s35, v6
    v_add_u32 v9, s34, v9                   ; w1 voffset
    s_lshl_b32 s34, s30, 22
    s_lshl_b32 s35, s31, 15
    s_add_u32 s34, s34, s35
    s_add_u32 s34, s34, 0x300000
    s_movk_i32 s35, {4096 + (512 if kxor else 0)}
    v_mad_u32_u24 v4, v7, s35, v6
    v_add_u32 v4, s34, v4
    s_mov_b32 s37, {65536-1024}
    s_movk_i32 s36, {28672-1024}
    s_movk_i32 s46, -896
    s_movk_i32 m0, {WQL}
    s_waitcnt lgkmcnt(0)
    """)
    seq = [f"wq{i}" for i in range(14)] + [f"w1{i}" for i in range(7)] + [f"K{i}" for i in range(32)] + [f"W{i}" for i in range(nWearly)] + [f"V{i}" for i in range(32)] + [f"W{i}" for i in range(nWearly, 24)]
    pos = {n: i for i, n in enumerate(seq)}
    def issue(vm, n):
        kind = n.rstrip("0123456789") if not n.startswith("w1") else "w1"
        i = int(n[len(kind):])
        if kind == "wq":
            vm.op(n, f"global_load_lds_dwordx4 v8, s[10:11] offset:{1024*(i&3)}{ntw}")
            if i == 13: pass
            elif i & 3 == 3: A("s_addk_i32 m0, 4096"); A(f"v_add_u32 v8, {65536+3072}, v8")
            else: A("v_add_u32 v8, s37, v8")
        elif kind == "w1":
            if i == 0: A(f"s_movk_i32 m0, {W1L}\ns_cmp_lt_u32 s31, 28\ns_cselect_b64 exec, -1, 1")
            vm.op(n, f"global_load_lds_dwordx4 v9, s[16:17] offset:{1024*(i&3)}{ntw}")
            if i == 6: A(f"s_mov_b64 exec, -1\ns_mov_b32 m0, {KL}\nv_mov_b32 v3, v4")
            elif i & 3 == 3: A("s_addk_i32 m0, 4096"); A(f"v_add_u32 v9, {28672+3072}, v9")
            else: A("v_add_u32 v9, s36, v9")
        elif kind == "V" and i >= 16:
            q, ii = (i - 16) >> 2, (i - 16) & 3
            vm.op(n, f"global_load_lds_dwordx4 v{10+ii}, s[8:9] offset:{128*q}{ntk}")
            if i < 31: A(f"s_addk_i32 m0, {4096 if ii < 3 else 896 - 3*4096}")
        elif kind in "KV":
            vm.op(n, f"global_load_lds_dwordx4 v3, {'s[6:7]' if kind == 'K' else 's[8:9]'} offset:{1024*(i&3)}{ntk}")
            if i & 3 == 3:
                A("s_addk_i32 m0, 4096")
                nx = ((i + 1) >> 2) & 7
                if n != "V15": A(f"v_xor_b32 v3, {nx << 9:#x}, v4" if nx else "v_mov_b32 v3, v4")
            else: A("v_add_u32 v3, s46, v3")
        else:
            reg, ptr = ("v8", "s[20:21]") if i < 8 else ("v9", "s[12:13]")
            if nWearly and i == 0: A(f"s_movk_i32 m0, {W2L}\ns_cmp_lt_u32 s31, 28\ns_cselect_b64 exec, -1, 1")
            vm.op(n, f"global_load_lds_dwordx4 {reg}, {ptr} offset:{1024*(i&3)}{ntl}")
            if i < 23:
                if i & 3 == 3: A("s_addk_i32 m0, 4096")
                if i < 7:
                    grow = lambda i: (32*(i&1) + 4*(i>>1)) * 896 - 1024*(i&3)
                    A(f"v_add_u32 {reg}, {(grow(i+1)-grow(i)) & 0xffffffff:#x}, {reg}")
                elif i > 7:
                    grow = lambda i: (64*((i>>1)&3) + 16*(i>>3) + 8*(i&1)) * 896 - 1024*(i&3)
                    A(f"v_add_u32 {reg}, {(grow(i-7)-grow(i-8)) & 0xffffffff:#x}, {reg}")
            if i == nWearly - 1: A(f"s_mov_b64 exec, -1\ns_mov_b32 m0, {VL}")
    assert win0 >= 21
    assert nWearly == 0 and -1 <= qpos <= 27
    qidx = pos["V0"] + qpos
    vsep = qpos < 15
    acts = []
    tprev = -1
    for k, n in enumerate(seq):
        t = -1 if k < win0 else k - (winW if k > pos["V31"] else win)
        t = max(t, tprev); tprev = t
        if n[0] == "W" and int(n[1:]) >= nWpre:
            tprev = pos["V31"]; acts.append((tprev, 5, k, "issue", n)); continue
        if nWpre < 24 and k > pos["V31"]: assert t <= pos["V31"]
        if cap is not None and k > cap and t <= 20:
            tprev = 20; acts.append((20, 1.5, k, "issue", n)); continue
        acts.append((t, 0, k, "issue", n))
        if k == qidx:
            tprev = max(t, 20, qtrig if qtrig is not None else 0); acts.append((tprev, 2, k, "bar", "trig"))
        if qposB is not None and k == pos["V0"] + qposB: acts.append((t, 3, k + 0.5, "bar", "trigB"))
        if k == win0 - 1: acts.append((t, 0, k + 0.5, "setup", None))
    evs = [(13, "wq"), (20, "w1"), (52, "k"), (qidx, "b1"), (qidx, "b2")] + ([(pos["V15"], "v1")] if vsep else []) + [(pos["V27"], "v3"), (pos["V31"], "v")]
    for e, (t, nm) in enumerate(evs): acts.append((t, 1, e, "bar", nm))
    for e, (n, nm) in enumerate((("W7", "w2"), (f"W{fpoll}", "pre"), ("W23", "wo"))): acts.append((max(pos[n], pos["V31"]), 6, e, "bar", nm))
    if nWpre < 24: acts.append((pos["V31"], 4, 0, "bar", "o"))
    tq = [a for a in acts if a[4] == "trig"][0]
    acts = [(a[0], 3, a[2], a[3], a[4]) if (a[3] == "issue" and a[0] == tq[0] and a[2] > tq[2]) else a for a in acts]
    acts.sort(key=lambda a: a[:3])
    ib2 = [n for n, a in enumerate(acts) if a[4] == "b2"][0]
    mv = [a for a in acts[ib2:] if a[3] == "issue" and a[1] == 0][:nb2]
    acts = acts[:ib2] + [(qidx,) + a[1:] for a in mv] + [a for a in acts[ib2:] if a not in mv]
    order = [a[4] for a in acts if a[3] == "bar"]
    nfirst = 4 if qposB is None else 5
    nsp = [0]
    def play(vm, a, comb):
        t, _, _, kind, arg = a
        if comb and (kind == "issue" or arg in ("w2", "pre", "wo")): return
        if kind == "bar" and (ka & 16) and arg in ("v3", "v", "pre", "wo") and vm.idx(seq[t]) > vm.done:
            n = len(vm.ops) - 1 - vm.idx(seq[t]); nsp[0] += 1
            A(f"""
L_sp{nsp[0]}:
            {KA32}
            s_getreg_b32 s40, hwreg(HW_REG_IB_STS)
            s_and_b32 s40, s40, 0xc0000f
            s_cmp_gt_u32 s40, {(n & 15) | ((n >> 4) << 22):#x}
            s_cbranch_scc1 L_sp{nsp[0]}
            """)
        if t >= 0: vm.wait(seq[t])
        if kind == "issue":
            issue(vm, arg)
            if arg == "W23": stamp(3)
        elif kind == "bar":
            if arg == "wq" and fine == 2: stamp(4, True)
            if arg == "w1" and fine == 2: stamp(5, True)
            if arg == "v": stamp(6)
            if arg == "wo": stamp(8)
            A("s_barrier")
            if arg == "trig" and trig2: A("s_barrier")
            if (ka & 16) and arg in ("v", "wo"):
                for e in range(bridge): A("v_mov_b32 v14, v0")
        else:
            A(f"""
            s_load_dword s38, s[28:29], 0
            s_lshr_b32 s34, s30, 1
            s_mul_i32 s34, s34, 7
            s_and_b32 s35, s30, 1
            s_lshl2_add_u32 s35, s35, s32
            s_min_u32 s35, s35, 6
            s_add_u32 s34, s34, s35                 ; B2
            s_min_u32 s36, s33, 6
            s_lshl_b32 s36, s36, 7
            v_mul_u32_u24 v9, 896, v7
            v_add3_u32 v9, v9, v6, s36
            s_mul_i32 s34, s34, {64*896}
            v_lshrrev_b32 v8, 5, v0
            v_mul_u32_u24 v8, {12*896}, v8
            v_add3_u32 v8, v8, v9, s34              ; w2 voffset: LDS row 16m+4s+r holds unit 16s+4m+r
            s_lshr_b32 s34, s44, 1
            s_lshl_b32 s34, s34, 3
            s_and_b32 s35, s32, 1
            s_add_u32 s34, s34, s35
            s_mul_i32 s34, s34, {32*896}
            v_add_u32 v9, s34, v9                   ; wo voffset: LDS row 64a+16t+c holds dim 64t + 32*(rg&1) + 16a + c
            v_xor_b32 v10, 0x800, v4
            v_xor_b32 v11, 0xa00, v4
            v_xor_b32 v12, 0xc00, v4
            v_xor_b32 v13, 0xe00, v4
            v_mov_b32 v152, 0
            v_mov_b32 v153, 0
            v_mov_b32 v154, 0
            v_mov_b32 v155, 0
            """)
            stamp(1)
    split = [n for n, a in enumerate(acts) if a[4] == "V31"][0] + 1
    for a in acts[:split]: play(va, a, False)
    stamp(2)
    assert nWearly % 4 == 0
    A(f"s_mov_b32 m0, {W2L + 1024*nWearly}\ns_cmp_lt_u32 s31, 28\ns_cbranch_scc0 L_cload")
    vc = va.fork()
    for a in acts[split:]: play(va, a, False)
    finish()
    G = 32
    A(f"""
L_cload:
    s_min_u32 s34, s44, 27                  ; tile
    s_lshr_b32 s35, s34, 2
    s_lshl_b32 s35, s35, 14
    s_and_b32 s47, s34, 3
    s_lshl_b32 s47, s47, 11
    s_add_u32 s47, s47, s35
    s_add_u32 s47, s47, {WS_P}
    v_lshl_add_u32 v29, v0, 4, s47
    s_lshl_b32 s34, s34, 4
    v_and_b32 v16, 3, v0
    v_lshl_add_u32 v19, v16, 2, v2
    v_add_lshl_u32 v19, v19, s34, 1
    """)
    for a in acts[split:]: play(vc, a, True)
    A("global_load_ushort v30, v19, s[4:5]\nglobal_load_ushort v31, v19, s[22:23]")
    A(f"""
    s_cmp_lt_u32 s44, 28
    s_cbranch_scc0 {fin}
    s_mov_b32 s60, 0x0c0c0400
    s_mov_b32 s61, 0x0504000c
    s_mov_b32 s45, 0
    s_waitcnt lgkmcnt(0)
    s_mul_i32 s38, s38, 1664525
    s_add_u32 s38, s38, 1013904223          ; tag
    """)
    if near:
        A("s_add_u32 s48, s47, 0x2000\ns_mov_b32 s50, -1\ns_mov_b32 s51, -1")
        for r in range(nprobe):
            for c in range(2):
                A(f"""
                s_memtime s[52:53]
                s_load_dword s49, s[28:29], s{47+c} glc
                s_waitcnt lgkmcnt(0)
                s_memtime s[54:55]
                s_waitcnt lgkmcnt(0)
                s_sub_u32 s49, s54, s52
                s_min_u32 s{50+c}, s{50+c}, s49
                """)
        A("s_cmp_lt_u32 s51, s50\ns_cselect_b32 s49, 0x2000, 0\nv_add_u32 v29, s49, v29")
        if stamps: A("s_lshl_b32 s91, s51, 16\ns_add_u32 s91, s91, s50")
    A("""
    s_waitcnt vmcnt(0)
    v_lshlrev_b32 v30, 16, v30
    v_lshlrev_b32 v31, 16, v31
    v_add_f32 v30, v30, v31                 ; x + b2
    """)
    stamp(7)
    A("s_barrier")
    stamp(9)
    def pissue(k):
        A(f"global_load_dwordx4 v[{G+8*k}:{G+8*k+3}], v29, s[28:29] sc1")
        A(f"global_load_dwordx4 v[{G+8*k+4}:{G+8*k+7}], v29, s[28:29] offset:1024 sc1")
    A("L_ppoll:")
    pissue(0)
    A(f"""
    s_add_u32 s45, s45, 1
    s_cmp_ge_u32 s45, {spin}
    s_cbranch_scc1 L_pok
    s_waitcnt vmcnt(0)
    """)
    A(f"""
    v_cmp_ne_u32 vcc, {TAG}, v{G+3}
    v_cmp_ne_u32 s[54:55], {TAG}, v{G+7}
    v_perm_b32 v{G+3}, v{G}, v{G+1}, s60
    v_perm_b32 v{G+7}, v{G+4}, v{G+5}, s60
    v_perm_b32 v{G+3}, v{G+3}, v{G+2}, s61
    v_perm_b32 v{G+7}, v{G+7}, v{G+6}, s61
    v_pk_add_f32 v[{G}:{G+1}], v[{G}:{G+1}], v[{G+4}:{G+5}]
    v_pk_add_f32 v[{G+2}:{G+3}], v[{G+2}:{G+3}], v[{G+6}:{G+7}]
    s_or_b64 vcc, vcc, s[54:55]
    s_cbranch_scc1 L_ppoll
L_pok:
    """)
    stamp(10)
    A(f"""
    v_permlane32_swap_b32 v{G}, v{G+2}
    v_permlane32_swap_b32 v{G+1}, v{G+3}
    v_pk_add_f32 v[{G}:{G+1}], v[{G}:{G+1}], v[{G+2}:{G+3}]
    v_permlane16_swap_b32 v{G}, v{G+1}
    v_add_f32 v{G}, v{G}, v{G+1}
    """)
    for sh in (4, 8):
        A(f"v_add_f32_dpp v{G}, v{G}, v{G} row_ror:{sh} {DPP}")
    A(f"""
    s_mov_b32 exec_lo, 0x000f000f
    s_mov_b32 exec_hi, 0x000f000f
    v_add_f32 v{G}, v{G}, v30
    v_cvt_pk_bf16_f32 v{G}, v{G}, v{G}
    global_store_short v19, v{G}, s[24:25] {outsc}
    s_cmp_eq_u32 s44, 0
    s_cbranch_scc0 {fin}
    s_mov_b64 exec, 1
    v_mov_b32 v2, 0
    v_mov_b32 v63, s38
    global_store_dword v2, v63, s[28:29] {outsc}
    """)
    finish()
    A(f"""
L_comp:
    """)
    if fine == 2: stamp(3, True)
    A(f"""
    {"s_load_dword s38, s[28:29], 0           ; epoch" if not eearly else ""}
    s_sub_u32 s3, s3, 1                     ; w
    v_and_b32 v1, 15, v0                    ; n
    v_lshrrev_b32 v8, 3, v1                 ; head = n>>3
    v_and_b32 v16, 3, v0
    s_lshl_b32 s34, s30, 13
    s_xor_b32 s35, s33, 4
    s_lshl3_add_u32 s35, s32, s35
    s_lshl_b32 s35, s35, 8
    s_add_u32 s35, s34, s35
    s_lshl_b32 s36, s3, 6
    s_add_u32 s35, s35, s36
    s_add_u32 s35, s35, {WS_Q}
    v_lshl_add_u32 v30, v2, 4, s35
    s_mul_i32 s35, s42, 7168
    s_add_u32 s35, s35, s36
    s_lshl_b32 s36, s43, 8
    s_add_u32 s35, s35, s36
    s_add_u32 s35, s35, {WS_H}
    v_lshl_add_u32 v31, v2, 4, s35
    global_load_dword v148, v30, s[28:29]
    global_load_dword v148, v31, s[28:29]
    v_bfe_u32 v14, v0, 2, 3
    v_lshlrev_b32 v14, 7, v14
    v_and_b32 v15, 3, v7
    v_lshl_add_u32 v14, v15, 5, v14
    v_lshl_add_u32 v14, v16, 3, v14
    v_lshrrev_b32 v15, 5, v0
    s_lshl_b32 s36, s3, 5
    v_xor_b32 v24, s36, v14
    v_lshl_add_u32 v20, v15, 12, v24
    v_add_u32 v20, {VL}, v20
    v_lshl_add_u32 v24, v15, 10, v24
    s_mul_i32 s35, s32, 224
    v_lshl_add_u32 v28, v2, 3, s35
    s_mul_i32 s35, s42, 112
    v_lshl_add_u32 v29, v2, 3, s35
    s_mov_b32 s50, 0x07060503
    s_mov_b32 s51, 0x07060502
    s_mov_b32 s52, 0x07060501
    s_getreg_b32 s39, hwreg(HW_REG_XCC_ID, 0, 4)
    v_mov_b32 v46, 0
    v_mov_b32 v47, 0
    v_mov_b32 v78, 0
    v_mov_b32 v79, 0
    v_mov_b32 v54, 0
    v_mov_b32 v55, 0
    s_mov_b32 s37, 0
    v_mov_b32 v6, 0
    v_mov_b32 v26, 0
    v_mov_b32 v27, 0
    s_cmp_eq_u32 s3, 0
    s_cbranch_scc0 L_noln
    """)
    if fine == 2: stamp(4, True)
    A("s_waitcnt vmcnt(2)")
    if fine == 2: stamp(5, True)
    X = 32
    for i in range(4):
        A(f"v_lshlrev_b32 v{X+2*i}, 16, v{140+i}")
        A(f"v_and_b32 v{X+1+2*i}, 0xffff0000, v{140+i}")
    def allreduce_add(r, t):
        for sh in (1, 2, 4, 8):
            A(f"v_add_f32_dpp v{r}, v{r}, v{r} row_ror:{sh} {DPP}")
        A(f"v_mov_b32 v{t}, v{r}")
        A(f"v_permlane16_swap_b32 v{t}, v{r}")
        A(f"v_add_f32 v{r}, v{r}, v{t}")
        A(f"v_mov_b32 v{t}, v{r}")
        A(f"v_permlane32_swap_b32 v{t}, v{r}")
        A(f"v_add_f32 v{r}, v{r}, v{t}")
    A(f"v_add_f32 v40, v{X}, v{X+1}")
    for i in range(2, 8): A(f"v_add_f32 v40, v40, v{X+i}")
    allreduce_add(40, 41)
    A(f"""
    v_mul_f32 v40, {f2u(1/448)}, v40        ; mean
    v_mov_b32 v42, 0
    s_bfm_b64 exec, 56, 0
    """)
    for i in range(8):
        A(f"v_sub_f32 v43, v{X+i}, v40")
        A("v_fmac_f32 v42, v43, v43")
    A("s_mov_b64 exec, -1")
    allreduce_add(42, 41)
    A(f"""
    v_mul_f32 v42, {f2u(1/448)}, v42        ; var
    v_cvt_pk_bf16_f32 v40, v40, v42
    v_and_b32 v42, 0xffff0000, v40          ; bf16(var)
    v_lshlrev_b32 v40, 16, v40              ; bf16(mean)
    v_add_f32 v42, {f2u(1e-5)}, v42
    v_cvt_pk_bf16_f32 v42, v42, v42
    v_lshlrev_b32 v42, 16, v42
    v_sqrt_f32 v42, v42
    v_cvt_pk_bf16_f32 v42, v42, v42
    v_lshlrev_b32 v42, 16, v42
    v_rcp_f32 v42, v42
    """)
    for i in range(8): A(f"v_sub_f32 v{X+i}, v{X+i}, v40")
    for i in range(4): A(f"v_cvt_pk_bf16_f32 v{56+i}, v{X+2*i}, v{X+1+2*i}")
    for i in range(4):
        A(f"v_lshlrev_b32 v{X+2*i}, 16, v{56+i}")
        A(f"v_and_b32 v{X+1+2*i}, 0xffff0000, v{56+i}")
    for i in range(8): A(f"v_mul_f32 v{X+i}, v{X+i}, v42")
    for i in range(4): A(f"v_cvt_pk_bf16_f32 v{56+i}, v{X+2*i}, v{X+1+2*i}")
    A(f"""
    ds_write_b128 v3, v[56:59] offset:{XNL}
L_noln:
    s_waitcnt lgkmcnt(0)
    s_mul_i32 s38, s38, 1664525
    s_add_u32 s38, s38, 1013904223          ; tag
    s_add_u32 s39, s39, s38
    """)
    stamp(1)
    assert order[:2] == ["wq", "w1"] and sorted(order[2:nfirst]) == ["k", "trig", "trigB"][:nfirst-2] and [o for o in order[nfirst:] if o not in ("o", "v1")] == ["b1", "b2", "v3", "v", "w2", "pre", "wo"], order
    A("s_barrier")
    XQ = 32; XH = 48; WF = 64
    for b in range(7):
        A(f"ds_read_b64 v[{XQ+2*b}:{XQ+2*b+1}], v28 offset:{XNL+32*b}")
        A(f"ds_read_b64_tr_b16 v[{WF+2*b}:{WF+2*b+1}], v24 offset:{WQL+2048*b}")
    A("v_mov_b32 v63, s39")
    for kk in range(4):
        A(f"s_waitcnt lgkmcnt({lg(max(0, 14-4*(kk+1)))})")
        c = "0" if kk == 0 else "v[56:59]"
        A(f"v_mfma_f32_16x16x32_bf16 v[56:59], v[{WF+4*kk}:{WF+4*kk+3}], v[{XQ+4*kk}:{XQ+4*kk+3}], {c}")
    for b in range(3): A(f"ds_read_b64 v[{XH+2*b}:{XH+2*b+1}], v29 offset:{XNL+32*b}")
    A(f"""
    s_mov_b32 exec_hi, 0
    ds_read_b64 v[{XH+6}:{XH+7}], v29 offset:{XNL+96}
    s_mov_b32 exec_lo, 0x00010001
    s_mov_b32 exec_hi, 0x00010001
    v_perm_b32 v60, v56, v59, s50
    v_perm_b32 v61, v57, v59, s51
    v_perm_b32 v62, v58, v59, s52
    """)
    if qplain:
        A("global_store_dwordx4 v30, v[60:63], s[28:29]\nv_add_u32 v30, 0x10000, v30")
    A("""
    global_store_dwordx4 v30, v[60:63], s[28:29] sc1
    s_mov_b64 exec, -1
    """)
    stamp(2)
    A(f"""
    s_cmp_lt_u32 s31, 28
    s_barrier
    s_cbranch_scc0 L_noh
    """)
    for b in range(4): A(f"ds_read_b64_tr_b16 v[{WF+2*b}:{WF+2*b+1}], v24 offset:{W1L+2048*b}")
    A(f"""
    v_mov_b32 v63, s38
    s_waitcnt lgkmcnt({lg(2)})
    v_mfma_f32_16x16x32_bf16 v[56:59], v[{WF}:{WF+3}], v[{XH}:{XH+3}], 0
    s_waitcnt lgkmcnt(0)
    v_mfma_f32_16x16x32_bf16 v[56:59], v[{WF+4}:{WF+7}], v[{XH+4}:{XH+7}], v[56:59]
    s_mov_b32 exec_lo, 0x00010001
    s_mov_b32 exec_hi, 0x00010001
    v_perm_b32 v60, v56, v59, s50
    v_perm_b32 v61, v57, v59, s51
    v_perm_b32 v62, v58, v59, s52
    global_store_dwordx4 v31, v[60:63], s[28:29] sc1
    s_mov_b64 exec, -1
    s_branch L_hdone
L_noh:
    s_lshl_b32 s36, s30, 11
    s_and_b32 s35, s32, 1
    s_lshl_b32 s35, s35, 10
    s_add_u32 s36, s36, s35
    s_lshr_b32 s35, s3, 1
    s_lshl_b32 s35, s35, 9
    s_add_u32 s36, s36, s35
    s_lshr_b32 s35, s32, 1
    s_lshl_b32 s35, s35, 8
    s_add_u32 s36, s36, s35
    s_add_u32 s37, s36, {WS_L}
    v_lshl_add_u32 v26, v7, 5, s37          ; L poll
    s_lshl2_add_u32 s36, s44, s3
    s_lshl_b32 s35, s36, 12
    s_add_u32 s35, s35, {WS_O}
    v_lshl_add_u32 v30, v0, 4, s35          ; O gather
    s_lshl_b32 s35, s36, 7
    s_add_u32 s35, s35, {WS_F}
    v_lshl_add_u32 v28, v5, 4, s35
    v_lshl_add_u32 v28, v15, 3, v28         ; F store
    global_load_dword v148, v26, s[28:29]
    global_load_dword v148, v28, s[28:29]
    s_min_u32 s36, s44, 27
    s_lshr_b32 s35, s36, 2
    s_lshl_b32 s35, s35, 14
    s_and_b32 s40, s36, 3
    s_lshl_b32 s40, s40, 11
    s_add_u32 s35, s35, s40
    s_lshl_b32 s40, s3, 9
    s_add_u32 s35, s35, s40
    s_add_u32 s37, s35, {WS_P}
    s_lshl_b32 s36, s36, 5
    s_lshr_b32 s33, s32, 1
    s_lshl_b32 s33, s33, 3
    s_load_dword s41, s[22:23], s36
    s_load_dword s41, s[24:25], s36
    """)
    for e in range(8): A(f"s_load_dword s41, s[28:29], s37 offset:{64*e}")
    A(f"""
L_hdone:
    s_lshl_b32 s35, s3, 9
    s_add_u32 s34, s34, s35
    s_add_u32 s34, s34, {WS_Q}
    v_and_b32 v10, 31, v0
    v_lshl_add_u32 v18, v15, 11, s34
    v_lshl_add_u32 v18, v10, 4, v18
    v_add_u32 v19, 0x1000, v18
    s_lshl_b32 s34, s30, 16
    s_lshl_b32 s35, s3, 13
    s_add_u32 s35, s35, s34
    s_lshl_b32 s36, s31, 7
    s_add_u32 s35, s35, s36
    s_add_u32 s35, s35, {WS_O}
    v_lshl_add_u32 v14, v8, 15, s35
    v_lshl_add_u32 v14, v15, 12, v14
    v_and_b32 v9, 1, v2
    v_lshl_add_u32 v14, v9, 6, v14
    v_lshl_add_u32 v14, v16, 4, v14
    global_load_dword v148, v14, s[28:29]
    """)
    def setup2():
        A(f"""
    s_lshr_b32 s34, s3, 1
    s_mul_i32 s34, s34, {QHS}
    s_and_b32 s35, s3, 1
    s_lshl_b32 s35, s35, 8
    s_add_u32 s34, s34, s35
    v_lshl_add_u32 v10, v10, 3, s34
    v_lshl_add_u32 v17, v15, 2, v10
    v_mul_u32_u24 v9, {QHS}, v8
    v_lshl_add_u32 v9, v2, 4, v9
    v_mul_u32_u24 v10, {SHS}, v8
    v_lshl_add_u32 v10, v2, 6, v10
    s_lshl_b32 s36, s3, 4
    v_add_u32 v11, s36, v10
    v_lshlrev_b32 v12, 2, v8                ; max slot addr
    v_mov_b32 v13, 0xff800000
    ds_write_b32 v12, v13 offset:{ML}
    s_lshl_b32 s36, s3, 2
    v_mov_b32 v25, s36
    s_lshl_b32 s36, s3, 13
    s_add_u32 s36, s36, {KL}
    v_lshl_add_u32 v3, v8, 12, s36
    v_lshl_add_u32 v3, v5, 7, v3
    v_and_b32 v4, 6, v0
    v_xor_b32 v4, v4, v2
    v_lshl_add_u32 v3, v4, 4, v3
    v_xor_b32 v4, 64, v3
    s_lshl_b32 s34, s30, 11
    s_lshl_b32 s35, s3, 9
    s_add_u32 s34, s34, s35
    s_and_b32 s35, s31, 7
    s_lshl_b32 s35, s35, 5
    s_add_u32 s34, s34, s35
    s_and_b32 s35, s31, 24
    s_add_u32 s34, s34, s35
    s_add_u32 s34, s34, {WS_L}
    v_lshl_add_u32 v13, v8, 8, s34
    s_mov_b32 s46, 0x01010101
    s_mov_b32 s47, s46
    s_mov_b32 s48, 0x0f0f0f0f
    s_mov_b32 s49, s48
    s_mov_b32 s53, {f2u(LOG2E/16)}
    s_mov_b32 s60, 0x0c0c0400
    s_mov_b32 s61, 0x0504000c
    s_mov_b32 s45, 0
    v_mov_b32 v152, 0x3f803f80
    v_mov_b32 v153, v152
    v_mov_b32 v154, v152
    v_mov_b32 v155, v152
    s_cmp_lt_u32 s31, 28
    s_cbranch_scc1 L_gsetup
    """)
        for e in range(8): A(f"s_load_dword s41, s[28:29], s37 offset:{8192+64*e}")
        A(f"""
    s_branch L_sdone
L_gsetup:
    s_lshr_b32 s34, s30, 1
    s_mul_i32 s34, s34, 7
    s_and_b32 s35, s30, 1
    s_lshl2_add_u32 s35, s35, s32           ; 4*(g&1) + rg
    s_cmp_eq_u32 s35, 7
    s_cselect_b32 s63, 0, -1                ; no hidden block for this workgroup -> h = 0
    s_min_u32 s35, s35, 6
    s_add_u32 s34, s34, s35                 ; B2
    s_lshl_b32 s35, s34, 8
    s_add_u32 s35, s35, {WS_H}
    v_lshrrev_b32 v26, 2, v1
    v_mul_u32_u24 v26, 7168, v26
    v_lshl_add_u32 v26, v2, 6, v26
    v_lshl_add_u32 v26, v16, 4, v26
    v_add_u32 v26, s35, v26                 ; H poll a=0
    v_add_u32 v27, {4*7168}, v26            ; H poll a=1
    s_lshl_b32 s35, s34, 7
    v_lshl_add_u32 v6, v16, 3, s35
    v_lshl_add_u32 v6, v2, 5, v6            ; b1 offset: unit 64*B2 + 16s + 4*(n&3)
    s_lshl_b32 s35, s44, 9
    s_add_u32 s35, s35, {WS_F}
    v_bfe_u32 v28, v0, 2, 1
    v_lshl_add_u32 v28, v28, 8, s35
    v_lshl_add_u32 v28, v2, 6, v28
    v_lshl_add_u32 v28, v16, 4, v28
    s_lshl_b32 s35, s33, 14
    s_lshl_b32 s36, s3, 11
    s_add_u32 s35, s35, s36
    s_lshl_b32 s36, s44, 6
    s_add_u32 s35, s35, s36
    s_add_u32 s35, s35, {WS_P}
    v_lshl_add_u32 v29, v2, 4, s35
    v_add_u32 v30, 0x2000, v29
L_sdone:
    """)
    vw = VM(A)
    def hpolls():
        A("s_cmp_lt_u32 s31, 28\ns_cbranch_scc0 L_nohp")
        vw.op("H", "global_load_dwordx4 v[72:75], v26, s[28:29] sc1")
        vw.op("H", "global_load_dwordx4 v[76:79], v27, s[28:29] sc1")
        vw.op("H", "global_load_dwordx2 v[80:81], v6, s[18:19]")
        A("L_nohp:")
    for ev in order[2:nfirst]:
        if ev == "trig":
            A("s_barrier")
            vw.op("Q", "global_load_dwordx4 v[64:67], v18, s[28:29] sc1")
            vw.op("Q", "global_load_dwordx4 v[68:71], v19, s[28:29] sc1")
            if trig2: A("s_barrier")
            stamp(3)
        elif ev == "trigB":
            A("s_barrier")
            vw.op("QB", "global_load_dwordx4 v[176:179], v18, s[28:29] sc1")
            vw.op("QB", "global_load_dwordx4 v[180:183], v19, s[28:29] sc1")
        else:
            setup2()
            A("s_barrier")
            if hpos == "k": hpolls()
            for i in range(8): A(f"ds_read_b128 v[{32+4*i}:{35+4*i}], v{3+(i&1)} offset:{1024*(i>>1)}")
    nq = len(vw.ops) - 1 - vw.idx("Q")
    if ka & 1:
        A(f"""
        s_cmp_lt_u32 s31, 28
        s_cselect_b32 s34, {nq}, 0
        s_movk_i32 s35, 200
L_qspin:
        v_mfma_f32_32x32x16_bf16 v[160:175], v[152:155], v[152:155], v[160:175]
        s_sub_u32 s35, s35, 1
        s_cbranch_scc1 L_qspun
        s_getreg_b32 s36, hwreg(HW_REG_IB_STS, 0, 4)
        s_cmp_gt_u32 s36, s34
        s_cbranch_scc1 L_qspin
L_qspun:
        """)
    nqc = len([o for o in vw.ops[vw.idx("Q")+1:] if o != "H"])
    if nq != nqc:
        A(f"s_cmp_lt_u32 s31, 28\ns_cbranch_scc1 L_qw\ns_waitcnt vmcnt({nqc})\nL_qw:")
    vw.wait("Q")
    if qposB is not None: nqb = len(vw.ops) - 1 - vw.idx("QB")
    QF = 84; VF = 116
    vreg = lambda t, kb: VF + 16*(kb >> 1) + 4*t + 2*(kb & 1)
    A(f"""
L_qchk:
    v_cmp_ne_u32 vcc, s39, v67
    v_cmp_ne_u32 s[54:55], s39, v71
    v_perm_b32 v82, v64, v65, s60
    v_perm_b32 v83, v68, v69, s60
    v_perm_b32 v82, v82, v66, s61
    v_perm_b32 v83, v83, v70, s61
    s_or_b64 vcc, vcc, s[54:55]
    s_cbranch_scc1 L_qslow
    v_mov_b32 v67, {1 if force_sc1 else 0}
L_qok:
    """)
    stamp(4)
    A(f"""
    v_add_f32 v64, v64, v68
    v_add_f32 v66, v66, v70
    v_add_f32 v65, v65, v69
    v_add_f32 v82, v82, v83
    v_permlane32_swap_b32 v64, v66
    ds_write_b32 v25, v67 offset:{FLG}
    v_permlane32_swap_b32 v65, v82
    v_add_f32 v64, v64, v66
    v_add_f32 v65, v65, v82
    v_cvt_pk_bf16_f32 v64, v64, v65
    ds_write_b32 v17, v64 offset:{QL}
    v_mov_b32 v83, 0
    s_waitcnt lgkmcnt(0)
    s_barrier
    """)
    if fine == 1: stamp(1)
    for i in range(8):
        A(f"ds_read_b128 v[{QF+4*i}:{QF+4*i+3}], v9 offset:{QL+64*i}")
    if hpos == "b1": hpolls()
    vreads = [(t, kb) for kb in range(2) for t in range(4)]
    extra = 0
    for i in range(8):
        A(f"s_waitcnt lgkmcnt({7-i+extra})")
        A(f"v_mfma_f32_16x16x32_bf16 v[64:67], v[{32+4*i}:{35+4*i}], v[{QF+4*i}:{QF+4*i+3}], {'0' if i == 0 else 'v[64:67]'}")
        if 2 <= i < 6 and not vsep:
            for t, kb in vreads[2*i-4:2*i-2]: A(f"ds_read_b64_tr_b16 v[{vreg(t,kb)}:{vreg(t,kb)+1}], v20 offset:{8192*kb+1024*t}"); extra += 1
        if i == 6: A(f"ds_read_b128 v[156:159], v83 offset:{FLG}"); extra += 1
    if fine == 1: stamp(2)
    keep(1)
    A(f"""
    v_cvt_pk_bf16_f32 v68, v64, v65
    v_cvt_pk_bf16_f32 v69, v66, v67
    v_lshlrev_b32 v64, 16, v68
    v_and_b32 v65, 0xffff0000, v68
    v_lshlrev_b32 v66, 16, v69
    v_and_b32 v67, 0xffff0000, v69
    v_max_f32 v68, v64, v65
    v_max3_f32 v68, v66, v67, v68
    v_mul_f32 v68, s53, v68
    v_ceil_f32 v68, v68                     ; exponent reference of these four keys: ceil(max * log2e/16)
    v_fma_f32 v64, v64, s53, -v68
    v_fma_f32 v65, v65, s53, -v68
    v_fma_f32 v66, v66, s53, -v68
    v_fma_f32 v67, v67, s53, -v68
    v_mul_f32 v70, 0x43000000, v68
    s_mov_b64 exec, s[46:47]
    ds_max_f32 v12, v70 offset:{ML}
    v_exp_f32 v64, v64
    v_exp_f32 v65, v65
    v_exp_f32 v66, v66
    v_exp_f32 v67, v67
    v_cvt_pk_bf16_f32 v68, v64, v65
    v_cvt_pk_bf16_f32 v69, v66, v67
    ds_write_b96 v11, v[68:70] offset:{SL}
    s_mov_b64 exec, -1
    """)
    keep(3)
    A(f"""
    s_waitcnt lgkmcnt(0)
    s_barrier
    ds_read_b32 v68, v12 offset:{ML}
    """)
    if fine == 1: stamp(3)
    Y = 32; PB = 48; ACC = 84
    for w in range(4):
        A(f"ds_read_b128 v[{Y+4*w}:{Y+4*w+3}], v10 offset:{SL+16*w}")
    rest = vreads[8:]
    for t, kb in rest: A(f"ds_read_b64_tr_b16 v[{vreg(t,kb)}:{vreg(t,kb)+1}], v20 offset:{8192*kb+1024*t}")
    keep(2)
    A(f"""
    v_or3_b32 v56, v156, v157, v158
    v_or_b32 v56, v56, v159
    v_mov_b32 v63, {TAG}
    v_readfirstlane_b32 s62, v56
    v_mov_b32 v67, {TAG}
    """)
    for c in range(2):
        A(f"s_waitcnt lgkmcnt({2-2*c+len(rest)})")
        a, b = Y + 8*c, Y + 8*c + 4
        A(f"""
        v_sub_f32 v{a+2}, v68, v{a+2}
        v_sub_f32 v{b+2}, v68, v{b+2}
        v_cvt_u32_f32 v{a+2}, v{a+2}
        v_cvt_u32_f32 v{b+2}, v{b+2}
        v_cvt_pk_u16_u32 v{a+2}, v{a+2}, v{b+2}
        v_pk_sub_u16 v{PB+4*c}, v{a}, v{a+2} op_sel_hi:[1,0] clamp
        v_pk_sub_u16 v{PB+4*c+1}, v{a+1}, v{a+2} op_sel_hi:[1,0] clamp
        v_pk_sub_u16 v{PB+4*c+2}, v{b}, v{a+2} op_sel:[0,1] clamp
        v_pk_sub_u16 v{PB+4*c+3}, v{b+1}, v{a+2} op_sel:[0,1] clamp
        """)
        if c == 1:
            A(f"v_mfma_f32_16x16x32_bf16 v[56:59], v[152:155], v[{PB}:{PB+3}], 0")
            A("s_cmp_eq_u32 s62, 0")
            A(f"v_mfma_f32_16x16x32_bf16 v[56:59], v[152:155], v[{PB+4}:{PB+7}], v[56:59]")
    def pv0(t): A(f"v_mfma_f32_16x16x32_bf16 v[{ACC+4*t}:{ACC+4*t+3}], v[{VF+4*t}:{VF+4*t+3}], v[{PB}:{PB+3}], 0")
    if not vsep:
        for t in range(4): pv0(t)
    A(f"""
    v_log_f32 v62, v56
    v_rcp_f32 v60, v56
    v_fmac_f32 v62, 0x3c000000, v68
    s_mov_b64 exec, 0x0101
    s_cbranch_scc0 L_lslow
    """)
    vw.op("L", "global_store_dwordx2 v13, v[62:63], s[28:29]")
    OG = 100; LG = 72
    A(f"""
L_ldone:
    s_mov_b64 exec, -1
    v_readlane_b32 s37, v62, s33
    """)
    stamp(5)
    def pv1(t): A(f"v_mfma_f32_16x16x32_bf16 v[{ACC+4*t}:{ACC+4*t+3}], v[{VF+16+4*t}:{VF+16+4*t+3}], v[{PB+4}:{PB+7}], v[{ACC+4*t}:{ACC+4*t+3}]")
    def fin_t(t):
        a = ACC + 4*t
        A(f"""
        v_pk_mul_f32 v[{a+2}:{a+3}], v[{a+2}:{a+3}], v[60:61] op_sel_hi:[1,0]
        v_pk_mul_f32 v[{a}:{a+1}], v[{a}:{a+1}], v[60:61] op_sel_hi:[1,0]
        v_perm_b32 v66, v{a+2}, v{a+3}, s52
        v_perm_b32 v64, v{a}, v{a+3}, s50
        v_perm_b32 v65, v{a+1}, v{a+3}, s51
        """)
    if vsep:
        A("s_barrier")
        for t in range(4):
            for kb in (0, 1): A(f"ds_read_b64_tr_b16 v[{vreg(t,kb)}:{vreg(t,kb)+1}], v20 offset:{8192*kb+1024*t}")
        for t in range(4):
            A(f"s_waitcnt lgkmcnt({lg(6-2*t)})"); pv0(t)
    A("s_barrier")
    for t in range(3):
        for kb in (2, 3): A(f"ds_read_b64_tr_b16 v[{vreg(t,kb)}:{vreg(t,kb)+1}], v20 offset:{8192*kb+1024*t}")
    for t in range(3):
        A(f"s_waitcnt lgkmcnt({lg(4-2*t)})"); pv1(t)
    for t in range(3):
        A("s_mov_b64 exec, s[46:47]" if t == 0 else "s_lshl_b64 exec, exec, 1"); fin_t(t)
    A("s_mov_b64 exec, -1\ns_lshl_b64 s[46:47], s[46:47], 3\ns_cmp_eq_u32 s62, 0\ns_barrier")
    for kb in (2, 3): A(f"ds_read_b64_tr_b16 v[{vreg(3,kb)}:{vreg(3,kb)+1}], v20 offset:{8192*kb+1024*3}")
    stamp(6)
    A("s_waitcnt lgkmcnt(0)"); pv1(3)
    A("s_mov_b64 exec, s[46:47]"); fin_t(3)
    A("s_mov_b64 exec, s[48:49]\ns_cbranch_scc0 L_oslow")
    vw.op("O", "global_store_dwordx4 v14, v[64:67], s[28:29]")
    A("L_odone:")
    if nWpre < 24: A("s_barrier")
    A("s_mov_b64 exec, -1")
    stamp(7)
    A(f"""
    s_cmp_lt_u32 s31, 28
    s_cbranch_scc1 L_gemv
    """)
    ms = ["s[40:41]", "s[42:43]", "s[56:57]", "s[58:59]"]
    def ocmp():
        for a in range(4): A(f"v_cmp_ne_u32 {ms[a]}, {TAG}, v{OG+4*a+3}")
    def oissue():
        for a in range(4):
            A(f"s_or_b64 exec, {ms[a]}, 1")
            A(f"global_load_dwordx4 v[{OG+4*a}:{OG+4*a+3}], v30, s[28:29] offset:{1024*a} sc1")
        A("s_mov_b64 exec, -1")
    def lissue():
        A(f"global_load_dwordx4 v[{LG}:{LG+3}], v26, s[28:29] sc1")
        A(f"global_load_dwordx4 v[{LG+4}:{LG+7}], v26, s[28:29] offset:16 sc1")
    lissue()
    for a in range(4): A(f"global_load_dwordx4 v[{OG+4*a}:{OG+4*a+3}], v30, s[28:29] offset:{1024*a} sc1")
    WG = 40
    A(f"""
    s_mov_b32 s45, 0
    s_mov_b32 s36, {f2u(wlim)}
    v_mov_b32 v59, {TAG}
    """)
    keep(6, 4)
    A(f"""
L_ochk:
    s_waitcnt vmcnt(4)
    v_xor_b32 v56, {TAG}, v{LG+1}
    v_xor_b32 v57, {TAG}, v{LG+3}
    v_xor_b32 v58, {TAG}, v{LG+5}
    v_or3_b32 v56, v56, v57, v58
    v_xor_b32 v57, {TAG}, v{LG+7}
    """)
    for a in range(4): A(f"v_subrev_f32 v{WG+2*a}, s37, v{LG+2*a}")
    A(f"""
    v_or_b32 v56, v56, v57
    v_max_f32 v58, v{WG}, v{WG+2}
    v_cmp_ne_u32 s[54:55], 0, v56
    v_max3_f32 v58, v{WG+4}, v{WG+6}, v58
    """)
    for a in range(4): A(f"v_exp_f32 v{WG+2*a}, v{WG+2*a}")
    A(f"""
    v_cmp_nge_f32 s[34:35], 64, v58
    s_waitcnt vmcnt(0)
    """.replace("64, v58", "s36, v58"))
    ocmp()
    for a in range(4): A(f"v_perm_b32 v{33+2*a}, v{OG+4*a}, v{OG+4*a+1}, s60")
    A(f"""
    v_add_f32 v56, v{WG}, v{WG+2}
    s_or_b64 vcc, {ms[0]}, {ms[1]}
    s_or_b64 s[54:55], s[54:55], {ms[2]}
    s_or_b64 vcc, vcc, {ms[3]}
    s_or_b64 vcc, vcc, s[54:55]
    s_cbranch_scc1 L_oretry
L_ook:
    s_cmp_eq_u64 s[34:35], 0
    s_cbranch_scc0 L_truemax
L_wok:
    """)
    stamp(9)
    A(f"v_add_f32 v57, v{WG+4}, v{WG+6}")
    for a in range(4): A(f"v_perm_b32 v{OG+4*a+3}, v{33+2*a}, v{OG+4*a+2}, s61")
    A(f"""
    v_add_f32 v56, v56, v57
    v_pk_mul_f32 v[60:61], v[{OG}:{OG+1}], v[{WG}:{WG+1}] op_sel_hi:[1,0]
    v_pk_mul_f32 v[62:63], v[{OG+2}:{OG+3}], v[{WG}:{WG+1}] op_sel_hi:[1,0]
    v_add_f32_dpp v56, v56, v56 row_ror:8 {DPP}
    """)
    den = [["v_mov_b32 v57, v56"], ["v_permlane16_swap_b32 v57, v56", "v_add_f32 v56, v56, v57", "v_add_f32 v57, v56, 0".replace("v_add_f32 v57, v56, 0", "v_mov_b32 v57, v56")], ["v_permlane32_swap_b32 v57, v56"]]
    A(den[0][0])
    for a in range(1, 4):
        A(f"v_pk_fma_f32 v[60:61], v[{OG+4*a}:{OG+4*a+1}], v[{WG+2*a}:{WG+2*a+1}], v[60:61] op_sel_hi:[1,0,1]")
        A(f"v_pk_fma_f32 v[62:63], v[{OG+4*a+2}:{OG+4*a+3}], v[{WG+2*a}:{WG+2*a+1}], v[62:63] op_sel_hi:[1,0,1]")
        if a < 3:
            for x in den[a]: A(x)
    A(f"""
    v_add_f32 v56, v56, v57
    s_cmp_eq_u32 s62, 0
    v_permlane32_swap_b32 v60, v62
    v_permlane32_swap_b32 v61, v63
    v_pk_add_f32 v[60:61], v[60:61], v[62:63]
    v_rcp_f32 v56, v56
    v_permlane16_swap_b32 v60, v61
    v_add_f32 v60, v60, v61
    v_add_f32_dpp v60, v60, v60 row_ror:8 {DPP}
    v_mul_f32 v61, v60, v56
    v_mul_f32 v60, v60, v56
    v_permlane16_swap_b32 v61, v60
    s_mov_b32 exec_lo, 0xff
    s_mov_b32 exec_hi, 0xff
    v_cvt_pk_bf16_f32 v58, v61, v60
    s_cbranch_scc0 L_fslow
    global_store_dwordx2 v28, v[58:59], s[28:29]
L_fdone:
    """)
    stamp(10)
    A("s_barrier")
    if oclean: A("s_mov_b64 exec, s[48:49]\nglobal_store_dwordx4 v14, v[64:67], s[28:29] sc1")
    finish()
    A("L_oretry:")
    lissue()
    oissue()
    keep(4, 4)
    A(f"""
    s_add_u32 s45, s45, 1
    s_cmp_ge_u32 s45, {spin}
    s_cbranch_scc0 L_ochk
    s_waitcnt vmcnt(0)
    s_branch L_ook
L_truemax:
    ; some split outweighs this workgroup's own by more than 2^24: take the true maximum as the reference
    v_max_f32 v56, v{LG}, v{LG+2}
    v_max3_f32 v56, v{LG+4}, v{LG+6}, v56
    v_max_f32_dpp v56, v56, v56 row_ror:8 {DPP}
    v_mov_b32 v57, v56
    v_permlane16_swap_b32 v57, v56
    v_max_f32 v56, v56, v57
    v_mov_b32 v57, v56
    v_permlane32_swap_b32 v57, v56
    v_max_f32 v56, v56, v57
    """)
    for a in range(4): A(f"v_sub_f32 v{WG+2*a}, v{LG+2*a}, v56")
    for a in range(4): A(f"v_exp_f32 v{WG+2*a}, v{WG+2*a}")
    A(f"""
    v_add_f32 v56, v{WG}, v{WG+2}
    s_branch L_wok
L_fslow:
    global_store_dwordx2 v28, v[58:59], s[28:29] sc1
    s_branch L_fdone
    """)
    A("L_gemv:")
    vw.wait("H")
    A("L_hchk:")
    tagcheck([75, 79], "L_hretry")
    A(f"""
L_hok:
    v_perm_b32 v75, v72, v73, s60
    v_perm_b32 v79, v76, v77, s60
    v_perm_b32 v75, v75, v74, s61
    v_perm_b32 v79, v79, v78, s61
    """)
    for r in range(4): A(f"v_add_f32 v{72+r}, v{72+r}, v{76+r}")
    for sh in (4, 8):
        for r in range(4): A(f"v_add_f32_dpp v{72+r}, v{72+r}, v{72+r} row_ror:{sh} {DPP}")
    def rnd():
        A("""
        v_cvt_pk_bf16_f32 v82, v72, v73
        v_cvt_pk_bf16_f32 v83, v74, v75
        v_lshlrev_b32 v72, 16, v82
        v_and_b32 v73, 0xffff0000, v82
        v_lshlrev_b32 v74, 16, v83
        v_and_b32 v75, 0xffff0000, v83
        """)
    rnd()
    A("""
    v_lshlrev_b32 v76, 16, v80
    v_and_b32 v77, 0xffff0000, v80
    v_lshlrev_b32 v78, 16, v81
    v_and_b32 v79, 0xffff0000, v81
    """)
    for r in range(4): A(f"v_add_f32 v{72+r}, v{72+r}, v{76+r}")
    rnd()
    c1 = -2 * LOG2E * 0.7978845608028654
    A(f"v_mov_b32 v80, {f2u(c1)}")
    for r in range(4): A(f"v_mul_f32 v{76+r}, v{72+r}, v{72+r}")
    for r in range(4): A(f"v_fmamk_f32 v{76+r}, v{76+r}, {f2u(c1*0.044715)}, v80")
    for r in range(4): A(f"v_mul_f32 v{76+r}, v{76+r}, v{72+r}")
    for r in range(4): A(f"v_exp_f32 v{76+r}, v{76+r}")
    for r in range(4): A(f"v_add_f32 v{76+r}, 1.0, v{76+r}")
    for r in range(4): A(f"v_rcp_f32 v{76+r}, v{76+r}")
    for r in range(4): A(f"v_mul_f32 v{76+r}, v{76+r}, v{72+r}")
    A(f"""
    v_cvt_pk_bf16_f32 v82, v76, v77
    v_cvt_pk_bf16_f32 v83, v78, v79
    v_and_b32 v82, s63, v82
    v_and_b32 v83, s63, v83
    s_barrier
    """)
    WF2 = 116
    for b in range(4): A(f"ds_read_b64_tr_b16 v[{WF2+2*b}:{WF2+2*b+1}], v24 offset:{W2L+2048*b}")
    for m in range(4):
        A(f"v_mov_b32_dpp v{72+2*m}, v82 row_newbcast:{m} {DPP}")
        A(f"v_mov_b32_dpp v{73+2*m}, v83 row_newbcast:{m} {DPP}")
    A(f"""
    s_waitcnt lgkmcnt(0)
    v_mfma_f32_16x16x32_bf16 v[48:51], v[{WF2}:{WF2+3}], v[72:75], 0
    v_mfma_f32_16x16x32_bf16 v[48:51], v[{WF2+4}:{WF2+7}], v[76:79], v[48:51]
    s_mov_b32 s45, 0
    v_mov_b32 v55, {TAG}
    s_barrier
    global_load_dwordx4 v[56:59], v28, s[28:29] sc1
    """)
    nb_early = max(0, (fpoll + 1 - 8) // 2)
    for b in range(nb_early): A(f"ds_read_b64_tr_b16 v[{WF2+8+2*b}:{WF2+9+2*b}], v24 offset:{WOL+2048*b}")
    A("s_barrier")
    for b in range(nb_early, 8): A(f"ds_read_b64_tr_b16 v[{WF2+8+2*b}:{WF2+9+2*b}], v24 offset:{WOL+2048*b}")
    stamp(8)
    FS = [56, 68, 100, 104][:fdepth]
    def fcheck(r, tgt, cond):
        A(f"""
        v_cmp_ne_u32 vcc, {TAG}, v{r+1}
        v_cmp_ne_u32 s[54:55], {TAG}, v{r+3}
        v_mov_b32 v108, v{r}
        v_mov_b32 v109, v{r+2}
        s_or_b64 vcc, vcc, s[54:55]
        s_cbranch_scc{cond} {tgt}
        """)
    A("s_waitcnt vmcnt(0)")
    fcheck(56, "L_fretry", 1)
    A("L_fok:")
    stamp(9)
    for kk in range(4):
        for h in range(2):
            A(f"v_mov_b64_dpp v[{84+4*kk+2*h}:{85+4*kk+2*h}], v[108:109] row_newbcast:{2*kk+h} {DPP}")
        if kk == 1: A("s_waitcnt lgkmcnt(0)")
        if kk >= 1: A(f"v_mfma_f32_16x16x32_bf16 v[48:51], v[{WF2+8+4*(kk-1)}:{WF2+11+4*(kk-1)}], v[{84+4*(kk-1)}:{87+4*(kk-1)}], v[48:51]")
    A(f"""
    v_mfma_f32_16x16x32_bf16 v[48:51], v[{WF2+20}:{WF2+23}], v[96:99], v[48:51]
    s_mov_b32 exec_lo, 0x00010001
    s_mov_b32 exec_hi, 0x00010001
    v_perm_b32 v52, v48, v51, s50
    v_perm_b32 v53, v49, v51, s51
    v_perm_b32 v54, v50, v51, s52
    global_store_dwordx4 v29, v[52:55], s[28:29] sc1
    """)
    if near: A("global_store_dwordx4 v30, v[52:55], s[28:29] sc1")
    if oclean: A("s_mov_b64 exec, s[48:49]\nglobal_store_dwordx4 v14, v[64:67], s[28:29] sc1")
    stamp(10)
    finish()
    A("L_fretry:")
    for r in FS[:-1]:
        A(f"global_load_dwordx4 v[{r}:{r+3}], v28, s[28:29] sc1")
        keep({2: 3, 3: 2, 4: 2}[fdepth], 8)
    A("L_floop:")
    for n, r in enumerate(FS):
        nx = FS[(n - 1) % fdepth]
        A(f"global_load_dwordx4 v[{nx}:{nx+3}], v28, s[28:29] sc1")
        keep({1: 6, 2: 3, 3: 2, 4: 2}[fdepth], 8)
        A(f"s_waitcnt vmcnt({fdepth-1})")
        fcheck(r, "L_fok", 0)
    A(f"s_add_u32 s45, s45, 1\ns_cmp_ge_u32 s45, {spin}\ns_cbranch_scc0 L_floop\ns_branch L_fok")
    A(f"""
L_hretry:
    s_add_u32 s45, s45, 1
    s_cmp_ge_u32 s45, {spin}
    s_cbranch_scc1 L_hok
    global_load_dwordx4 v[72:75], v26, s[28:29] sc1
    global_load_dwordx4 v[76:79], v27, s[28:29] sc1
    {"s_add_u32 s91, s91, 0x10000" if stamps else ""}
    s_waitcnt vmcnt(0)
    s_branch L_hchk
L_oslow:
    global_store_dwordx4 v14, v[64:67], s[28:29] sc1
    s_branch L_odone
L_lslow:
    global_store_dwordx2 v13, v[62:63], s[28:29] sc1
    s_branch L_ldone
L_qslow:
    ; valid when tag <= word < tag + 16 (the producer sits on another XCD)
    v_subrev_u32 v67, {TAG}, v67
    v_subrev_u32 v71, {TAG}, v71
    v_or_b32 v67, v67, v71
    v_cmp_lt_u32 vcc, 15, v67
    v_mov_b32 v67, 1
    s_cbranch_vccz L_qok
    s_add_u32 s45, s45, 1
    s_cmp_ge_u32 s45, {spin}
    s_cbranch_scc1 L_qok
    {"s_cmp_eq_u32 s45, 1" if qposB is not None else ""}
    {"s_cbranch_scc1 L_qsecond" if qposB is not None else ""}
    {"s_and_b32 s34, s45, 1" if qplain else ""}
    {"s_xor_b32 s34, s34, 1" if qplain else ""}
    {"s_lshl_b32 s34, s34, 16" if qplain else ""}
    {"v_and_b32 v18, 0xfffeffff, v18" if qplain else ""}
    {"v_and_b32 v19, 0xfffeffff, v19" if qplain else ""}
    {"v_or_b32 v18, s34, v18" if qplain else ""}
    {"v_or_b32 v19, s34, v19" if qplain else ""}
    global_load_dwordx4 v[64:67], v18, s[28:29] sc1
    global_load_dwordx4 v[68:71], v19, s[28:29] sc1
    {"s_add_u32 s91, s91, 1" if stamps else ""}
    s_waitcnt vmcnt(0)
    s_branch L_qchk
    """)
    if qposB is not None:
        A("L_qsecond:")
        if nqb: A(f"s_cmp_lt_u32 s31, 28\ns_cbranch_scc1 L_qw2\ns_waitcnt vmcnt(0)\nL_qw2:")
        A(f"s_waitcnt vmcnt({nqb})")
        if stamps: A("s_add_u32 s91, s91, 0x1000000")
        for e in range(4): A(f"v_mov_b64 v[{64+2*e}:{65+2*e}], v[{176+2*e}:{177+2*e}]")
        A("s_branch L_qchk")
    if stamps:
        A(f"""
L_stamps:
    s_memrealtime s[86:87]
    s_mov_b64 exec, -1
    s_waitcnt vmcnt(0)
    s_memrealtime s[88:89]
    s_waitcnt lgkmcnt(0)
    s_mul_i32 s35, s2, 5
    s_add_u32 s35, s35, s90
    s_lshl_b32 s35, s35, 6
    s_add_u32 s35, s35, {WS_ST}
    v_mov_b32 v2, s35
    """)
        for i in range(13):
            A(f"v_mov_b32 v3, s{64+2*i}")
            A(f"global_store_dword v2, v3, s[28:29] offset:{4*i}")
        A("v_mov_b32 v3, s45"); A("global_store_dword v2, v3, s[28:29] offset:52")
        A("v_mov_b32 v3, s91"); A("global_store_dword v2, v3, s[28:29] offset:56")
    if diag is not None:
        base, mult, idx = diag[:3]
        gsel, who = diag[3:] if len(diag) > 3 else (None, None)
        A(f"""
    s_waitcnt vmcnt(0) lgkmcnt(0)
    s_sub_u32 s34, s{64+2*idx}, s64
    s_cmp_eq_u32 s{64+2*idx}, 0
    s_cselect_b32 s34, 0, s34
    {f"s_cmp_eq_u32 s30, {gsel}" if gsel is not None else ""}
    {"s_cselect_b32 s34, s34, 0" if gsel is not None else ""}
    {"s_cmp_eq_u32 s90, 0" if who else ""}
    {("s_cselect_b32 s34, s34, 0" if who == "L" else "s_cselect_b32 s34, 0, s34") if who else ""}
    s_mul_i32 s34, s34, {mult}
    s_add_u32 s34, s34, {base}
L_diag:
    s_memrealtime s[36:37]
    s_waitcnt lgkmcnt(0)
    s_sub_u32 s36, s36, s64
    s_cmp_lt_u32 s36, s34
    s_cbranch_scc1 L_diag
    """)
    if diag2 is not None:
        a, idx = diag2
        A(f"""
    s_add_u32 s34, s31, s90
    s_cmp_eq_u32 s34, 0
    s_cbranch_scc0 L_end
    s_lshl_b32 s34, s30, 7
    s_add_u32 s34, s34, 0x500000
    v_mov_b32 v2, s34
    v_mov_b32 v4, s64
    v_mov_b32 v5, s{64+2*idx}
    global_store_dwordx2 v2, v[4:5], s[28:29] sc1
    s_cmp_eq_u32 s30, 0
    s_cbranch_scc0 L_end
L_d2a:
    s_memrealtime s[36:37]
    s_waitcnt lgkmcnt(0)
    s_sub_u32 s36, s36, s64
    s_cmp_lt_u32 s36, 1200
    s_cbranch_scc1 L_d2a
    s_mov_b32 s34, 0x500000
    """)
        for x in range(8): A(f"s_load_dwordx2 s[{40+2*x}:{41+2*x}], s[28:29], s34 offset:{128*x} glc\ns_waitcnt lgkmcnt(0)")
        A("s_mov_b32 s35, s40")
        for x in range(1, 8): A(f"s_min_u32 s35, s35, s{40+2*x}")
        if a == "max":
            A("s_mov_b32 s34, s41")
            for x in range(1, 8): A(f"s_max_u32 s34, s34, s{41+2*x}")
        else: A(f"s_mov_b32 s34, s{41+2*a}")
        A(f"""
    s_sub_u32 s34, s34, s35
    s_mul_i32 s34, s34, 40
    s_add_u32 s34, s34, 2000
L_d2b:
    s_memrealtime s[36:37]
    s_waitcnt lgkmcnt(0)
    s_sub_u32 s36, s36, s64
    s_cmp_lt_u32 s36, s34
    s_cbranch_scc1 L_d2b
    """)
    A("L_end:")
    A("s_endpgm")
    if stamps:
        idx = A.L.index("s_lshr_b32 s33, s31, 2                  ; cg")
        for i in range(1, 13): A.L.insert(idx, f"s_mov_b32 s{64+2*i}, 0")
        A.L.insert(idx, "s_mov_b32 s91, 0"); A.L.insert(idx, "s_mov_b32 s90, s3"); A.L.insert(idx, "s_mov_b32 s45, 0")
    nfix = A.check()
    head = f"""; fused layernorm + sliding-window GQA decode attention + GELU MLP, one persistent launch (256 workgroups)
; @launch grid=(256,1,1) block=(320,1,1) lds={LDS_TOTAL}
.amdgcn_target "amdgcn-amd-amdhsa--gfx950"
.text
.globl {NAME}_kernel
.p2align 12
.type {NAME}_kernel,@function
{NAME}_kernel:
"""
    tail = f""".fill 1024, 4, 0xbf800000
.section .rodata,"a"
.p2align 6
.amdhsa_kernel {NAME}_kernel
  .amdhsa_next_free_vgpr 184
  .amdhsa_next_free_sgpr 96
  .amdhsa_accum_offset 184
  .amdhsa_group_segment_fixed_size 0
  .amdhsa_kernarg_size 104
  .amdhsa_user_sgpr_count 2
  .amdhsa_user_sgpr_kernarg_segment_ptr 1
  .amdhsa_system_sgpr_workgroup_id_x 1
  .amdhsa_float_denorm_mode_32 3
.end_amdhsa_kernel
"""
    return head + A.text() + tail

if __name__ == "__main__":
    out = sys.argv[1]
    kw = {}
    for a in sys.argv[2:]:
        k, v = a.split("=", 1)
        kw[k] = eval(v)
    open(out, "w").write(gen(**kw))
```

```python
import sys, struct
from asmlib import *

W1L = 0; WQL = 8192; XNL = 22528; QL = 23552; QHS = 576; SL = 24704; SHS = 384; ML = 25472; FLG = 25504
W2L = 25600; WOL = 33792; KL = 50176; VL = 82944; HL = 115712; LDS_TOTAL = 117760
WS_Q = 0x10000; WS_H = 0x20000; WS_L = 0x30000; WS_F = 0x38000; WS_P = 0x40000; WS_O = 0x80000; WS_ST = 0x400000
LOG2E = 1.4426950408889634
def f2u(x): return "0x%08x" % struct.unpack("<I", struct.pack("<f", x))[0]

class VM:
    def __init__(self, A): self.A = A; self.ops = []; self.done = -1
    def op(self, name, text): self.A(text); self.ops.append(name)
    def idx(self, name): return max(i for i, n in enumerate(self.ops) if n == name)
    def after(self, name): return len(self.ops) - 1 - self.idx(name)
    def wait(self, name):
        i = self.idx(name)
        if i <= self.done: return
        n = len(self.ops) - 1 - i; assert n <= 63, n
        self.A(f"s_waitcnt vmcnt({n})"); self.done = i
    def fork(self):
        o = VM(self.A); o.ops = list(self.ops); o.done = self.done; return o

def gen(stamps=False, spin=1 << 15, diag=None, force_sc1=False, near=True, nprobe=2, fine=0, cyc=False, wlim=24.0, emu=None,
        nt_w="nt", nt_kv="nt", nt_l="", qbar=True, pvmode=1, otouch="early", hdma="V23", fdepth=1, fpoll=19, qins=0, help0=0, helpk=0, helpat=0, ntfrom=0, ntfromN=None, kvpat=0,
        win0=24, win=24, qidx=62, nb2=4, nWpre=12, cap=None,
        win0N=24, winN=24, qidxN=61, nb2N=4, nWpreN=16, capN=None):
    A = Asm()
    ntw = " " + nt_w if nt_w else ""; ntk = " " + nt_kv if nt_kv else ""; ntl = " " + nt_l if nt_l else ""
    inloader = [True]
    def stamp(i, force=False):
        if fine == 3 and i in (7, 9, 10) and not force and inloader[0]: return
        if stamps: A(f"{'s_memtime' if cyc else 's_memrealtime'} s[{64+2*i}:{65+2*i}]")
    lg = (lambda n: 0) if stamps else (lambda n: n)
    TAG = "s38"
    fin = "L_stamps" if stamps else "L_end"
    def finish():
        if stamps: A("s_branch L_stamps")
        else: A("s_endpgm")
    DPP = "row_mask:0xf bank_mask:0xf"
    hlate = hdma[0] == "W"
    if emu is not None:
        A(f"""
    s_and_b32 s30, s2, 7
    s_cmp_eq_u32 s30, 0
    s_movk_i32 s31, {emu[0]}
    s_cselect_b32 s31, {emu[0] + emu[1]}, s31
L_emu:
    s_memrealtime s[36:37]
    s_waitcnt lgkmcnt(0)
    s_and_b32 s36, s36, 1023
    s_cmp_lt_u32 s36, s31
    s_cbranch_scc1 L_emu
    """)
    stamp(0)
    A(f"""
    s_load_dwordx16 s[4:19], s[0:1], 0      ; x k v wq wo Bx w1 b1
    s_load_dwordx8 s[20:27], s[0:1], 64     ; w2 b2 out dbg
    s_load_dwordx2 s[28:29], s[0:1], 96     ; ws
    s_cmp_ge_u32 s2, 256
    s_cbranch_scc1 L_end
    v_lshrrev_b32 v1, 6, v0
    v_and_b32 v0, 63, v0                    ; lane
    v_readfirstlane_b32 s3, v1              ; wave
    s_and_b32 s30, s2, 7
    s_lshr_b32 s31, s2, 3
    v_lshrrev_b32 v2, 4, v0                 ; s
    v_and_b32 v5, 7, v0
    v_lshrrev_b32 v7, 3, v0
    s_lshr_b32 s33, s31, 2                  ; cg
    s_and_b32 s32, s31, 3                   ; rg
    s_lshl2_add_u32 s44, s30, s32           ; 4g + rg
    s_max_u32 s43, s44, 4
    s_sub_u32 s43, s43, 4
    s_cmp_lt_u32 s31, 28
    s_cselect_b32 s63, s30, 0               ; non-zero: this workgroup has MLP work
    s_cmp_eq_u32 s3, 0
    s_cbranch_scc1 L_loader
    s_getpc_b64 s[40:41]
    s_mul_i32 s34, s31, 320
    v_lshl_add_u32 v3, v5, 6, s34
    global_load_dword v148, v3, s[40:41] offset:704    ; the 32 workgroups of an XCD pull the code into its L2
    v_lshlrev_b32 v3, 4, v0
    v_mov_b32 v140, 0
    v_mov_b32 v141, 0
    v_mov_b32 v142, 0
    v_mov_b32 v143, 0
    s_bfm_b64 exec, 56, 0
    s_waitcnt lgkmcnt(0)
    global_load_dwordx4 v[140:143], v3, s[4:5]
    s_load_dword s38, s[28:29], 0           ; epoch
    s_mov_b64 exec, -1
    s_branch L_comp
    """)
    va = VM(A)
    A(f"""
L_loader:
    v_lshlrev_b32 v6, 1, v2
    v_xor_b32 v6, v5, v6
    v_lshlrev_b32 v6, 4, v6
    s_mul_i32 s34, s32, {112*8192}          ; wq row group rg
    s_lshl_b32 s35, s30, 10
    s_add_u32 s34, s34, s35
    s_xor_b32 s35, s33, 4                   ; wq column block cq
    s_lshl_b32 s35, s35, 7
    s_add_u32 s34, s34, s35
    v_lshl_add_u32 v8, v7, 13, s34
    v_add_u32 v8, v8, v6                    ; wq voffset
    """)
    ish = 9 if kvpat == 0 else 17
    if kvpat == 0:
        A(f"""
    s_lshl_b32 s34, s30, 22
    s_lshl_b32 s35, s31, 15
    s_add_u32 s34, s34, s35
    s_add_u32 s34, s34, 0x300000
    s_movk_i32 s35, {4096 + 512}
    v_mad_u32_u24 v4, v7, s35, v6
    v_add_u32 v4, s34, v4
    """)
    else:
        A(f"""
    s_mul_i32 s34, s30, {(1 << 22) + ((1 << 17) if kvpat == 9 else 0)}
    s_lshr_b32 s35, s31, 3
    s_lshl_b32 s35, s35, 15
    s_add_u32 s34, s34, s35
    s_and_b32 s35, s31, 7
    s_lshl_b32 s35, s35, 9
    s_add_u32 s34, s34, s35
    s_add_u32 s34, s34, 0x300000
    s_movk_i32 s35, {4096 + 512}
    v_mad_u32_u24 v4, v7, s35, v6
    v_xor_b32 v4, s34, v4
    """)
    A(f"""
    s_mov_b32 s37, {65536-1024}
    s_mul_i32 s34, s33, {64*3584}
    s_lshl_b32 s35, s43, 7
    s_add_u32 s34, s34, s35
    s_movk_i32 s35, 3584
    v_mad_u32_u24 v14, v7, s35, v6
    v_add_u32 v14, s34, v14                 ; w1 voffset: rows 64cg.., hidden block
    """)
    if help0:
        A(f"""
    s_sub_u32 s34, s30, 1
    s_lshl_b32 s35, s34, 17
    s_lshl_b32 s36, s30, 10
    s_sub_u32 s35, s35, s36
    v_add_u32 v16, s35, v8
    v_add_u32 v17, 0x10000, v16
    """)
        for m in range(helpk):
            A(f"""
    s_add_u32 s35, s34, {7*m}
    s_lshl_b32 s35, s35, 7
    s_lshl_b32 s36, s30, 22
    v_subrev_u32 v{18+m}, s36, v4
    v_xor_b32 v{18+m}, s35, v{18+m}
    """)
    A(f"""
    s_movk_i32 s36, {28672-1024}
    s_movk_i32 s46, -896
    v_mov_b32 v3, v4
    s_movk_i32 m0, {WQL}
    s_waitcnt lgkmcnt(0)
    """)
    WQS = [f"wq{i}" for i in range(14)]; KS = [f"K{i}" for i in range(32)]; VS = [f"V{i}" for i in range(32)]
    seqF = WQS + [f"w1{i}" for i in range(8)] + KS + VS + [f"W{i}" for i in range(24)]
    at = seqF.index(hdma) + 1; seqF = seqF[:at] + ["H0", "H1"] + seqF[at:]
    seqN = WQS + KS + VS + [f"W{i}" for i in range(8, 24)]
    if ntfromN is None: ntfromN = ntfrom
    cur = [ntfrom]
    def issue(vm, n):
        kind = n.rstrip("0123456789") if not n.startswith("w1") else "w1"
        i = int(n[len(kind):])
        ntk = " " + nt_kv if (nt_kv and kind in "KV" and i + (32 if kind == "V" else 0) >= cur[0]) else ""
        if kind == "wq":
            vm.op(n, f"global_load_lds_dwordx4 v8, s[10:11] offset:{1024*(i&3)}{ntw}")
            if i == 13: pass
            elif i & 3 == 3: A("s_addk_i32 m0, 4096"); A(f"v_add_u32 v8, {65536+3072}, v8")
            else: A("v_add_u32 v8, s37, v8")
        elif kind == "w1":
            vm.op(n, f"global_load_lds_dwordx4 v14, s[16:17] offset:{1024*(i&3)}{ntw}")
            if i == 7: pass
            elif i & 3 == 3: A("s_addk_i32 m0, 4096"); A(f"v_add_u32 v14, {28672+3072}, v14")
            else: A("v_add_u32 v14, s36, v14")
        elif kind == "H":
            if i == 0: A(f"s_mov_b32 s40, m0\ns_mov_b32 m0, {HL}")
            else: A("s_mov_b32 exec_hi, 0xffff")
            vm.op(n, f"global_load_lds_dwordx4 v15, s[28:29] offset:{1024*i} sc1")
            if i == 1: A("s_mov_b32 exec_hi, -1\ns_mov_b32 m0, s40")
        elif kind == "V" and i >= 16 and pvmode == 1:
            q, ii = (i - 16) >> 2, (i - 16) & 3
            vm.op(n, f"global_load_lds_dwordx4 v{10+ii}, s[8:9] offset:{128*q}{ntk}")
            if i < 31: A(f"s_addk_i32 m0, {4096 if ii < 3 else 896 - 3*4096}")
        elif kind in "KV":
            vm.op(n, f"global_load_lds_dwordx4 v3, {'s[6:7]' if kind == 'K' else 's[8:9]'} offset:{1024*(i&3)}{ntk}")
            if i & 3 == 3:
                A("s_addk_i32 m0, 4096")
                nx = ((i + 1) >> 2) & 7
                if n != "V31" and (n != "V15" or pvmode != 1): A(f"v_xor_b32 v3, {nx << ish:#x}, v4" if nx else "v_mov_b32 v3, v4")
            else: A("v_add_u32 v3, s46, v3")
        else:
            reg, ptr = ("v8", "s[20:21]") if i < 8 else ("v9", "s[12:13]")
            vm.op(n, f"global_load_lds_dwordx4 {reg}, {ptr} offset:{1024*(i&3)}{ntl}")
            if i < 23:
                if i & 3 == 3: A("s_addk_i32 m0, 4096")
                if i < 7:
                    grow = lambda i: (32*(i&1) + 4*(i>>1)) * 896 - 1024*(i&3)
                    A(f"v_add_u32 {reg}, {(grow(i+1)-grow(i)) & 0xffffffff:#x}, {reg}")
                elif i > 7:
                    grow = lambda i: (64*((i>>1)&3) + 16*(i>>3) + 8*(i&1)) * 896 - 1024*(i&3)
                    A(f"v_add_u32 {reg}, {(grow(i-7)-grow(i-8)) & 0xffffffff:#x}, {reg}")
    want = ["wq", "trig"] + (["trigB"] if qins else []) + ["k", "b1", "b2"] + (["v1", "v3"] if pvmode == 1 else []) + ["v", "o", "pre", "wo"]
    def schedule(seq, win0, win, qidx, nb2, nWpre, cap):
        pos = {n: i for i, n in enumerate(seq)}
        assert pos["K31"] <= qidx and (pvmode == 3 or qidx <= pos["V15"]), (qidx, pos["K31"])
        tw1 = pos.get("w17", 13)
        acts = []; tprev = -1
        for k, n in enumerate(seq):
            if k < win0: continue
            t = max(k - win, tprev); tprev = t
            if nWpre < 24 and k >= pos[f"W{nWpre}"]:
                tprev = pos["V31"]; acts.append((tprev, 5, k, "issue", n)); continue
            if k > pos["V31"]: t = tprev = min(t, pos["V31"])
            if cap is not None and k > cap and t <= 13:
                tprev = 13; acts.append((13, 1.5, k, "issue", n)); continue
            acts.append((t, 0, k, "issue", n))
            if k == qidx: assert t >= tw1; acts.append((t, 1, 1.5, "bar", "trig"))
            if qins and k == qidx + qins: acts.append((t, 1, 1.7, "bar", "trigB"))
        tk = max(pos["K31"], qidx + qins - win)
        evs = [(13, "wq"), (tw1, "w1"), (tk, "k"), (qidx, "b1")]
        evs += [(qidx, "b2"), (pos["V15"], "v1"), (pos["V27"], "v3")] if pvmode == 1 else [(max(qidx, pos["V15"]), "b2")]
        evs += [(pos["V31"], "v")]
        for e, (t, nm) in enumerate(evs):
            if nm != "w1" or "w17" in pos: acts.append((t, 1, e, "bar", nm))
        for e, (n, nm) in enumerate((("W7", "w2"), (f"W{fpoll}", "pre"), ("W23", "wo"))):
            if n in pos: acts.append((pos[n], 6, e, "bar", nm))
        acts.append((pos["V31"], 4, 0, "bar", "o"))
        acts.sort(key=lambda a: a[:3])
        ib2 = [n for n, a in enumerate(acts) if a[4] == "b2"][0]
        mv = [a for a in acts[ib2:] if a[3] == "issue" and a[1] == 0][:nb2]
        acts = acts[:ib2] + [(acts[ib2][0],) + a[1:] for a in mv] + [a for a in acts[ib2:] if a not in mv]
        order = [a[4] for a in acts if a[3] == "bar"]
        assert [o for o in order if o not in ("w1", "w2")] == want, order
        if "H1" in pos: assert pos["H1"] < (pos["W7"] if hlate else pos["V31"])
        return acts
    def play(vm, seq, a, comb):
        t, _, _, kind, arg = a
        if comb and (kind == "issue" or arg in ("pre", "wo")): return
        if t >= 0: vm.wait(seq[t])
        if kind == "issue":
            issue(vm, arg)
            if arg == "W23": stamp(3)
        else:
            if fine == 3 and arg in ("wq", "w1", "trig", "k", "b1"): stamp({"wq": 4, "w1": 5, "trig": 7, "k": 9, "b1": 10}[arg], True)
            if arg == "v": stamp(6)
            if arg == "wo": stamp(8)
            A("s_barrier")
            if arg == "wq" and qbar: A("s_barrier")
    def helpers():
        if help0:
            A("s_cmp_eq_u32 s30, 0\ns_cbranch_scc1 L_nohelp")
            A("global_load_dword v30, v16, s[10:11]\nglobal_load_dword v30, v17, s[10:11]")
            for m in range(helpk): A(f"global_load_dword v30, v{18+m}, s[6:7]")
            A("L_nohelp:")
    assert helpat == 0
    helpers()
    for n in WQS: issue(va, n)
    vf = va.fork(); nkF = win0 - 22; nkN = win0N - 14; assert 0 <= nkF <= nkN
    A(f"s_movk_i32 m0, {W1L}\ns_cmp_eq_u32 s63, 0\ns_cbranch_scc1 L_k0")
    for i in range(8): issue(vf, f"w1{i}")
    A(f"L_k0:\ns_mov_b32 m0, {KL}")
    for n in KS[:nkF]: issue(va, n); vf.ops.append(n)
    A("s_cmp_eq_u32 s63, 0\ns_cbranch_scc0 L_k1")
    cur[0] = ntfromN
    for n in KS[nkF:nkN]: issue(va, n)
    A(f"""
L_k1:
    s_load_dword s38, s[28:29], 0
    s_lshl_b32 s35, s33, 7
    v_mul_u32_u24 v9, 896, v7
    v_add3_u32 v9, v9, v6, s35
    s_mul_i32 s34, s43, {64*896}
    v_lshrrev_b32 v8, 5, v0
    v_mul_u32_u24 v8, {12*896}, v8
    v_add3_u32 v8, v8, v9, s34              ; w2 voffset: LDS row 16m+4s+r holds unit 16s+4m+r
    s_lshr_b32 s34, s44, 1
    s_lshl_b32 s34, s34, 3
    s_and_b32 s35, s32, 1
    s_add_u32 s34, s34, s35
    s_mul_i32 s34, s34, {32*896}
    v_add_u32 v9, s34, v9                   ; wo voffset: LDS row 64a+16t+c holds dim 64t + 32*(rg&1) + 16a + c
    v_xor_b32 v10, {4 << ish:#x}, v4
    v_xor_b32 v11, {5 << ish:#x}, v4
    v_xor_b32 v12, {6 << ish:#x}, v4
    v_xor_b32 v13, {7 << ish:#x}, v4
    s_lshl_b32 s34, s43, 11
    s_add_u32 s34, s34, {WS_H}
    v_lshl_add_u32 v15, v0, 4, s34
    """)
    stamp(1)
    A("s_cmp_eq_u32 s63, 0\ns_cbranch_scc0 L_loadF")
    acts = schedule(seqN, win0N, winN, qidxN, nb2N, nWpreN, capN)
    split = [n for n, a in enumerate(acts) if a[4] == "V31"][0] + 1
    for a in acts[:split]: play(va, seqN, a, False)
    stamp(2)
    A(f"s_mov_b32 m0, {WOL}\ns_cmp_lt_u32 s31, 28\ns_cbranch_scc0 L_cload")
    vc = va.fork()
    for a in acts[split:]: play(va, seqN, a, False)
    finish()
    A("L_loadF:")
    cur[0] = ntfrom
    for a in schedule(seqF, win0, win, qidx, nb2, nWpre, cap):
        play(vf, seqF, a, False)
        if a[4] == "V31":
            stamp(2); A(f"s_movk_i32 m0, {W2L}")
    finish()
    G = 32
    A(f"""
L_cload:
    s_lshr_b32 s35, s43, 2
    s_lshl_b32 s35, s35, 14
    s_and_b32 s47, s43, 3
    s_lshl_b32 s47, s47, 11
    s_add_u32 s47, s47, s35
    s_add_u32 s47, s47, {WS_P}
    v_lshl_add_u32 v29, v0, 4, s47
    s_lshl_b32 s34, s43, 4
    v_and_b32 v16, 3, v0
    v_lshl_add_u32 v19, v16, 2, v2
    v_add_lshl_u32 v19, v19, s34, 1
    """)
    for a in acts[split:]: play(vc, seqN, a, True)
    A(f"""
    s_cmp_eq_u32 s30, 0
    s_cbranch_scc1 {fin}
    global_load_ushort v30, v19, s[4:5]
    global_load_ushort v31, v19, s[22:23]
    s_mov_b32 s60, 0x0c0c0400
    s_mov_b32 s61, 0x0504000c
    s_mov_b32 s45, 0
    s_waitcnt lgkmcnt(0)
    s_mul_i32 s38, s38, 1664525
    s_add_u32 s38, s38, 1013904223          ; tag
    """)
    if near:
        A("s_add_u32 s48, s47, 0x2000\ns_mov_b32 s50, -1\ns_mov_b32 s51, -1")
        for r in range(nprobe):
            for c in range(2):
                A(f"""
                s_memtime s[52:53]
                s_load_dword s49, s[28:29], s{47+c} glc
                s_waitcnt lgkmcnt(0)
                s_memtime s[54:55]
                s_waitcnt lgkmcnt(0)
                s_sub_u32 s49, s54, s52
                s_min_u32 s{50+c}, s{50+c}, s49
                """)
        A("s_cmp_lt_u32 s51, s50\ns_cselect_b32 s49, 0x2000, 0\nv_add_u32 v29, s49, v29")
        if stamps: A("s_lshl_b32 s91, s51, 16\ns_add_u32 s91, s91, s50")
    A("""
    s_waitcnt vmcnt(0)
    v_lshlrev_b32 v30, 16, v30
    v_lshlrev_b32 v31, 16, v31
    v_add_f32 v30, v30, v31                 ; x + b2
    """)
    stamp(7)
    A("s_barrier")
    stamp(9)
    A(f"""
L_ppoll:
    global_load_dwordx4 v[{G}:{G+3}], v29, s[28:29] sc1
    global_load_dwordx4 v[{G+4}:{G+7}], v29, s[28:29] offset:1024 sc1
    s_add_u32 s45, s45, 1
    s_cmp_ge_u32 s45, {spin}
    s_cbranch_scc1 L_pok
    s_waitcnt vmcnt(0)
    v_cmp_ne_u32 vcc, {TAG}, v{G+3}
    v_cmp_ne_u32 s[54:55], {TAG}, v{G+7}
    v_perm_b32 v{G+3}, v{G}, v{G+1}, s60
    v_perm_b32 v{G+7}, v{G+4}, v{G+5}, s60
    v_perm_b32 v{G+3}, v{G+3}, v{G+2}, s61
    v_perm_b32 v{G+7}, v{G+7}, v{G+6}, s61
    v_pk_add_f32 v[{G}:{G+1}], v[{G}:{G+1}], v[{G+4}:{G+5}]
    v_pk_add_f32 v[{G+2}:{G+3}], v[{G+2}:{G+3}], v[{G+6}:{G+7}]
    s_or_b64 vcc, vcc, s[54:55]
    s_cbranch_scc1 L_ppoll
L_pok:
    """)
    stamp(10)
    A(f"""
    v_permlane32_swap_b32 v{G}, v{G+2}
    v_permlane32_swap_b32 v{G+1}, v{G+3}
    v_pk_add_f32 v[{G}:{G+1}], v[{G}:{G+1}], v[{G+2}:{G+3}]
    v_permlane16_swap_b32 v{G}, v{G+1}
    v_add_f32 v{G}, v{G}, v{G+1}
    v_add_f32_dpp v{G}, v{G}, v{G} row_ror:4 {DPP}
    v_add_f32_dpp v{G}, v{G}, v{G} row_ror:8 {DPP}
    s_mov_b32 exec_lo, 0x000f000f
    s_mov_b32 exec_hi, 0x000f000f
    v_add_f32 v{G}, v{G}, v30
    v_cvt_pk_bf16_f32 v{G}, v{G}, v{G}
    global_store_short v19, v{G}, s[24:25]
    s_cmp_eq_u32 s43, 0
    s_cbranch_scc0 {fin}
    s_mov_b64 exec, 1
    v_mov_b32 v2, 0
    v_mov_b32 v63, s38
    global_store_dword v2, v63, s[28:29]
    """)
    finish()
    inloader[0] = False
    A(f"""
L_comp:
    s_sub_u32 s3, s3, 1                     ; w
    v_and_b32 v1, 15, v0                    ; n
    v_lshrrev_b32 v8, 3, v1                 ; head = n>>3
    v_and_b32 v16, 3, v0
    s_lshl_b32 s34, s30, 13
    s_xor_b32 s35, s33, 4
    s_lshl3_add_u32 s35, s32, s35
    s_lshl_b32 s35, s35, 8
    s_add_u32 s35, s34, s35
    s_add_u32 s56, s35, {WS_Q}
    s_lshl_b32 s36, s3, 6
    s_add_u32 s35, s56, s36
    v_lshl_add_u32 v30, v2, 4, s35
    s_lshl3_add_u32 s35, s43, s33
    s_lshl_b32 s35, s35, 8
    s_add_u32 s57, s35, {WS_H}
    s_add_u32 s35, s57, s36
    v_lshl_add_u32 v31, v2, 4, s35
    global_load_dword v148, v30, s[28:29]
    global_load_dword v148, v31, s[28:29]
    v_bfe_u32 v14, v0, 2, 3
    v_lshlrev_b32 v14, 7, v14
    v_and_b32 v15, 3, v7
    v_lshl_add_u32 v14, v15, 5, v14
    v_lshl_add_u32 v14, v16, 3, v14
    v_lshrrev_b32 v15, 5, v0
    s_lshl_b32 s36, s3, 5
    v_xor_b32 v24, s36, v14
    v_lshl_add_u32 v20, v15, 12, v24
    v_add_u32 v20, {VL}, v20
    v_lshl_add_u32 v24, v15, 10, v24
    s_mul_i32 s35, s32, 224
    v_lshl_add_u32 v28, v2, 3, s35
    s_lshl_b32 s35, s33, 7
    v_lshl_add_u32 v29, v2, 3, s35
    s_mov_b32 s50, 0x07060503
    s_mov_b32 s51, 0x07060502
    s_mov_b32 s52, 0x07060501
    s_getreg_b32 s39, hwreg(HW_REG_XCC_ID, 0, 4)
    v_mov_b32 v46, 0
    v_mov_b32 v47, 0
    v_mov_b32 v78, 0
    v_mov_b32 v79, 0
    s_mov_b32 s37, 0
    v_mov_b32 v26, 0
    s_cmp_eq_u32 s3, 0
    s_cbranch_scc0 L_noln
    s_waitcnt vmcnt(2)
    """)
    X = 32
    for i in range(4):
        A(f"v_lshlrev_b32 v{X+2*i}, 16, v{140+i}")
        A(f"v_and_b32 v{X+1+2*i}, 0xffff0000, v{140+i}")
    def allreduce_add(r, t):
        for sh in (1, 2, 4, 8):
            A(f"v_add_f32_dpp v{r}, v{r}, v{r} row_ror:{sh} {DPP}")
        A(f"v_mov_b32 v{t}, v{r}")
        A(f"v_permlane16_swap_b32 v{t}, v{r}")
        A(f"v_add_f32 v{r}, v{r}, v{t}")
        A(f"v_mov_b32 v{t}, v{r}")
        A(f"v_permlane32_swap_b32 v{t}, v{r}")
        A(f"v_add_f32 v{r}, v{r}, v{t}")
    A(f"""
    v_pk_add_f32 v[40:41], v[{X}:{X+1}], v[{X+2}:{X+3}]
    v_pk_add_f32 v[42:43], v[{X+4}:{X+5}], v[{X+6}:{X+7}]
    v_pk_add_f32 v[40:41], v[40:41], v[42:43]
    v_add_f32 v40, v40, v41
    """)
    allreduce_add(40, 41)
    A(f"""
    v_mul_f32 v40, {f2u(1/448)}, v40        ; mean
    v_mov_b32 v42, 0
    v_mov_b32 v43, 0
    s_bfm_b64 exec, 56, 0
    """)
    for i in range(4):
        A(f"v_pk_add_f32 v[44:45], v[{X+2*i}:{X+2*i+1}], v[40:41] op_sel_hi:[1,0] neg_lo:[0,1] neg_hi:[0,1]")
        A("v_pk_fma_f32 v[42:43], v[44:45], v[44:45], v[42:43]")
    A("s_mov_b64 exec, -1\nv_add_f32 v42, v42, v43")
    allreduce_add(42, 41)
    A(f"""
    v_mul_f32 v42, {f2u(1/448)}, v42        ; var
    v_cvt_pk_bf16_f32 v40, v40, v42
    v_and_b32 v42, 0xffff0000, v40          ; bf16(var)
    v_lshlrev_b32 v40, 16, v40              ; bf16(mean)
    v_add_f32 v42, {f2u(1e-5)}, v42
    v_cvt_pk_bf16_f32 v42, v42, v42
    v_lshlrev_b32 v42, 16, v42
    v_sqrt_f32 v42, v42
    """)
    for i in range(4): A(f"v_pk_add_f32 v[{X+2*i}:{X+2*i+1}], v[{X+2*i}:{X+2*i+1}], v[40:41] op_sel_hi:[1,0] neg_lo:[0,1] neg_hi:[0,1]")
    A("v_cvt_pk_bf16_f32 v42, v42, v42\nv_lshlrev_b32 v42, 16, v42\nv_rcp_f32 v42, v42")
    for i in range(4): A(f"v_cvt_pk_bf16_f32 v{56+i}, v{X+2*i}, v{X+1+2*i}")
    for i in range(4):
        A(f"v_lshlrev_b32 v{X+2*i}, 16, v{56+i}")
        A(f"v_and_b32 v{X+1+2*i}, 0xffff0000, v{56+i}")
    for i in range(4): A(f"v_pk_mul_f32 v[{X+2*i}:{X+2*i+1}], v[{X+2*i}:{X+2*i+1}], v[42:43] op_sel_hi:[1,0]")
    for i in range(4): A(f"v_cvt_pk_bf16_f32 v{56+i}, v{X+2*i}, v{X+1+2*i}")
    A(f"""
    ds_write_b128 v3, v[56:59] offset:{XNL}
L_noln:
    s_waitcnt lgkmcnt(0)
    s_mul_i32 s38, s38, 1664525
    s_add_u32 s38, s38, 1013904223          ; tag
    s_add_u32 s39, s39, s38
    v_mov_b32 v63, s39
    """)
    stamp(1)
    A("s_barrier")
    XQ = 32; XH = 48; WF = 64
    for b in range(7):
        A(f"ds_read_b64 v[{XQ+2*b}:{XQ+2*b+1}], v28 offset:{XNL+32*b}")
        A(f"ds_read_b64_tr_b16 v[{WF+2*b}:{WF+2*b+1}], v24 offset:{WQL+2048*b}")
    for kk in range(4):
        A(f"s_waitcnt lgkmcnt({lg(max(0, 14-4*(kk+1)))})")
        c = "0" if kk == 0 else "v[56:59]"
        A(f"v_mfma_f32_16x16x32_bf16 v[56:59], v[{WF+4*kk}:{WF+4*kk+3}], v[{XQ+4*kk}:{XQ+4*kk+3}], {c}")
    for b in range(4): A(f"ds_read_b64 v[{XH+2*b}:{XH+2*b+1}], v29 offset:{XNL+32*b}")
    A(f"""
    s_mov_b32 exec_lo, 0x00010001
    s_mov_b32 exec_hi, 0x00010001
    v_perm_b32 v60, v56, v59, s50
    v_perm_b32 v61, v57, v59, s51
    v_perm_b32 v62, v58, v59, s52
    global_store_dwordx4 v30, v[60:63], s[28:29]
    """)
    if qbar: A("s_barrier")
    A("s_mov_b64 exec, -1")
    stamp(2)
    A(f"""
    s_cmp_eq_u32 s63, 0
    s_cbranch_scc1 L_noh
    s_barrier
    """)
    for b in range(4): A(f"ds_read_b64_tr_b16 v[{WF+2*b}:{WF+2*b+1}], v24 offset:{W1L+2048*b}")
    A(f"""
    v_mov_b32 v63, s38
    s_waitcnt lgkmcnt({lg(2)})
    v_mfma_f32_16x16x32_bf16 v[56:59], v[{WF}:{WF+3}], v[{XH}:{XH+3}], 0
    s_waitcnt lgkmcnt(0)
    v_mfma_f32_16x16x32_bf16 v[56:59], v[{WF+4}:{WF+7}], v[{XH+4}:{XH+7}], v[56:59]
    s_lshl_b32 s35, s43, 7
    v_lshl_add_u32 v6, v16, 3, s35
    v_lshl_add_u32 v6, v2, 5, v6            ; b1 offset: unit 64*block + 16s + 4*(n&3)
    global_load_dwordx2 v[80:81], v6, s[18:19]
    s_mov_b32 exec_lo, 0x00010001
    s_mov_b32 exec_hi, 0x00010001
    v_perm_b32 v60, v56, v59, s50
    v_perm_b32 v61, v57, v59, s51
    v_perm_b32 v62, v58, v59, s52
    global_store_dwordx4 v31, v[60:63], s[28:29]
    s_mov_b64 exec, -1
    s_branch L_hdone
L_noh:
    s_cmp_lt_u32 s31, 28
    s_cbranch_scc1 L_hdone
    s_lshl_b32 s36, s30, 11
    s_and_b32 s35, s32, 1
    s_lshl_b32 s35, s35, 10
    s_add_u32 s36, s36, s35
    s_lshr_b32 s35, s3, 1
    s_lshl_b32 s35, s35, 9
    s_add_u32 s36, s36, s35
    s_lshr_b32 s35, s32, 1
    s_lshl_b32 s35, s35, 8
    s_add_u32 s36, s36, s35
    s_add_u32 s36, s36, {WS_L}
    v_lshl_add_u32 v26, v7, 5, s36          ; L poll
    s_lshl2_add_u32 s36, s44, s3
    s_lshl_b32 s35, s36, 12
    s_add_u32 s35, s35, {WS_O}
    v_lshl_add_u32 v30, v0, 4, s35          ; O gather
    s_lshl_b32 s35, s36, 7
    s_add_u32 s35, s35, {WS_F}
    v_lshl_add_u32 v28, v5, 4, s35
    v_lshl_add_u32 v28, v15, 3, v28         ; F store
    global_load_dword v148, v26, s[28:29]
    global_load_dword v148, v28, s[28:29]
    s_lshr_b32 s35, s43, 2
    s_lshl_b32 s35, s35, 14
    s_and_b32 s40, s43, 3
    s_lshl_b32 s40, s40, 11
    s_add_u32 s35, s35, s40
    s_lshl_b32 s40, s3, 9
    s_add_u32 s35, s35, s40
    s_add_u32 s37, s35, {WS_P}
    s_lshl_b32 s36, s43, 5
    s_lshr_b32 s33, s32, 1
    s_lshl_b32 s33, s33, 3
    s_load_dword s41, s[22:23], s36
    s_load_dword s41, s[24:25], s36
    """)
    for e in range(8): A(f"s_load_dword s41, s[28:29], s37 offset:{64*e}")
    OT = "global_load_dword v148, v14, s[28:29]"
    A(f"""
L_hdone:
    s_lshl_b32 s35, s3, 9
    s_add_u32 s34, s34, s35
    s_add_u32 s34, s34, {WS_Q}
    v_and_b32 v10, 31, v0
    v_lshl_add_u32 v18, v15, 11, s34
    v_lshl_add_u32 v18, v10, 4, v18
    v_add_u32 v19, 0x1000, v18
    s_lshl_b32 s34, s30, 16
    s_lshl_b32 s35, s3, 13
    s_add_u32 s35, s35, s34
    s_lshl_b32 s36, s31, 7
    s_add_u32 s35, s35, s36
    s_add_u32 s35, s35, {WS_O}
    v_lshl_add_u32 v14, v8, 15, s35
    v_lshl_add_u32 v14, v15, 12, v14
    v_and_b32 v9, 1, v2
    v_lshl_add_u32 v14, v9, 6, v14
    v_lshl_add_u32 v14, v16, 4, v14
    {OT if otouch == "early" else ""}
    s_barrier
    """)
    vw = VM(A)
    vw.op("Q", "global_load_dwordx4 v[64:67], v18, s[28:29] sc1")
    vw.op("Q", "global_load_dwordx4 v[68:71], v19, s[28:29] sc1")
    stamp(3)
    A(f"""
    s_lshr_b32 s34, s3, 1
    s_mul_i32 s34, s34, {QHS}
    s_and_b32 s35, s3, 1
    s_lshl_b32 s35, s35, 8
    s_add_u32 s34, s34, s35
    v_lshl_add_u32 v10, v10, 3, s34
    v_lshl_add_u32 v17, v15, 2, v10
    v_mul_u32_u24 v9, {QHS}, v8
    v_lshl_add_u32 v9, v2, 4, v9
    v_mul_u32_u24 v10, {SHS}, v8
    v_lshl_add_u32 v10, v2, 6, v10
    s_lshl_b32 s36, s3, 4
    v_add_u32 v11, s36, v10
    v_lshlrev_b32 v12, 2, v8
    v_mov_b32 v13, 0xff800000
    ds_write_b32 v12, v13 offset:{ML}
    s_lshl_b32 s36, s3, 2
    v_mov_b32 v25, s36
    s_lshl_b32 s36, s3, 13
    s_add_u32 s36, s36, {KL}
    v_lshl_add_u32 v3, v8, 12, s36
    v_lshl_add_u32 v3, v5, 7, v3
    v_and_b32 v4, 6, v0
    v_xor_b32 v4, v4, v2
    v_lshl_add_u32 v3, v4, 4, v3
    v_xor_b32 v4, 64, v3
    s_lshl_b32 s34, s30, 11
    s_lshl_b32 s35, s3, 9
    s_add_u32 s34, s34, s35
    s_and_b32 s35, s31, 7
    s_lshl_b32 s35, s35, 5
    s_add_u32 s34, s34, s35
    s_and_b32 s35, s31, 24
    s_add_u32 s34, s34, s35
    s_add_u32 s34, s34, {WS_L}
    v_lshl_add_u32 v13, v8, 8, s34
    s_mov_b32 s46, 0x01010101
    s_mov_b32 s47, s46
    s_mov_b32 s48, 0x0f0f0f0f
    s_mov_b32 s49, s48
    s_mov_b32 s53, {f2u(LOG2E/16)}
    s_mov_b32 s60, 0x0c0c0400
    s_mov_b32 s61, 0x0504000c
    s_mov_b32 s45, 0
    v_mov_b32 v152, 0x3f803f80
    v_mov_b32 v153, v152
    v_mov_b32 v154, v152
    v_mov_b32 v155, v152
    s_cmp_lt_u32 s31, 28
    s_cbranch_scc1 L_gsetup
    """)
    for e in range(8): A(f"s_load_dword s41, s[28:29], s37 offset:{8192+64*e}")
    A(f"""
    s_branch L_sdone
L_gsetup:
    v_lshrrev_b32 v6, 2, v1
    v_lshlrev_b32 v6, 8, v6
    v_lshl_add_u32 v6, v2, 6, v6
    v_lshl_add_u32 v6, v16, 4, v6
    s_lshl_b32 s35, s43, 11
    s_add_u32 s35, s35, {WS_H}
    v_add_u32 v26, s35, v6
    v_add_u32 v6, {HL}, v6
    v_mov_b32 v76, 0
    v_mov_b32 v77, 0
    v_mov_b32 v78, 0
    v_mov_b32 v79, s38
    s_lshl_b32 s35, s44, 9
    s_add_u32 s35, s35, {WS_F}
    v_bfe_u32 v28, v0, 2, 1
    v_lshl_add_u32 v28, v28, 8, s35
    v_lshl_add_u32 v28, v2, 6, v28
    v_lshl_add_u32 v28, v16, 4, v28
    s_lshl_b32 s35, s33, 14
    s_lshl_b32 s36, s3, 11
    s_add_u32 s35, s35, s36
    s_lshl_b32 s36, s44, 6
    s_add_u32 s35, s35, s36
    s_add_u32 s35, s35, {WS_P}
    v_lshl_add_u32 v29, v2, 4, s35
    v_add_u32 v30, 0x2000, v29
L_sdone:
    """)
    if qins:
        A("s_barrier")
        vw.op("QB", "global_load_dwordx4 v[160:163], v18, s[28:29] sc1")
        vw.op("QB", "global_load_dwordx4 v[164:167], v19, s[28:29] sc1")
    A("s_barrier")
    if otouch == "k": vw.op("T", OT)
    for i in range(8): A(f"ds_read_b128 v[{32+4*i}:{35+4*i}], v{3+(i&1)} offset:{1024*(i>>1)}")
    vw.wait("Q")
    if qins: nqb = vw.after("QB")
    QF = 84; VF = 116
    vreg = lambda t, kb: VF + 16*(kb >> 1) + 4*t + 2*(kb & 1)
    vread = lambda t, kb: f"ds_read_b64_tr_b16 v[{vreg(t,kb)}:{vreg(t,kb)+1}], v20 offset:{8192*kb+1024*t}"
    A(f"""
L_qchk:
    v_cmp_ne_u32 vcc, s39, v67
    v_cmp_ne_u32 s[54:55], s39, v71
    v_perm_b32 v82, v64, v65, s60
    v_perm_b32 v83, v68, v69, s60
    v_perm_b32 v82, v82, v66, s61
    v_perm_b32 v83, v83, v70, s61
    s_or_b64 vcc, vcc, s[54:55]
    s_cbranch_scc1 L_qslow
    v_mov_b32 v67, {1 if force_sc1 else 0}
L_qok:
    """)
    stamp(4)
    A(f"""
    v_add_f32 v64, v64, v68
    v_add_f32 v66, v66, v70
    v_add_f32 v65, v65, v69
    v_add_f32 v82, v82, v83
    v_permlane32_swap_b32 v64, v66
    ds_write_b32 v25, v67 offset:{FLG}
    v_permlane32_swap_b32 v65, v82
    v_add_f32 v64, v64, v66
    v_add_f32 v65, v65, v82
    v_cvt_pk_bf16_f32 v64, v64, v65
    ds_write_b32 v17, v64 offset:{QL}
    v_mov_b32 v83, 0
    s_waitcnt lgkmcnt(0)
    s_barrier
    """)
    if fine == 1: stamp(1)
    for i in range(8):
        A(f"ds_read_b128 v[{QF+4*i}:{QF+4*i+3}], v9 offset:{QL+64*i}")
    if otouch == "b1": vw.op("T", OT)
    for i in range(8):
        A(f"s_waitcnt lgkmcnt({7-i+(1 if i == 7 else 0)})")
        A(f"v_mfma_f32_16x16x32_bf16 v[64:67], v[{32+4*i}:{35+4*i}], v[{QF+4*i}:{QF+4*i+3}], {'0' if i == 0 else 'v[64:67]'}")
        if i == 6: A(f"ds_read_b128 v[156:159], v83 offset:{FLG}")
    if fine == 1: stamp(2)
    A(f"""
    v_cvt_pk_bf16_f32 v68, v64, v65
    v_cvt_pk_bf16_f32 v69, v66, v67
    v_lshlrev_b32 v64, 16, v68
    v_and_b32 v65, 0xffff0000, v68
    v_lshlrev_b32 v66, 16, v69
    v_and_b32 v67, 0xffff0000, v69
    v_max_f32 v68, v64, v65
    v_max3_f32 v68, v66, v67, v68
    v_mul_f32 v68, s53, v68
    v_ceil_f32 v68, v68
    v_fma_f32 v64, v64, s53, -v68
    v_fma_f32 v65, v65, s53, -v68
    v_fma_f32 v66, v66, s53, -v68
    v_fma_f32 v67, v67, s53, -v68
    v_mul_f32 v70, 0x43000000, v68
    s_mov_b64 exec, s[46:47]
    ds_max_f32 v12, v70 offset:{ML}
    v_exp_f32 v64, v64
    v_exp_f32 v65, v65
    v_exp_f32 v66, v66
    v_exp_f32 v67, v67
    v_cvt_pk_bf16_f32 v68, v64, v65
    v_cvt_pk_bf16_f32 v69, v66, v67
    ds_write_b96 v11, v[68:70] offset:{SL}
    s_mov_b64 exec, -1
    s_lshl_b64 s[40:41], s[46:47], 1
    s_lshl_b64 s[42:43], s[46:47], 2
    s_lshl_b64 s[54:55], s[46:47], 3
    s_waitcnt lgkmcnt(2)
    v_or3_b32 v56, v156, v157, v158
    v_or_b32 v56, v56, v159
    v_mov_b32 v63, {TAG}
    v_readfirstlane_b32 s62, v56
    v_mov_b32 v67, {TAG}
    s_waitcnt lgkmcnt(0)
    s_barrier
    ds_read_b32 v68, v12 offset:{ML}
    """)
    if fine == 1: stamp(3)
    Y = 32; PB = 48; ACC = 84; OG = 100; LG = 72
    for w in range(4):
        A(f"ds_read_b128 v[{Y+4*w}:{Y+4*w+3}], v10 offset:{SL+16*w}")
    rest = [(t, kb) for t in range(4) for kb in (0, 1)] if pvmode == 3 else []
    for t, kb in rest: A(vread(t, kb))
    pv0 = lambda t: f"v_mfma_f32_16x16x32_bf16 v[{ACC+4*t}:{ACC+4*t+3}], v[{VF+4*t}:{VF+4*t+3}], v[{PB}:{PB+3}], 0"
    pv1 = lambda t: f"v_mfma_f32_16x16x32_bf16 v[{ACC+4*t}:{ACC+4*t+3}], v[{VF+16+4*t}:{VF+16+4*t+3}], v[{PB+4}:{PB+7}], v[{ACC+4*t}:{ACC+4*t+3}]"
    def rescale(c):
        a, b = Y + 8*c, Y + 8*c + 4
        return [f"v_sub_f32 v{a+2}, v68, v{a+2}", f"v_sub_f32 v{b+2}, v68, v{b+2}", f"v_cvt_u32_f32 v{a+2}, v{a+2}", f"v_cvt_u32_f32 v{b+2}, v{b+2}",
                f"v_cvt_pk_u16_u32 v{a+2}, v{a+2}, v{b+2}",
                f"v_pk_sub_u16 v{PB+4*c}, v{a}, v{a+2} op_sel_hi:[1,0] clamp",
                f"v_pk_sub_u16 v{PB+4*c+1}, v{a+1}, v{a+2} op_sel_hi:[1,0] clamp",
                f"v_pk_sub_u16 v{PB+4*c+2}, v{b}, v{a+2} op_sel:[0,1] clamp",
                f"v_pk_sub_u16 v{PB+4*c+3}, v{b+1}, v{a+2} op_sel:[0,1] clamp"]
    l0 = f"v_mfma_f32_16x16x32_bf16 v[56:59], v[152:155], v[{PB}:{PB+3}], 0"
    l1 = f"v_mfma_f32_16x16x32_bf16 v[56:59], v[152:155], v[{PB+4}:{PB+7}], v[56:59]"
    lfin = ["v_rcp_f32 v60, v56", "v_log_f32 v62, v56", "v_fmac_f32 v62, 0x3c000000, v68"]
    tmask = ["s[46:47]", "s[40:41]", "s[42:43]", "s[54:55]"]
    def sel(t):
        a = ACC + 4*t
        A(f"s_mov_b64 exec, {tmask[t]}")
        A(f"v_pk_mul_f32 v[34:35], v[{a+2}:{a+3}], v[60:61] op_sel_hi:[1,0]")
        A(f"v_pk_mul_f32 v[32:33], v[{a}:{a+1}], v[60:61] op_sel_hi:[1,0]")
    A(f"s_waitcnt lgkmcnt({2+len(rest)})")
    for x in rescale(0): A(x)
    A(f"s_waitcnt lgkmcnt({len(rest)})")
    r1 = rescale(1)
    if pvmode == 3:
        for x in r1[:2] + [l0] + r1[2:5] + ["s_waitcnt lgkmcnt(0)", pv0(0)] + r1[5:7] + [pv0(1)] + r1[7:] + [pv0(2), "s_cmp_eq_u32 s62, 0", l1, pv0(3)]: A(x)
        stamp(5)
        A("s_barrier")
        for t in range(4):
            for kb in (2, 3): A(vread(t, kb))
        stamp(6)
        for t in range(4):
            A(f"s_waitcnt lgkmcnt({lg(6-2*t)})"); A(pv1(t))
            if t < 3: A(lfin[t])
        for t in range(4): sel(t)
    else:
        for x in r1[:2] + [l0] + r1[2:] + ["s_cmp_eq_u32 s62, 0"]: A(x)
        stamp(5)
        A("s_barrier")
        for t in range(4):
            for kb in (0, 1): A(vread(t, kb))
        A(l1)
        for t in range(4):
            A(f"s_waitcnt lgkmcnt({lg(6-2*t)})"); A(pv0(t))
        A("s_barrier")
        for t in range(3):
            for kb in (2, 3): A(vread(t, kb))
        for t in range(3):
            A(f"s_waitcnt lgkmcnt({lg(4-2*t)})"); A(pv1(t)); A(lfin[t])
        for t in range(3): sel(t)
        A("s_mov_b64 exec, -1\ns_barrier")
        for kb in (2, 3): A(vread(3, kb))
        stamp(6)
        A("s_waitcnt lgkmcnt(0)"); A(pv1(3))
        sel(3)
    A(f"""
    s_mov_b64 exec, s[48:49]
    v_perm_b32 v66, v34, v35, s52
    v_perm_b32 v64, v32, v35, s50
    v_perm_b32 v65, v33, v35, s51
    s_cbranch_scc0 L_oslow
    global_store_dwordx4 v14, v[64:67], s[28:29]
    s_mov_b64 exec, 0x0101
    global_store_dwordx2 v13, v[62:63], s[28:29]
L_odone:
    s_barrier
    s_mov_b64 exec, -1
    """)
    stamp(7)
    A(f"""
    s_cmp_lt_u32 s31, 28
    s_cbranch_scc1 L_gemv
    """)
    ms = ["s[40:41]", "s[42:43]", "s[56:57]", "s[58:59]"]
    def lissue():
        A(f"global_load_dwordx4 v[{LG}:{LG+3}], v26, s[28:29] sc1")
        A(f"global_load_dwordx4 v[{LG+4}:{LG+7}], v26, s[28:29] offset:16 sc1")
    lissue()
    for a in range(4): A(f"global_load_dwordx4 v[{OG+4*a}:{OG+4*a+3}], v30, s[28:29] offset:{1024*a} sc1")
    WG = 40
    A(f"""
    s_mov_b32 s45, 0
    v_readlane_b32 s37, v62, s33            ; own lse of the head this workgroup combines
    s_mov_b32 s36, {f2u(wlim)}
    v_mov_b32 v59, {TAG}
L_ochk:
    s_waitcnt vmcnt(4)
    v_xor_b32 v56, {TAG}, v{LG+1}
    v_xor_b32 v57, {TAG}, v{LG+3}
    v_xor_b32 v58, {TAG}, v{LG+5}
    v_or3_b32 v56, v56, v57, v58
    v_xor_b32 v57, {TAG}, v{LG+7}
    """)
    for a in range(4): A(f"v_subrev_f32 v{WG+2*a}, s37, v{LG+2*a}")
    A(f"""
    v_or_b32 v56, v56, v57
    v_max_f32 v58, v{WG}, v{WG+2}
    v_cmp_ne_u32 s[54:55], 0, v56
    v_max3_f32 v58, v{WG+4}, v{WG+6}, v58
    """)
    for a in range(4): A(f"v_exp_f32 v{WG+2*a}, v{WG+2*a}")
    A("v_cmp_nge_f32 s[34:35], s36, v58\ns_waitcnt vmcnt(0)")
    for a in range(4): A(f"v_cmp_ne_u32 {ms[a]}, {TAG}, v{OG+4*a+3}")
    for a in range(4): A(f"v_perm_b32 v{33+2*a}, v{OG+4*a}, v{OG+4*a+1}, s60")
    A(f"""
    v_add_f32 v56, v{WG}, v{WG+2}
    s_or_b64 vcc, {ms[0]}, {ms[1]}
    s_or_b64 s[54:55], s[54:55], {ms[2]}
    s_or_b64 vcc, vcc, {ms[3]}
    s_or_b64 vcc, vcc, s[54:55]
    s_cbranch_scc1 L_oretry
L_ook:
    s_cmp_eq_u64 s[34:35], 0
    s_cbranch_scc0 L_truemax
L_wok:
    """)
    stamp(9)
    A(f"v_add_f32 v57, v{WG+4}, v{WG+6}")
    for a in range(4): A(f"v_perm_b32 v{OG+4*a+3}, v{33+2*a}, v{OG+4*a+2}, s61")
    A(f"""
    v_add_f32 v56, v56, v57
    v_pk_mul_f32 v[60:61], v[{OG}:{OG+1}], v[{WG}:{WG+1}] op_sel_hi:[1,0]
    v_pk_mul_f32 v[62:63], v[{OG+2}:{OG+3}], v[{WG}:{WG+1}] op_sel_hi:[1,0]
    v_add_f32_dpp v56, v56, v56 row_ror:8 {DPP}
    v_mov_b32 v57, v56
    """)
    den = [None, ["v_permlane16_swap_b32 v57, v56", "v_add_f32 v56, v56, v57", "v_mov_b32 v57, v56"], ["v_permlane32_swap_b32 v57, v56"], []]
    for a in range(1, 4):
        A(f"v_pk_fma_f32 v[60:61], v[{OG+4*a}:{OG+4*a+1}], v[{WG+2*a}:{WG+2*a+1}], v[60:61] op_sel_hi:[1,0,1]")
        A(f"v_pk_fma_f32 v[62:63], v[{OG+4*a+2}:{OG+4*a+3}], v[{WG+2*a}:{WG+2*a+1}], v[62:63] op_sel_hi:[1,0,1]")
        for x in den[a]: A(x)
    A(f"""
    v_add_f32 v56, v56, v57
    s_cmp_eq_u32 s62, 0
    v_permlane32_swap_b32 v60, v62
    v_permlane32_swap_b32 v61, v63
    v_pk_add_f32 v[60:61], v[60:61], v[62:63]
    v_rcp_f32 v56, v56
    v_permlane16_swap_b32 v60, v61
    v_add_f32 v60, v60, v61
    v_add_f32_dpp v60, v60, v60 row_ror:8 {DPP}
    v_mul_f32 v61, v60, v56
    v_mul_f32 v60, v60, v56
    v_permlane16_swap_b32 v61, v60
    s_mov_b32 exec_lo, 0xff
    s_mov_b32 exec_hi, 0xff
    v_cvt_pk_bf16_f32 v58, v61, v60
    s_cbranch_scc0 L_fslow
    global_store_dwordx2 v28, v[58:59], s[28:29]
L_fdone:
    """)
    stamp(10)
    A("s_barrier")
    finish()
    A("L_oretry:")
    lissue()
    for a in range(4):
        A(f"s_or_b64 exec, {ms[a]}, 1")
        A(f"global_load_dwordx4 v[{OG+4*a}:{OG+4*a+3}], v30, s[28:29] offset:{1024*a} sc1")
    A(f"""
    s_mov_b64 exec, -1
    s_add_u32 s45, s45, 1
    s_cmp_ge_u32 s45, {spin}
    s_cbranch_scc0 L_ochk
    s_waitcnt vmcnt(0)
    s_branch L_ook
L_truemax:
    ; some split outweighs this workgroup's own by more than 2^24: take the true maximum as the reference
    v_max_f32 v56, v{LG}, v{LG+2}
    v_max3_f32 v56, v{LG+4}, v{LG+6}, v56
    v_max_f32_dpp v56, v56, v56 row_ror:8 {DPP}
    v_mov_b32 v57, v56
    v_permlane16_swap_b32 v57, v56
    v_max_f32 v56, v56, v57
    v_mov_b32 v57, v56
    v_permlane32_swap_b32 v57, v56
    v_max_f32 v56, v56, v57
    """)
    for a in range(4): A(f"v_sub_f32 v{WG+2*a}, v{LG+2*a}, v56")
    for a in range(4): A(f"v_exp_f32 v{WG+2*a}, v{WG+2*a}")
    A(f"""
    v_add_f32 v56, v{WG}, v{WG+2}
    s_branch L_wok
L_fslow:
    global_store_dwordx2 v28, v[58:59], s[28:29] sc1
    s_branch L_fdone
    """)
    A(f"""
L_gemv:
    s_cmp_eq_u32 s63, 0
    s_cbranch_scc1 L_noffn
    {"s_barrier" if hlate else ""}
    ds_read_b128 v[72:75], v6
    s_mov_b32 exec_lo, 0x0fff0fff
    s_mov_b32 exec_hi, 0x0fff0fff
    ds_read_b128 v[76:79], v6 offset:1024
    s_mov_b64 exec, -1
    s_waitcnt lgkmcnt(0)
L_hchk:
    v_cmp_ne_u32 vcc, {TAG}, v75
    v_cmp_ne_u32 s[54:55], {TAG}, v79
    v_perm_b32 v82, v72, v73, s60
    v_perm_b32 v83, v76, v77, s60
    s_or_b64 vcc, vcc, s[54:55]
    s_cbranch_scc1 L_hretry
L_hok:
    v_perm_b32 v75, v82, v74, s61
    v_perm_b32 v79, v83, v78, s61
    v_pk_add_f32 v[72:73], v[72:73], v[76:77]
    v_pk_add_f32 v[74:75], v[74:75], v[78:79]
    v_lshlrev_b32 v76, 16, v80
    """)
    for sh in (4, 8):
        for r in range(4): A(f"v_add_f32_dpp v{72+r}, v{72+r}, v{72+r} row_ror:{sh} {DPP}")
    def rnd():
        A("""
        v_cvt_pk_bf16_f32 v82, v72, v73
        v_cvt_pk_bf16_f32 v83, v74, v75
        v_lshlrev_b32 v72, 16, v82
        v_and_b32 v73, 0xffff0000, v82
        v_lshlrev_b32 v74, 16, v83
        v_and_b32 v75, 0xffff0000, v83
        """)
    rnd()
    A("""
    v_and_b32 v77, 0xffff0000, v80
    v_lshlrev_b32 v78, 16, v81
    v_and_b32 v79, 0xffff0000, v81
    v_pk_add_f32 v[72:73], v[72:73], v[76:77]
    v_pk_add_f32 v[74:75], v[74:75], v[78:79]
    """)
    rnd()
    c1 = -2 * LOG2E * 0.7978845608028654
    A(f"""
    v_mov_b32 v80, {f2u(c1)}
    v_pk_mul_f32 v[76:77], v[72:73], v[72:73]
    v_pk_mul_f32 v[78:79], v[74:75], v[74:75]
    """)
    for r in range(4): A(f"v_fmamk_f32 v{76+r}, v{76+r}, {f2u(c1*0.044715)}, v80")
    A("v_pk_mul_f32 v[76:77], v[76:77], v[72:73]\nv_pk_mul_f32 v[78:79], v[78:79], v[74:75]")
    for r in range(4): A(f"v_exp_f32 v{76+r}, v{76+r}")
    for r in range(4): A(f"v_add_f32 v{76+r}, 1.0, v{76+r}")
    for r in range(4): A(f"v_rcp_f32 v{76+r}, v{76+r}")
    A(f"""
    v_pk_mul_f32 v[76:77], v[76:77], v[72:73]
    v_pk_mul_f32 v[78:79], v[78:79], v[74:75]
    v_cvt_pk_bf16_f32 v82, v76, v77
    v_cvt_pk_bf16_f32 v83, v78, v79
    {"" if hlate else "s_barrier"}
    """)
    WF2 = 116
    for b in range(4): A(f"ds_read_b64_tr_b16 v[{WF2+2*b}:{WF2+2*b+1}], v24 offset:{W2L+2048*b}")
    for m in range(4): A(f"v_mov_b64_dpp v[{72+2*m}:{73+2*m}], v[82:83] row_newbcast:{m} {DPP}")
    A(f"""
    s_waitcnt lgkmcnt(0)
    v_mfma_f32_16x16x32_bf16 v[48:51], v[{WF2}:{WF2+3}], v[72:75], 0
    v_mfma_f32_16x16x32_bf16 v[48:51], v[{WF2+4}:{WF2+7}], v[76:79], v[48:51]
L_ffnd:
    s_mov_b32 s45, 0
    v_mov_b32 v55, {TAG}
    s_barrier
    global_load_dwordx4 v[56:59], v28, s[28:29] sc1
    """)
    nb_early = max(0, (fpoll + 1 - 8) // 2)
    for b in range(nb_early): A(f"ds_read_b64_tr_b16 v[{WF2+8+2*b}:{WF2+9+2*b}], v24 offset:{WOL+2048*b}")
    A("s_barrier")
    for b in range(nb_early, 8): A(f"ds_read_b64_tr_b16 v[{WF2+8+2*b}:{WF2+9+2*b}], v24 offset:{WOL+2048*b}")
    stamp(8)
    FS = [56, 68, 100, 104][:fdepth]
    def fcheck(r, tgt, cond):
        A(f"""
        v_cmp_ne_u32 vcc, {TAG}, v{r+1}
        v_cmp_ne_u32 s[54:55], {TAG}, v{r+3}
        v_mov_b32 v108, v{r}
        v_mov_b32 v109, v{r+2}
        s_or_b64 vcc, vcc, s[54:55]
        s_cbranch_scc{cond} {tgt}
        """)
    A("s_waitcnt vmcnt(0)")
    fcheck(56, "L_fretry", 1)
    A("L_fok:")
    stamp(9)
    for kk in range(4):
        for h in range(2):
            A(f"v_mov_b64_dpp v[{84+4*kk+2*h}:{85+4*kk+2*h}], v[108:109] row_newbcast:{2*kk+h} {DPP}")
        if kk == 1: A("s_waitcnt lgkmcnt(0)")
        if kk >= 1: A(f"v_mfma_f32_16x16x32_bf16 v[48:51], v[{WF2+8+4*(kk-1)}:{WF2+11+4*(kk-1)}], v[{84+4*(kk-1)}:{87+4*(kk-1)}], v[48:51]")
    A(f"""
    v_mfma_f32_16x16x32_bf16 v[48:51], v[{WF2+20}:{WF2+23}], v[96:99], v[48:51]
    s_mov_b32 exec_lo, 0x00010001
    s_mov_b32 exec_hi, 0x00010001
    v_perm_b32 v52, v48, v51, s50
    v_perm_b32 v53, v49, v51, s51
    v_perm_b32 v54, v50, v51, s52
    global_store_dwordx4 v29, v[52:55], s[28:29] sc1
    """)
    if near: A("global_store_dwordx4 v30, v[52:55], s[28:29] sc1")
    stamp(10)
    finish()
    A("L_fretry:")
    for r in FS[:-1]: A(f"global_load_dwordx4 v[{r}:{r+3}], v28, s[28:29] sc1")
    A("L_floop:")
    for n, r in enumerate(FS):
        nx = FS[(n - 1) % fdepth]
        A(f"global_load_dwordx4 v[{nx}:{nx+3}], v28, s[28:29] sc1")
        A(f"s_waitcnt vmcnt({fdepth-1})")
        fcheck(r, "L_fok", 0)
    A(f"""
    s_add_u32 s45, s45, 1
    s_cmp_ge_u32 s45, {spin}
    s_cbranch_scc0 L_floop
    s_branch L_fok
L_hretry:
    s_add_u32 s45, s45, 1
    s_cmp_ge_u32 s45, {spin}
    s_cbranch_scc1 L_hok
    global_load_dwordx4 v[72:75], v26, s[28:29] sc1
    s_mov_b32 exec_lo, 0x0fff0fff
    s_mov_b32 exec_hi, 0x0fff0fff
    global_load_dwordx4 v[76:79], v26, s[28:29] offset:1024 sc1
    s_mov_b64 exec, -1
    {"s_add_u32 s91, s91, 0x10000" if stamps else ""}
    s_waitcnt vmcnt(0)
    s_branch L_hchk
L_noffn:
    v_mov_b32 v48, 0
    v_mov_b32 v49, 0
    v_mov_b32 v50, 0
    v_mov_b32 v51, 0
    s_branch L_ffnd
L_oslow:
    global_store_dwordx4 v14, v[64:67], s[28:29] sc1
    s_mov_b64 exec, 0x0101
    global_store_dwordx2 v13, v[62:63], s[28:29] sc1
    s_branch L_odone
L_qslow:
    ; a granule is valid when tag <= word < tag + 16; it differs from tag + xcc when its producer sits on another XCD
    v_subrev_u32 v67, {TAG}, v67
    v_subrev_u32 v71, {TAG}, v71
    v_or_b32 v67, v67, v71
    v_cmp_lt_u32 s[58:59], 15, v67
    s_add_u32 s45, s45, 1
    s_cmp_eq_u64 s[58:59], 0
    s_cbranch_scc1 L_repub
    {"s_cmp_eq_u32 s45, 1" if qins else ""}
    {"s_cbranch_scc1 L_qsecond" if qins else ""}
    s_cmp_eq_u32 s45, 3
    s_cbranch_scc0 L_qagain
L_repub:
    ; the group may span XCDs: write this workgroup's q and h partial sums through to memory
    v_mov_b32 v67, s57
    v_mov_b32 v71, s56
    v_cmp_gt_u32 vcc, 16, v0
    s_cmp_eq_u32 s63, 0
    s_cselect_b32 s34, 0xffff, -1
    s_mov_b32 s35, 0
    v_cndmask_b32 v67, v67, v71, vcc
    v_lshl_add_u32 v67, v1, 4, v67
    s_mov_b32 s40, 0
    s_mov_b64 exec, s[34:35]
L_repub1:
    global_load_dwordx4 v[156:159], v67, s[28:29] sc1
    s_add_u32 s40, s40, 1
    s_cmp_ge_u32 s40, {spin}
    s_waitcnt vmcnt(0)
    s_cbranch_scc1 L_repub2
    v_subrev_u32 v71, {TAG}, v159
    v_cmp_lt_u32 vcc, 15, v71
    s_cbranch_vccnz L_repub1
L_repub2:
    global_store_dwordx4 v67, v[156:159], s[28:29] sc1
    s_mov_b64 exec, -1
    s_waitcnt vmcnt(0)
    v_mov_b32 v67, 1
    s_cmp_eq_u64 s[58:59], 0
    s_cbranch_scc1 L_qok
L_qagain:
    v_mov_b32 v67, 1
    s_cmp_ge_u32 s45, {spin}
    s_cbranch_scc1 L_qok
    global_load_dwordx4 v[64:67], v18, s[28:29] sc1
    global_load_dwordx4 v[68:71], v19, s[28:29] sc1
    {"s_add_u32 s91, s91, 1" if stamps else ""}
    s_waitcnt vmcnt(0)
    s_branch L_qchk
    """)
    if qins:
        A(f"L_qsecond:\ns_waitcnt vmcnt({nqb})")
        if stamps: A("s_add_u32 s91, s91, 0x1000000")
        for e in range(4): A(f"v_mov_b64 v[{64+2*e}:{65+2*e}], v[{160+2*e}:{161+2*e}]")
        A("s_branch L_qchk")
    if stamps:
        A(f"""
L_stamps:
    s_memrealtime s[86:87]
    s_mov_b64 exec, -1
    s_waitcnt vmcnt(0)
    s_memrealtime s[88:89]
    s_waitcnt lgkmcnt(0)
    s_mul_i32 s35, s2, 5
    s_add_u32 s35, s35, s90
    s_lshl_b32 s35, s35, 6
    s_add_u32 s35, s35, {WS_ST}
    v_mov_b32 v2, s35
    """)
        for i in range(13):
            A(f"v_mov_b32 v3, s{64+2*i}")
            A(f"global_store_dword v2, v3, s[28:29] offset:{4*i}")
        A("v_mov_b32 v3, s45"); A("global_store_dword v2, v3, s[28:29] offset:52")
        A("v_mov_b32 v3, s91"); A("global_store_dword v2, v3, s[28:29] offset:56")
    if diag is not None:
        base, mult, idx = diag[:3]
        gsel, who = diag[3:] if len(diag) > 3 else (None, None)
        A(f"""
    s_waitcnt vmcnt(0) lgkmcnt(0)
    s_sub_u32 s34, s{64+2*idx}, s64
    s_cmp_eq_u32 s{64+2*idx}, 0
    s_cselect_b32 s34, 0, s34
    {f"s_cmp_eq_u32 s30, {gsel}" if gsel is not None else ""}
    {"s_cselect_b32 s34, s34, 0" if gsel is not None else ""}
    {"s_cmp_eq_u32 s90, 0" if who else ""}
    {("s_cselect_b32 s34, s34, 0" if who == "L" else "s_cselect_b32 s34, 0, s34") if who else ""}
    s_mul_i32 s34, s34, {mult}
    s_add_u32 s34, s34, {base}
L_diag:
    s_memrealtime s[36:37]
    s_waitcnt lgkmcnt(0)
    s_sub_u32 s36, s36, s64
    s_cmp_lt_u32 s36, s34
    s_cbranch_scc1 L_diag
    """)
    A("L_end:")
    A("s_endpgm")
    if stamps:
        idx = A.L.index("s_lshr_b32 s33, s31, 2                  ; cg")
        for i in range(1, 13): A.L.insert(idx, f"s_mov_b32 s{64+2*i}, 0")
        A.L.insert(idx, "s_mov_b32 s91, 0"); A.L.insert(idx, "s_mov_b32 s90, s3"); A.L.insert(idx, "s_mov_b32 s45, 0")
    A.check()
    head = f"""; fused layernorm + sliding-window GQA decode attention + GELU MLP, one launch of 256 workgroups
; @launch grid=(256,1,1) block=(320,1,1) lds={LDS_TOTAL}
.amdgcn_target "amdgcn-amd-amdhsa--gfx950"
.text
.globl {NAME}_kernel
.p2align 12
.type {NAME}_kernel,@function
{NAME}_kernel:
"""
    tail = f""".fill 1024, 4, 0xbf800000
.section .rodata,"a"
.p2align 6
.amdhsa_kernel {NAME}_kernel
  .amdhsa_next_free_vgpr 168
  .amdhsa_next_free_sgpr 96
  .amdhsa_accum_offset 168
  .amdhsa_group_segment_fixed_size 0
  .amdhsa_kernarg_size 104
  .amdhsa_user_sgpr_count 2
  .amdhsa_user_sgpr_kernarg_segment_ptr 1
  .amdhsa_system_sgpr_workgroup_id_x 1
  .amdhsa_float_denorm_mode_32 3
.end_amdhsa_kernel
"""
    return head + A.text() + tail

if __name__ == "__main__":
    out = sys.argv[1]
    kw = {}
    for a in sys.argv[2:]:
        k, v = a.split("=", 1)
        kw[k] = eval(v)
    open(out, "w").write(gen(**kw))
```

```python
import sys, struct
from asmlib import *

W1L = 0; WQL = 8192; XNL = 22528; QL = 23552; QHS = 576; SL = 24704; SHS = 384; ML = 25472; FLG = 25504
W2L = 25600; WOL = 33792; KL = 50176; VL = 82944; HL = 115712; LDS_TOTAL = 117760
WS_Q = 0x10000; WS_H = 0x20000; WS_L = 0x30000; WS_F = 0x38000; WS_P = 0x40000; WS_R = 0x78000; WS_O = 0x80000; WS_ST = 0x400000
LOG2E = 1.4426950408889634
def f2u(x): return "0x%08x" % struct.unpack("<I", struct.pack("<f", x))[0]

class VM:
    def __init__(self, A): self.A = A; self.ops = []; self.done = -1
    def op(self, name, text): self.A(text); self.ops.append(name)
    def idx(self, name): return max(i for i, n in enumerate(self.ops) if n == name)
    def after(self, name): return len(self.ops) - 1 - self.idx(name)
    def wait(self, name):
        i = self.idx(name)
        if i <= self.done: return
        n = len(self.ops) - 1 - i; assert n <= 63, n
        self.A(f"s_waitcnt vmcnt({n})"); self.done = i
    def fork(self):
        o = VM(self.A); o.ops = list(self.ops); o.done = self.done; return o

def gen(stamps=False, spin=1 << 15, diag=None, force_sc1=False, near=2, nprobe=3, fine=0, cyc=False, wlim=24.0, emu=None,
        nt_w="nt", nt_kv="nt", nt_l="nt", qbar=True, pvmode=1, otouch="b1", hdma="V23", fdepth=2, fpoll=19, qins=0, help0=0, helpk=0, helpat=0, ntfrom=0, ntfromN=None, kvpat=6, othr=32, ofirst=True, ntmask=0xff000000, ntmaskV=None, ntmaskN=None, helpx=0, ntmaskW=0xffffff, nt_w1=None, nb1=0, wup=0, wupat=20, f0=0, pdepth=3, pmask=False, pidx=1, pwide=False, alignc=True, start0=True, alignl=True,
        win0=24, win=24, qidx=60, nb2=4, nWpre=10, cap=None,
        win0N=24, winN=24, qidxN=57, nb2N=4, nWpreN=16, capN=None):
    A = Asm()
    ntw = " " + nt_w if nt_w else ""; ntk = " " + nt_kv if nt_kv else ""; ntl = " " + nt_l if nt_l else ""
    inloader = [True]
    def stamp(i, force=False):
        if fine == 3 and i in (7, 9, 10) and not force and inloader[0]: return
        if stamps: A(f"{'s_memtime' if cyc else 's_memrealtime'} s[{64+2*i}:{65+2*i}]")
    lg = (lambda n: 0) if stamps else (lambda n: n)
    TAG = "s38"
    fin = "L_stamps" if stamps else "L_end"
    def finish():
        if stamps: A("s_branch L_stamps")
        else: A("s_endpgm")
    DPP = "row_mask:0xf bank_mask:0xf"
    hlate = hdma[0] == "W"
    if emu is not None:
        A(f"""
    s_and_b32 s30, s2, 7
    s_cmp_eq_u32 s30, 0
    s_movk_i32 s31, {emu[0]}
    s_cselect_b32 s31, {emu[0] + emu[1]}, s31
L_emu:
    s_memrealtime s[36:37]
    s_waitcnt lgkmcnt(0)
    s_and_b32 s36, s36, 1023
    s_cmp_lt_u32 s36, s31
    s_cbranch_scc1 L_emu
    """)
    stamp(0)
    A(f"""
    s_load_dwordx16 s[4:19], s[0:1], 0      ; x k v wq wo Bx w1 b1
    s_load_dwordx8 s[20:27], s[0:1], 64     ; w2 b2 out dbg
    s_load_dwordx2 s[28:29], s[0:1], 96     ; ws
    s_cmp_ge_u32 s2, 256
    s_cbranch_scc1 L_end
    v_lshrrev_b32 v1, 6, v0
    v_and_b32 v0, 63, v0                    ; lane
    v_readfirstlane_b32 s3, v1              ; wave
    s_and_b32 s30, s2, 7
    s_lshr_b32 s31, s2, 3
    v_lshrrev_b32 v2, 4, v0                 ; s
    v_and_b32 v5, 7, v0
    v_lshrrev_b32 v7, 3, v0
    s_lshr_b32 s33, s31, 2                  ; cg
    s_and_b32 s32, s31, 3                   ; rg
    s_lshl2_add_u32 s44, s30, s32           ; 4g + rg
    s_max_u32 s43, s44, 4
    s_sub_u32 s43, s43, 4
    s_cmp_lt_u32 s31, 28
    s_cselect_b32 s63, s30, 0               ; non-zero: this workgroup has MLP work
    s_cmp_eq_u32 s3, 0
    s_cbranch_scc1 L_loader
    s_getpc_b64 s[40:41]
    s_mul_i32 s34, s31, 384
    v_lshl_add_u32 v3, v5, 6, s34
    global_load_dword v148, v3, s[40:41] offset:704    ; the 32 workgroups of an XCD pull the code into its L2
    v_lshlrev_b32 v3, 4, v0
    v_mov_b32 v140, 0
    v_mov_b32 v141, 0
    v_mov_b32 v142, 0
    v_mov_b32 v143, 0
    s_bfm_b64 exec, 56, 0
    s_waitcnt lgkmcnt(0)
    global_load_dwordx4 v[140:143], v3, s[4:5]
    s_load_dword s38, s[28:29], 0           ; epoch
    s_mov_b64 exec, -1
    s_branch L_comp
    """)
    va = VM(A)
    A(f"""
L_loader:
    v_lshlrev_b32 v6, 1, v2
    v_xor_b32 v6, v5, v6
    v_lshlrev_b32 v6, 4, v6
    s_mul_i32 s34, s32, {112*8192}          ; wq row group rg
    s_lshl_b32 s35, s30, 10
    s_add_u32 s34, s34, s35
    s_xor_b32 s35, s33, 4                   ; wq column block cq
    s_lshl_b32 s35, s35, 7
    s_add_u32 s34, s34, s35
    v_lshl_add_u32 v8, v7, 13, s34
    v_add_u32 v8, v8, v6                    ; wq voffset
    """)
    ish = 9 if kvpat == 0 else 17
    if kvpat == 0:
        A(f"""
    s_lshl_b32 s34, s30, 22
    s_lshl_b32 s35, s31, 15
    s_add_u32 s34, s34, s35
    s_add_u32 s34, s34, 0x300000
    s_movk_i32 s35, {4096 + 512}
    v_mad_u32_u24 v4, v7, s35, v6
    v_add_u32 v4, s34, v4
    """)
    else:
        A(f"""
    s_mul_i32 s34, s30, {(1 << 22) + ((1 << 17) if kvpat == 9 else 0)}
    s_lshr_b32 s35, s31, 3
    s_lshl_b32 s35, s35, 15
    s_add_u32 s34, s34, s35
    s_and_b32 s35, s31, 7
    s_lshl_b32 s35, s35, 9
    s_add_u32 s34, s34, s35
    s_add_u32 s34, s34, 0x300000
    s_movk_i32 s35, {4096 + 512}
    v_mad_u32_u24 v4, v7, s35, v6
    v_xor_b32 v4, s34, v4
    """)
    A(f"""
    s_mov_b32 s37, {65536-1024}
    s_mul_i32 s34, s33, {64*3584}
    s_lshl_b32 s35, s43, 7
    s_add_u32 s34, s34, s35
    s_movk_i32 s35, 3584
    v_mad_u32_u24 v14, v7, s35, v6
    v_add_u32 v14, s34, v14                 ; w1 voffset: rows 64cg.., hidden block
    """)
    if help0:
        A(f"""
    s_sub_u32 s34, s30, 1
    s_lshl_b32 s35, s34, 17
    s_lshl_b32 s36, s30, 10
    s_sub_u32 s35, s35, s36
    v_add_u32 v16, s35, v8
    {f"v_xor_b32 v16, {helpx << 7}, v16" if helpx else ""}
    v_add_u32 v17, 0x10000, v16
    """)
        for m in range(helpk):
            A(f"""
    s_add_u32 s35, s34, {7*m}
    s_lshl_b32 s35, s35, 7
    s_lshl_b32 s36, s30, 22
    v_subrev_u32 v{18+m}, s36, v4
    v_xor_b32 v{18+m}, s35, v{18+m}
    """)
    A(f"""
    s_movk_i32 s36, {28672-1024}
    s_movk_i32 s46, -896
    v_mov_b32 v3, v4
    s_movk_i32 m0, {WQL}
    s_waitcnt lgkmcnt(0)
    """)
    WQS = [f"wq{i}" for i in range(14)]; KS = [f"K{i}" for i in range(32)]; VS = [f"V{i}" for i in range(32)]
    seqF = WQS + [f"w1{i}" for i in range(8)] + KS + VS + [f"W{i}" for i in range(24)]
    at = seqF.index(hdma) + 1; seqF = seqF[:at] + ["H0", "H1"] + seqF[at:]
    seqN = WQS + KS + VS + [f"W{i}" for i in range(8, 24)]
    if ntfromN is None: ntfromN = ntfrom
    if ntmaskV is None: ntmaskV = ntmask
    cur = [ntfrom, ntmask, ntmaskV]
    def issue(vm, n):
        kind = n.rstrip("0123456789") if not n.startswith("w1") else "w1"
        i = int(n[len(kind):])
        ntk = " " + nt_kv if (nt_kv and kind in "KV" and i + (32 if kind == "V" else 0) >= cur[0] and (cur[1 if kind == "K" else 2] >> i) & 1) else ""
        if kind == "wq":
            vm.op(n, f"global_load_lds_dwordx4 v8, s[10:11] offset:{1024*(i&3)}{ntw}")
            if i == 13: pass
            elif i & 3 == 3: A("s_addk_i32 m0, 4096"); A(f"v_add_u32 v8, {65536+3072}, v8")
            else: A("v_add_u32 v8, s37, v8")
        elif kind == "w1":
            vm.op(n, f"global_load_lds_dwordx4 v14, s[16:17] offset:{1024*(i&3)}{ntw if nt_w1 is None else ' ' + nt_w1}")
            if i == 7: pass
            elif i & 3 == 3: A("s_addk_i32 m0, 4096"); A(f"v_add_u32 v14, {28672+3072}, v14")
            else: A("v_add_u32 v14, s36, v14")
        elif kind == "H":
            if i == 0: A(f"s_mov_b32 s40, m0\ns_mov_b32 m0, {HL}")
            else: A("s_mov_b32 exec_hi, 0xffff")
            vm.op(n, f"global_load_lds_dwordx4 v15, s[28:29] offset:{1024*i} sc1")
            if i == 1: A("s_mov_b32 exec_hi, -1\ns_mov_b32 m0, s40")
        elif kind == "V" and i >= 16 and pvmode == 1:
            q, ii = (i - 16) >> 2, (i - 16) & 3
            vm.op(n, f"global_load_lds_dwordx4 v{10+ii}, s[8:9] offset:{128*q}{ntk}")
            if i < 31: A(f"s_addk_i32 m0, {4096 if ii < 3 else 896 - 3*4096}")
        elif kind in "KV":
            vm.op(n, f"global_load_lds_dwordx4 v3, {'s[6:7]' if kind == 'K' else 's[8:9]'} offset:{1024*(i&3)}{ntk}")
            if i & 3 == 3:
                A("s_addk_i32 m0, 4096")
                nx = ((i + 1) >> 2) & 7
                if n != "V31" and (n != "V15" or pvmode != 1): A(f"v_xor_b32 v3, {nx << ish:#x}, v4" if nx else "v_mov_b32 v3, v4")
            else: A("v_add_u32 v3, s46, v3")
        else:
            reg, ptr = ("v8", "s[20:21]") if i < 8 else ("v9", "s[12:13]")
            vm.op(n, f"global_load_lds_dwordx4 {reg}, {ptr} offset:{1024*(i&3)}{ntl if (ntmaskW >> i) & 1 else ''}")
            if i < 23:
                if i & 3 == 3: A("s_addk_i32 m0, 4096")
                if i < 7:
                    grow = lambda i: (32*(i&1) + 4*(i>>1)) * 896 - 1024*(i&3)
                    A(f"v_add_u32 {reg}, {(grow(i+1)-grow(i)) & 0xffffffff:#x}, {reg}")
                elif i > 7:
                    grow = lambda i: (64*((i>>1)&3) + 16*(i>>3) + 8*(i&1)) * 896 - 1024*(i&3)
                    A(f"v_add_u32 {reg}, {(grow(i-7)-grow(i-8)) & 0xffffffff:#x}, {reg}")
    want = ["wq", "trig"] + (["trigB"] if qins else []) + ["k", "b1", "b2"] + (["v1", "v3"] if pvmode == 1 else []) + ["v", "o", "pre", "wo"]
    def schedule(seq, win0, win, qidx, nb2, nWpre, cap):
        pos = {n: i for i, n in enumerate(seq)}
        assert pos["K31"] <= qidx and (pvmode == 3 or qidx <= pos["V15"]), (qidx, pos["K31"])
        tw1 = pos.get("w17", 13)
        acts = []; tprev = -1
        for k, n in enumerate(seq):
            if k < win0: continue
            t = max(k - win, tprev)
            if wup and k - win - wup >= wupat: t = max(k - win - wup, tprev)
            elif wup and t > wupat: t = max(wupat, tprev)
            tprev = t
            if nWpre < 24 and k >= pos[f"W{nWpre}"]:
                tprev = pos["V31"]; acts.append((tprev, 5, k, "issue", n)); continue
            if k > pos["V31"]: t = tprev = min(t, pos["V31"])
            if cap is not None and k > cap and t <= 13:
                tprev = 13; acts.append((13, 1.5, k, "issue", n)); continue
            acts.append((t, 0, k, "issue", n))
            if k == qidx: assert t >= tw1; acts.append((t, 1, 1.5, "bar", "trig"))
            if qins and k == qidx + qins: acts.append((t, 1, 1.7, "bar", "trigB"))
        tk = max(pos["K31"], qidx + qins - win)
        evs = [(13, "wq"), (tw1, "w1"), (tk, "k"), (qidx, "b1")]
        evs += [(qidx, "b2"), (pos["V15"], "v1"), (pos["V27"], "v3")] if pvmode == 1 else [(max(qidx, pos["V15"]), "b2")]
        evs += [(pos["V31"], "v")]
        for e, (t, nm) in enumerate(evs):
            if nm != "w1" or "w17" in pos: acts.append((t, 1, e, "bar", nm))
        for e, (n, nm) in enumerate((("W7", "w2"), (f"W{fpoll}", "pre"), ("W23", "wo"))):
            if n in pos: acts.append((pos[n], 6, e, "bar", nm))
        acts.append((pos["V31"], 4, 0, "bar", "o"))
        acts.sort(key=lambda a: a[:3])
        for nm, cnt in (("b1", nb1), ("b2", nb2)):
            ib2 = [n for n, a in enumerate(acts) if a[4] == nm][0]
            mv = [a for a in acts[ib2:] if a[3] == "issue" and a[1] == 0][:cnt]
            acts = acts[:ib2] + [(acts[ib2][0],) + a[1:] for a in mv] + [a for a in acts[ib2:] if a not in mv]
        order = [a[4] for a in acts if a[3] == "bar"]
        assert [o for o in order if o not in ("w1", "w2")] == want, order
        if "H1" in pos: assert pos["H1"] < (pos["W7"] if hlate else pos["V31"])
        return acts
    def play(vm, seq, a, comb):
        t, _, _, kind, arg = a
        if comb and (kind == "issue" or arg in ("pre", "wo")): return
        if t >= 0: vm.wait(seq[t])
        if kind == "issue":
            issue(vm, arg)
            if arg == "W23": stamp(3)
        else:
            if fine == 3 and arg in ("wq", "w1", "trig", "k", "b1"): stamp({"wq": 4, "w1": 5, "trig": 7, "k": 9, "b1": 10}[arg], True)
            if arg == "v": stamp(6)
            if arg == "wo": stamp(8)
            A("s_barrier")
            if arg == "wq" and qbar: A("s_barrier")
    def helpers():
        if help0:
            A("s_cmp_eq_u32 s30, 0\ns_cbranch_scc1 L_nohelp")
            A("global_load_dword v30, v16, s[10:11]\nglobal_load_dword v30, v17, s[10:11]")
            for m in range(helpk): A(f"global_load_dword v30, v{18+m}, s[6:7]")
            A("L_nohelp:")
    if helpat == 0: helpers()
    for n in WQS: issue(va, n)
    vf = va.fork(); nkF = win0 - 22; nkN = win0N - 14; assert 0 <= nkF <= nkN
    A(f"s_movk_i32 m0, {W1L}\ns_cmp_eq_u32 s63, 0\ns_cbranch_scc1 L_k0")
    for i in range(8): issue(vf, f"w1{i}")
    A(f"L_k0:\ns_mov_b32 m0, {KL}")
    for n in KS[:nkF]: issue(va, n); vf.ops.append(n)
    A("s_cmp_eq_u32 s63, 0\ns_cbranch_scc0 L_k1")
    cur[0] = ntfromN
    if ntmaskN is not None: cur[1:] = ntmaskN
    for n in KS[nkF:nkN]: issue(va, n)
    A(f"""
L_k1:
    s_load_dword s38, s[28:29], 0
    s_lshl_b32 s35, s33, 7
    v_mul_u32_u24 v9, 896, v7
    v_add3_u32 v9, v9, v6, s35
    s_mul_i32 s34, s43, {64*896}
    v_lshrrev_b32 v8, 5, v0
    v_mul_u32_u24 v8, {12*896}, v8
    v_add3_u32 v8, v8, v9, s34              ; w2 voffset: LDS row 16m+4s+r holds unit 16s+4m+r
    s_lshr_b32 s34, s44, 1
    s_lshl_b32 s34, s34, 3
    s_and_b32 s35, s32, 1
    s_add_u32 s34, s34, s35
    s_mul_i32 s34, s34, {32*896}
    v_add_u32 v9, s34, v9                   ; wo voffset: LDS row 64a+16t+c holds dim 64t + 32*(rg&1) + 16a + c
    v_xor_b32 v10, {4 << ish:#x}, v4
    v_xor_b32 v11, {5 << ish:#x}, v4
    v_xor_b32 v12, {6 << ish:#x}, v4
    v_xor_b32 v13, {7 << ish:#x}, v4
    s_lshl_b32 s34, s43, 11
    s_add_u32 s34, s34, {WS_H}
    v_lshl_add_u32 v15, v0, 4, s34
    """)
    stamp(1)
    A("s_cmp_eq_u32 s63, 0\ns_cbranch_scc0 L_loadF")
    acts = schedule(seqN, win0N, winN, qidxN, nb2N, nWpreN, capN)
    split = [n for n, a in enumerate(acts) if a[4] == "V31"][0] + 1
    for a in acts[:split]: play(va, seqN, a, False)
    stamp(2)
    A(f"s_mov_b32 m0, {WOL}\ns_cmp_lt_u32 s31, 28\ns_cbranch_scc0 L_cload")
    vc = va.fork()
    for a in acts[split:]: play(va, seqN, a, False)
    finish()
    A("L_loadF:")
    cur[:] = [ntfrom, ntmask, ntmaskV]
    for a in schedule(seqF, win0, win, qidx, nb2, nWpre, cap):
        play(vf, seqF, a, False)
        if a[4] == "V31":
            stamp(2); A(f"s_movk_i32 m0, {W2L}")
    finish()
    G = 32
    A(f"""
    {".p2align 12" if alignl else ""}
L_cload:
    s_lshr_b32 s35, s43, {1 if pwide else 2}
    s_lshl_b32 s35, s35, 14
    s_and_b32 s47, s43, {1 if pwide else 3}
    s_lshl_b32 s47, s47, {12 if pwide else 11}
    s_add_u32 s47, s47, s35
    s_add_u32 s47, s47, {WS_P}
    v_lshl_add_u32 v29, v0, 4, s47
    {"v_lshrrev_b32 v16, 2, v0" if pwide else ""}
    {"v_lshl_add_u32 v29, v16, 6, v29" if pwide else ""}
    s_lshl_b32 s34, s43, 4
    v_and_b32 v16, 3, v0
    v_lshl_add_u32 v19, v16, 2, v2
    v_add_lshl_u32 v19, v19, s34, 1
    """)
    if near == 2:
        A(f"""
    s_lshl_b32 s48, s43, 8
    s_add_u32 s48, s48, {WS_R}
    s_load_dword s50, s[28:29], s48 glc     ; two idle words, homed like the two copies of P
    s_load_dword s51, s[28:29], s48 offset:0x2100 glc
    """)
    for a in acts[split:]: play(vc, seqN, a, True)
    A(f"""
    s_cmp_eq_u32 s30, 0
    s_cbranch_scc1 {fin}
    global_load_ushort v30, v19, s[4:5]
    global_load_ushort v31, v19, s[22:23]
    s_mov_b32 s60, 0x0c0c0400
    s_mov_b32 s61, 0x0504000c
    s_mov_b32 s45, 0
    s_waitcnt lgkmcnt(0)
    s_mul_i32 s38, s38, 1664525
    s_add_u32 s38, s38, 1013904223          ; tag
    """)
    if near == 2:
        A("s_mov_b32 s49, 0")
        for r in range(nprobe):
            first, second = ((52, ""), (53, " offset:0x2100"))
            A(f"""
            s_not_b32 s53, s51
            s_load_dword s{first[0]}, s[28:29], s48{first[1]} glc
            s_load_dword s{second[0]}, s[28:29], s48{second[1]} glc
            s_waitcnt lgkmcnt(1)
            s_cmp_eq_u32 s53, s51
            s_addc_u32 s49, s49, 0
            s_waitcnt lgkmcnt(0)
            """)
        if stamps: A("s_mov_b32 s91, s49")
        A(f"s_cmp_gt_u32 s49, {nprobe // 2}\ns_cselect_b32 s49, 0x2000, 0\nv_add_u32 v29, s49, v29")
    elif near:
        A("s_add_u32 s48, s47, 0x2000\ns_mov_b32 s50, -1\ns_mov_b32 s51, -1")
        for r in range(nprobe):
            for c in range(2):
                A(f"""
                s_memtime s[52:53]
                s_load_dword s49, s[28:29], s{47+c} glc
                s_waitcnt lgkmcnt(0)
                s_memtime s[54:55]
                s_waitcnt lgkmcnt(0)
                s_sub_u32 s49, s54, s52
                s_min_u32 s{50+c}, s{50+c}, s49
                """)
        A("s_cmp_lt_u32 s51, s50\ns_cselect_b32 s49, 0x2000, 0\nv_add_u32 v29, s49, v29")
        if stamps: A("s_lshl_b32 s91, s51, 16\ns_add_u32 s91, s91, s50")
    A("""
    s_waitcnt vmcnt(0)
    v_lshlrev_b32 v30, 16, v30
    v_lshlrev_b32 v31, 16, v31
    v_add_f32 v30, v30, v31                 ; x + b2
    """)
    stamp(7)
    A("s_barrier")
    stamp(9)
    PM = [("s[4:5]", "s[6:7]"), ("s[8:9]", "s[10:11]"), ("s[12:13]", "s[14:15]"), ("s[16:17]", "s[18:19]")]
    def pissue(k, masked):
        r = 40 + 8*k
        if masked: A(f"s_or_b64 exec, {PM[k][0]}, 1")
        A(f"global_load_dwordx4 v[{r}:{r+3}], v29, s[28:29] sc1")
        if masked: A(f"s_or_b64 exec, {PM[k][1]}, 1")
        A(f"global_load_dwordx4 v[{r+4}:{r+7}], v29, s[28:29] offset:{2048 if pwide else 1024} sc1")
        if masked: A("s_mov_b64 exec, -1")
    def pcheck(k, left, tgt, cond):
        r = 40 + 8*k
        m0_, m1_ = PM[k & 3] if pmask else ("vcc", "s[54:55]")
        A(f"""
    s_waitcnt vmcnt({left})
    v_cmp_ne_u32 {m0_}, {TAG}, v{r+3}
    v_cmp_ne_u32 {m1_}, {TAG}, v{r+7}
    v_perm_b32 v36, v{r}, v{r+1}, s60
    v_perm_b32 v37, v{r+4}, v{r+5}, s60
    v_perm_b32 v36, v36, v{r+2}, s61
    v_perm_b32 v37, v37, v{r+6}, s61
    v_pk_add_f32 v[{G}:{G+1}], v[{r}:{r+1}], v[{r+4}:{r+5}]
    v_add_f32 v{G+2}, v{r+2}, v{r+6}
    v_add_f32 v{G+3}, v36, v37
    s_or_b64 vcc, {m0_}, {m1_}
    s_cbranch_scc{cond} {tgt}
    """)
    if pmask: A(f"s_mov_b64 {PM[pdepth-1][0]}, -1\ns_mov_b64 {PM[pdepth-1][1]}, -1")
    for k in range(pdepth - 1): pissue(k, False)
    A("L_ppoll:")
    for k in range(pdepth):
        pissue((k - 1) % pdepth, pmask)
        if k == 0: A(f"s_add_u32 s45, s45, 1\ns_cmp_ge_u32 s45, {spin}\ns_cbranch_scc1 L_pok")
        if k < pdepth - 1: pcheck(k, 2*(pdepth-1), "L_pok", 0)
        else: pcheck(k, 2*(pdepth-1), "L_ppoll", 1)
    A("L_pok:")
    stamp(10)
    A(f"""
    v_permlane32_swap_b32 v{G}, v{G+2}
    v_permlane32_swap_b32 v{G+1}, v{G+3}
    v_pk_add_f32 v[{G}:{G+1}], v[{G}:{G+1}], v[{G+2}:{G+3}]
    v_permlane16_swap_b32 v{G}, v{G+1}
    v_add_f32 v{G}, v{G}, v{G+1}
    v_add_f32_dpp v{G}, v{G}, v{G} row_ror:4 {DPP}
    v_add_f32_dpp v{G}, v{G}, v{G} row_ror:8 {DPP}
    s_mov_b32 exec_lo, 0x000f000f
    s_mov_b32 exec_hi, 0x000f000f
    v_add_f32 v{G}, v{G}, v30
    v_cvt_pk_bf16_f32 v{G}, v{G}, v{G}
    global_store_short v19, v{G}, s[24:25]
    s_cmp_eq_u32 s43, 0
    s_cbranch_scc0 {fin}
    s_mov_b64 exec, 1
    v_mov_b32 v2, 0
    v_mov_b32 v38, s38
    global_store_dword v2, v38, s[28:29]
    """)
    finish()
    inloader[0] = False
    A(f"""
L_comp:
    s_sub_u32 s3, s3, 1                     ; w
    v_and_b32 v1, 15, v0                    ; n
    v_lshrrev_b32 v8, 3, v1                 ; head = n>>3
    v_and_b32 v16, 3, v0
    s_lshl_b32 s34, s30, 13
    s_xor_b32 s35, s33, 4
    s_lshl3_add_u32 s35, s32, s35
    s_lshl_b32 s35, s35, 8
    s_add_u32 s35, s34, s35
    s_add_u32 s56, s35, {WS_Q}
    s_lshl_b32 s36, s3, 6
    s_add_u32 s35, s56, s36
    v_lshl_add_u32 v30, v2, 4, s35
    s_lshl3_add_u32 s35, s43, s33
    s_lshl_b32 s35, s35, 8
    s_add_u32 s57, s35, {WS_H}
    s_add_u32 s35, s57, s36
    v_lshl_add_u32 v31, v2, 4, s35
    global_load_dword v148, v30, s[28:29]
    global_load_dword v148, v31, s[28:29]
    v_bfe_u32 v14, v0, 2, 3
    v_lshlrev_b32 v14, 7, v14
    v_and_b32 v15, 3, v7
    v_lshl_add_u32 v14, v15, 5, v14
    v_lshl_add_u32 v14, v16, 3, v14
    v_lshrrev_b32 v15, 5, v0
    s_lshl_b32 s36, s3, 5
    v_xor_b32 v24, s36, v14
    v_lshl_add_u32 v20, v15, 12, v24
    v_add_u32 v20, {VL}, v20
    v_lshl_add_u32 v24, v15, 10, v24
    s_mul_i32 s35, s32, 224
    v_lshl_add_u32 v28, v2, 3, s35
    s_lshl_b32 s35, s33, 7
    v_lshl_add_u32 v29, v2, 3, s35
    s_mov_b32 s50, 0x07060503
    s_mov_b32 s51, 0x07060502
    s_mov_b32 s52, 0x07060501
    s_getreg_b32 s39, hwreg(HW_REG_XCC_ID, 0, 4)
    v_mov_b32 v46, 0
    v_mov_b32 v47, 0
    v_mov_b32 v78, 0
    v_mov_b32 v79, 0
    s_mov_b32 s37, 0
    v_mov_b32 v26, 0
    s_cmp_eq_u32 s3, 0
    s_cbranch_scc0 L_noln
    s_waitcnt vmcnt(2)
    """)
    X = 32
    for i in range(4):
        A(f"v_lshlrev_b32 v{X+2*i}, 16, v{140+i}")
        A(f"v_and_b32 v{X+1+2*i}, 0xffff0000, v{140+i}")
    def allreduce_add(r, t):
        for sh in (1, 2, 4, 8):
            A(f"v_add_f32_dpp v{r}, v{r}, v{r} row_ror:{sh} {DPP}")
        A(f"v_mov_b32 v{t}, v{r}")
        A(f"v_permlane16_swap_b32 v{t}, v{r}")
        A(f"v_add_f32 v{r}, v{r}, v{t}")
        A(f"v_mov_b32 v{t}, v{r}")
        A(f"v_permlane32_swap_b32 v{t}, v{r}")
        A(f"v_add_f32 v{r}, v{r}, v{t}")
    A(f"""
    v_pk_add_f32 v[40:41], v[{X}:{X+1}], v[{X+2}:{X+3}]
    v_pk_add_f32 v[42:43], v[{X+4}:{X+5}], v[{X+6}:{X+7}]
    v_pk_add_f32 v[40:41], v[40:41], v[42:43]
    v_add_f32 v40, v40, v41
    """)
    allreduce_add(40, 41)
    A(f"""
    v_mul_f32 v40, {f2u(1/448)}, v40        ; mean
    v_mov_b32 v42, 0
    v_mov_b32 v43, 0
    s_bfm_b64 exec, 56, 0
    """)
    for i in range(4):
        A(f"v_pk_add_f32 v[44:45], v[{X+2*i}:{X+2*i+1}], v[40:41] op_sel_hi:[1,0] neg_lo:[0,1] neg_hi:[0,1]")
        A("v_pk_fma_f32 v[42:43], v[44:45], v[44:45], v[42:43]")
    A("s_mov_b64 exec, -1\nv_add_f32 v42, v42, v43")
    allreduce_add(42, 41)
    A(f"""
    v_mul_f32 v42, {f2u(1/448)}, v42        ; var
    v_cvt_pk_bf16_f32 v40, v40, v42
    v_and_b32 v42, 0xffff0000, v40          ; bf16(var)
    v_lshlrev_b32 v40, 16, v40              ; bf16(mean)
    v_add_f32 v42, {f2u(1e-5)}, v42
    v_cvt_pk_bf16_f32 v42, v42, v42
    v_lshlrev_b32 v42, 16, v42
    v_sqrt_f32 v42, v42
    """)
    for i in range(4): A(f"v_pk_add_f32 v[{X+2*i}:{X+2*i+1}], v[{X+2*i}:{X+2*i+1}], v[40:41] op_sel_hi:[1,0] neg_lo:[0,1] neg_hi:[0,1]")
    A("v_cvt_pk_bf16_f32 v42, v42, v42\nv_lshlrev_b32 v42, 16, v42\nv_rcp_f32 v42, v42")
    for i in range(4): A(f"v_cvt_pk_bf16_f32 v{56+i}, v{X+2*i}, v{X+1+2*i}")
    for i in range(4):
        A(f"v_lshlrev_b32 v{X+2*i}, 16, v{56+i}")
        A(f"v_and_b32 v{X+1+2*i}, 0xffff0000, v{56+i}")
    for i in range(4): A(f"v_pk_mul_f32 v[{X+2*i}:{X+2*i+1}], v[{X+2*i}:{X+2*i+1}], v[42:43] op_sel_hi:[1,0]")
    for i in range(4): A(f"v_cvt_pk_bf16_f32 v{56+i}, v{X+2*i}, v{X+1+2*i}")
    A(f"""
    ds_write_b128 v3, v[56:59] offset:{XNL}
L_noln:
    s_waitcnt lgkmcnt(0)
    s_mul_i32 s38, s38, 1664525
    s_add_u32 s38, s38, 1013904223          ; tag
    s_add_u32 s39, s39, s38
    v_mov_b32 v63, s39
    """)
    stamp(1)
    A("s_barrier")
    XQ = 32; XH = 48; WF = 64
    for b in range(7):
        A(f"ds_read_b64 v[{XQ+2*b}:{XQ+2*b+1}], v28 offset:{XNL+32*b}")
        A(f"ds_read_b64_tr_b16 v[{WF+2*b}:{WF+2*b+1}], v24 offset:{WQL+2048*b}")
    for kk in range(4):
        A(f"s_waitcnt lgkmcnt({lg(max(0, 14-4*(kk+1)))})")
        c = "0" if kk == 0 else "v[56:59]"
        A(f"v_mfma_f32_16x16x32_bf16 v[56:59], v[{WF+4*kk}:{WF+4*kk+3}], v[{XQ+4*kk}:{XQ+4*kk+3}], {c}")
    for b in range(4): A(f"ds_read_b64 v[{XH+2*b}:{XH+2*b+1}], v29 offset:{XNL+32*b}")
    A(f"""
    s_mov_b32 exec_lo, 0x00010001
    s_mov_b32 exec_hi, 0x00010001
    v_perm_b32 v60, v56, v59, s50
    v_perm_b32 v61, v57, v59, s51
    v_perm_b32 v62, v58, v59, s52
    global_store_dwordx4 v30, v[60:63], s[28:29]
    """)
    if qbar: A("s_barrier")
    A("s_mov_b64 exec, -1")
    stamp(2)
    A(f"""
    s_cmp_eq_u32 s63, 0
    s_cbranch_scc1 L_noh
    s_barrier
    """)
    for b in range(4): A(f"ds_read_b64_tr_b16 v[{WF+2*b}:{WF+2*b+1}], v24 offset:{W1L+2048*b}")
    A(f"""
    v_mov_b32 v63, s38
    s_waitcnt lgkmcnt({lg(2)})
    v_mfma_f32_16x16x32_bf16 v[56:59], v[{WF}:{WF+3}], v[{XH}:{XH+3}], 0
    s_waitcnt lgkmcnt(0)
    v_mfma_f32_16x16x32_bf16 v[56:59], v[{WF+4}:{WF+7}], v[{XH+4}:{XH+7}], v[56:59]
    s_lshl_b32 s35, s43, 7
    v_lshl_add_u32 v6, v16, 3, s35
    v_lshl_add_u32 v6, v2, 5, v6            ; b1 offset: unit 64*block + 16s + 4*(n&3)
    global_load_dwordx2 v[80:81], v6, s[18:19]
    s_mov_b32 exec_lo, 0x00010001
    s_mov_b32 exec_hi, 0x00010001
    v_perm_b32 v60, v56, v59, s50
    v_perm_b32 v61, v57, v59, s51
    v_perm_b32 v62, v58, v59, s52
    global_store_dwordx4 v31, v[60:63], s[28:29]
    s_mov_b64 exec, -1
    s_branch L_hdone
L_noh:
    s_cmp_lt_u32 s31, 28
    s_cbranch_scc1 L_hdone
    s_lshl_b32 s36, s30, 11
    s_and_b32 s35, s32, 1
    s_lshl_b32 s35, s35, 10
    s_add_u32 s36, s36, s35
    s_lshr_b32 s35, s3, 1
    s_lshl_b32 s35, s35, 9
    s_add_u32 s36, s36, s35
    s_lshr_b32 s35, s32, 1
    s_lshl_b32 s35, s35, 8
    s_add_u32 s36, s36, s35
    s_add_u32 s36, s36, {WS_L}
    v_lshl_add_u32 v26, v7, 5, s36
    v_lshl_add_u32 v26, v16, 3, v26
    s_lshl2_add_u32 s36, s44, s3
    s_lshl_b32 s35, s36, 12
    s_add_u32 s35, s35, {WS_O}
    v_lshl_add_u32 v30, v0, 4, s35          ; O gather
    s_lshl_b32 s35, s36, 7
    s_add_u32 s35, s35, {WS_F}
    v_lshl_add_u32 v28, v5, 4, s35
    v_lshl_add_u32 v28, v15, 3, v28         ; F store
    global_load_dword v148, v26, s[28:29]
    global_load_dword v148, v28, s[28:29]
    s_lshr_b32 s35, s43, {1 if pwide else 2}
    s_lshl_b32 s35, s35, 14
    s_and_b32 s40, s43, {1 if pwide else 3}
    s_lshl_b32 s40, s40, {12 if pwide else 11}
    s_add_u32 s35, s35, s40
    s_lshl_b32 s40, s3, {10 if pwide else 9}
    s_add_u32 s35, s35, s40
    s_add_u32 s37, s35, {WS_P}
    s_lshl_b32 s36, s43, 5
    s_lshr_b32 s33, s32, 1
    s_lshl_b32 s33, s33, 3
    s_load_dword s41, s[22:23], s36
    s_load_dword s41, s[24:25], s36
    """)
    for e in range(8): A(f"s_load_dword s41, s[28:29], s37 offset:{(128 if pwide else 64)*e}")
    OT = "global_load_dword v148, v14, s[28:29]"
    A(f"""
L_hdone:
    s_lshl_b32 s35, s3, 9
    s_add_u32 s34, s34, s35
    s_add_u32 s34, s34, {WS_Q}
    v_and_b32 v10, 31, v0
    v_lshl_add_u32 v18, v15, 11, s34
    v_lshl_add_u32 v18, v10, 4, v18
    v_add_u32 v19, 0x1000, v18
    s_lshl_b32 s34, s30, 16
    s_lshl_b32 s35, s3, 13
    s_add_u32 s35, s35, s34
    s_lshl_b32 s36, s31, 7
    s_add_u32 s35, s35, s36
    s_add_u32 s35, s35, {WS_O}
    v_lshl_add_u32 v14, v8, 15, s35
    v_lshl_add_u32 v14, v15, 12, v14
    v_and_b32 v9, 1, v2
    v_lshl_add_u32 v14, v9, 6, v14
    v_lshl_add_u32 v14, v16, 4, v14
    {OT if otouch == "early" else ""}
    s_barrier
    """)
    vw = VM(A)
    vw.op("Q", "global_load_dwordx4 v[64:67], v18, s[28:29] sc1")
    vw.op("Q", "global_load_dwordx4 v[68:71], v19, s[28:29] sc1")
    stamp(3)
    A(f"""
    s_lshr_b32 s34, s3, 1
    s_mul_i32 s34, s34, {QHS}
    s_and_b32 s35, s3, 1
    s_lshl_b32 s35, s35, 8
    s_add_u32 s34, s34, s35
    v_lshl_add_u32 v10, v10, 3, s34
    v_lshl_add_u32 v17, v15, 2, v10
    v_mul_u32_u24 v9, {QHS}, v8
    v_lshl_add_u32 v9, v2, 4, v9
    v_mul_u32_u24 v10, {SHS}, v8
    v_lshl_add_u32 v10, v2, 6, v10
    s_lshl_b32 s36, s3, 4
    v_add_u32 v11, s36, v10
    v_lshlrev_b32 v12, 2, v8
    v_mov_b32 v13, 0xff800000
    ds_write_b32 v12, v13 offset:{ML}
    s_lshl_b32 s36, s3, 2
    v_mov_b32 v25, s36
    s_lshl_b32 s36, s3, 13
    s_add_u32 s36, s36, {KL}
    v_lshl_add_u32 v3, v8, 12, s36
    v_lshl_add_u32 v3, v5, 7, v3
    v_and_b32 v4, 6, v0
    v_xor_b32 v4, v4, v2
    v_lshl_add_u32 v3, v4, 4, v3
    v_xor_b32 v4, 64, v3
    s_lshl_b32 s34, s30, 11
    s_lshl_b32 s35, s3, 9
    s_add_u32 s34, s34, s35
    s_and_b32 s35, s31, 7
    s_lshl_b32 s35, s35, 5
    s_add_u32 s34, s34, s35
    s_and_b32 s35, s31, 24
    s_add_u32 s34, s34, s35
    s_add_u32 s34, s34, {WS_L}
    v_lshl_add_u32 v13, v8, 8, s34
    s_mov_b32 s46, 0x01010101
    s_mov_b32 s47, s46
    s_mov_b32 s48, 0x0f0f0f0f
    s_mov_b32 s49, s48
    s_mov_b32 s53, {f2u(LOG2E/16)}
    s_mov_b32 s60, 0x0c0c0400
    s_mov_b32 s61, 0x0504000c
    s_mov_b32 s45, 0
    v_mov_b32 v152, 0x3f803f80
    v_mov_b32 v153, v152
    v_mov_b32 v154, v152
    v_mov_b32 v155, v152
    s_cmp_lt_u32 s31, 28
    s_cbranch_scc1 L_gsetup
    """)
    for e in range(8): A(f"s_load_dword s41, s[28:29], s37 offset:{8192+(128 if pwide else 64)*e}")
    A(f"""
    s_branch L_sdone
    {".p2align 12" if alignc else ""}
L_gsetup:
    v_lshrrev_b32 v6, 2, v1
    v_lshlrev_b32 v6, 8, v6
    v_lshl_add_u32 v6, v2, 6, v6
    v_lshl_add_u32 v6, v16, 4, v6
    s_lshl_b32 s35, s43, 11
    s_add_u32 s35, s35, {WS_H}
    v_add_u32 v26, s35, v6
    v_add_u32 v6, {HL}, v6
    v_mov_b32 v76, 0
    v_mov_b32 v77, 0
    v_mov_b32 v78, 0
    v_mov_b32 v79, s38
    s_lshl_b32 s35, s44, 9
    s_add_u32 s35, s35, {WS_F}
    v_bfe_u32 v28, v0, 2, 1
    v_lshl_add_u32 v28, v28, 8, s35
    v_lshl_add_u32 v28, v2, 6, v28
    v_lshl_add_u32 v28, v16, 4, v28
    s_lshl_b32 s35, s33, {15 if pwide else 14}
    {"s_and_b32 s36, s3, 2" if pwide else ""}
    {"s_lshl_b32 s36, s36, 13" if pwide else ""}
    {"s_add_u32 s35, s35, s36" if pwide else ""}
    {"s_and_b32 s36, s3, 1" if pwide else "s_mov_b32 s36, s3"}
    s_lshl_b32 s36, s36, {12 if pwide else 11}
    s_add_u32 s35, s35, s36
    {"s_lshl3_add_u32 s36, s32, s30" if pidx == 1 else ""}
    {"s_lshr_b32 s36, s30, 2" if pidx == 2 else ""}
    {"s_lshl1_add_u32 s36, s30, s36" if pidx == 2 else ""}
    {"s_and_b32 s36, s36, 7" if pidx == 2 else ""}
    {"s_lshl3_add_u32 s36, s32, s36" if pidx == 2 else ""}
    s_lshl_b32 s36, {"s36" if pidx else "s44"}, {7 if pwide else 6}
    s_add_u32 s35, s35, s36
    s_add_u32 s35, s35, {WS_P}
    v_lshl_add_u32 v29, v2, 4, s35
    v_add_u32 v30, 0x2000, v29
L_sdone:
    """)
    if qins:
        A("s_barrier")
        vw.op("QB", "global_load_dwordx4 v[160:163], v18, s[28:29] sc1")
        vw.op("QB", "global_load_dwordx4 v[164:167], v19, s[28:29] sc1")
    A("s_barrier")
    if otouch == "k": vw.op("T", OT)
    for i in range(8): A(f"ds_read_b128 v[{32+4*i}:{35+4*i}], v{3+(i&1)} offset:{1024*(i>>1)}")
    vw.wait("Q")
    if qins: nqb = vw.after("QB")
    QF = 84; VF = 116
    vreg = lambda t, kb: VF + 16*(kb >> 1) + 4*t + 2*(kb & 1)
    vread = lambda t, kb: f"ds_read_b64_tr_b16 v[{vreg(t,kb)}:{vreg(t,kb)+1}], v20 offset:{8192*kb+1024*t}"
    A(f"""
L_qchk:
    v_cmp_ne_u32 vcc, s39, v67
    v_cmp_ne_u32 s[54:55], s39, v71
    v_perm_b32 v82, v64, v65, s60
    v_perm_b32 v83, v68, v69, s60
    v_perm_b32 v82, v82, v66, s61
    v_perm_b32 v83, v83, v70, s61
    s_or_b64 vcc, vcc, s[54:55]
    s_cbranch_scc1 L_qslow
    v_mov_b32 v67, {1 if force_sc1 else 0}
L_qok:
    """)
    stamp(4)
    A(f"""
    v_add_f32 v64, v64, v68
    v_add_f32 v66, v66, v70
    v_add_f32 v65, v65, v69
    v_add_f32 v82, v82, v83
    v_permlane32_swap_b32 v64, v66
    ds_write_b32 v25, v67 offset:{FLG}
    v_permlane32_swap_b32 v65, v82
    v_add_f32 v64, v64, v66
    v_add_f32 v65, v65, v82
    v_cvt_pk_bf16_f32 v64, v64, v65
    ds_write_b32 v17, v64 offset:{QL}
    v_mov_b32 v83, 0
    s_waitcnt lgkmcnt(0)
    s_barrier
    """)
    if fine == 1: stamp(1)
    for i in range(8):
        A(f"ds_read_b128 v[{QF+4*i}:{QF+4*i+3}], v9 offset:{QL+64*i}")
    if otouch == "b1": vw.op("T", OT)
    for i in range(8):
        A(f"s_waitcnt lgkmcnt({7-i+(1 if i == 7 else 0)})")
        A(f"v_mfma_f32_16x16x32_bf16 v[64:67], v[{32+4*i}:{35+4*i}], v[{QF+4*i}:{QF+4*i+3}], {'0' if i == 0 else 'v[64:67]'}")
        if i == 6: A(f"ds_read_b128 v[156:159], v83 offset:{FLG}")
    if fine == 1: stamp(2)
    A(f"""
    v_cvt_pk_bf16_f32 v68, v64, v65
    v_cvt_pk_bf16_f32 v69, v66, v67
    v_lshlrev_b32 v64, 16, v68
    v_and_b32 v65, 0xffff0000, v68
    v_lshlrev_b32 v66, 16, v69
    v_and_b32 v67, 0xffff0000, v69
    v_max_f32 v68, v64, v65
    v_max3_f32 v68, v66, v67, v68
    v_mul_f32 v68, s53, v68
    v_ceil_f32 v68, v68
    v_fma_f32 v64, v64, s53, -v68
    v_fma_f32 v65, v65, s53, -v68
    v_fma_f32 v66, v66, s53, -v68
    v_fma_f32 v67, v67, s53, -v68
    v_mul_f32 v70, 0x43000000, v68
    s_mov_b64 exec, s[46:47]
    ds_max_f32 v12, v70 offset:{ML}
    v_exp_f32 v64, v64
    v_exp_f32 v65, v65
    v_exp_f32 v66, v66
    v_exp_f32 v67, v67
    v_cvt_pk_bf16_f32 v68, v64, v65
    v_cvt_pk_bf16_f32 v69, v66, v67
    ds_write_b96 v11, v[68:70] offset:{SL}
    s_mov_b64 exec, -1
    s_lshl_b64 s[40:41], s[46:47], 1
    s_lshl_b64 s[42:43], s[46:47], 2
    s_lshl_b64 s[54:55], s[46:47], 3
    s_waitcnt lgkmcnt(2)
    v_or3_b32 v56, v156, v157, v158
    v_or_b32 v56, v56, v159
    v_mov_b32 v63, {TAG}
    v_readfirstlane_b32 s62, v56
    v_mov_b32 v67, {TAG}
    s_waitcnt lgkmcnt(0)
    s_barrier
    ds_read_b32 v68, v12 offset:{ML}
    """)
    if fine == 1: stamp(3)
    Y = 32; PB = 48; ACC = 84; OG = 100; LG = 72
    for w in range(4):
        A(f"ds_read_b128 v[{Y+4*w}:{Y+4*w+3}], v10 offset:{SL+16*w}")
    rest = [(t, kb) for t in range(4) for kb in (0, 1)] if pvmode == 3 else []
    for t, kb in rest: A(vread(t, kb))
    pv0 = lambda t: f"v_mfma_f32_16x16x32_bf16 v[{ACC+4*t}:{ACC+4*t+3}], v[{VF+4*t}:{VF+4*t+3}], v[{PB}:{PB+3}], 0"
    pv1 = lambda t: f"v_mfma_f32_16x16x32_bf16 v[{ACC+4*t}:{ACC+4*t+3}], v[{VF+16+4*t}:{VF+16+4*t+3}], v[{PB+4}:{PB+7}], v[{ACC+4*t}:{ACC+4*t+3}]"
    def rescale(c):
        a, b = Y + 8*c, Y + 8*c + 4
        return [f"v_sub_f32 v{a+2}, v68, v{a+2}", f"v_sub_f32 v{b+2}, v68, v{b+2}", f"v_cvt_u32_f32 v{a+2}, v{a+2}", f"v_cvt_u32_f32 v{b+2}, v{b+2}",
                f"v_cvt_pk_u16_u32 v{a+2}, v{a+2}, v{b+2}",
                f"v_pk_sub_u16 v{PB+4*c}, v{a}, v{a+2} op_sel_hi:[1,0] clamp",
                f"v_pk_sub_u16 v{PB+4*c+1}, v{a+1}, v{a+2} op_sel_hi:[1,0] clamp",
                f"v_pk_sub_u16 v{PB+4*c+2}, v{b}, v{a+2} op_sel:[0,1] clamp",
                f"v_pk_sub_u16 v{PB+4*c+3}, v{b+1}, v{a+2} op_sel:[0,1] clamp"]
    l0 = f"v_mfma_f32_16x16x32_bf16 v[56:59], v[152:155], v[{PB}:{PB+3}], 0"
    l1 = f"v_mfma_f32_16x16x32_bf16 v[56:59], v[152:155], v[{PB+4}:{PB+7}], v[56:59]"
    lfin = ["v_rcp_f32 v60, v56", "v_log_f32 v62, v56", "v_fmac_f32 v62, 0x3c000000, v68"]
    tmask = ["s[46:47]", "s[40:41]", "s[42:43]", "s[54:55]"]
    def sel(t):
        a = ACC + 4*t
        A(f"s_mov_b64 exec, {tmask[t]}")
        A(f"v_pk_mul_f32 v[34:35], v[{a+2}:{a+3}], v[60:61] op_sel_hi:[1,0]")
        A(f"v_pk_mul_f32 v[32:33], v[{a}:{a+1}], v[60:61] op_sel_hi:[1,0]")
    A(f"s_waitcnt lgkmcnt({2+len(rest)})")
    for x in rescale(0): A(x)
    A(f"s_waitcnt lgkmcnt({len(rest)})")
    r1 = rescale(1)
    if pvmode == 3:
        for x in r1[:2] + [l0] + r1[2:5] + ["s_waitcnt lgkmcnt(0)", pv0(0)] + r1[5:7] + [pv0(1)] + r1[7:] + [pv0(2), "s_cmp_eq_u32 s62, 0", l1, pv0(3)]: A(x)
        stamp(5)
        A("s_barrier")
        for t in range(4):
            for kb in (2, 3): A(vread(t, kb))
        stamp(6)
        for t in range(4):
            A(f"s_waitcnt lgkmcnt({lg(6-2*t)})"); A(pv1(t))
            if t < 3: A(lfin[t])
        for t in range(4): sel(t)
    else:
        for x in r1[:2] + [l0] + r1[2:] + ["s_cmp_eq_u32 s62, 0"]: A(x)
        stamp(5)
        A("s_barrier")
        for t in range(4):
            for kb in (0, 1): A(vread(t, kb))
        A(l1)
        for t in range(4):
            A(f"s_waitcnt lgkmcnt({lg(6-2*t)})"); A(pv0(t))
        A("s_barrier")
        for t in range(3):
            for kb in (2, 3): A(vread(t, kb))
        for t in range(3):
            A(f"s_waitcnt lgkmcnt({lg(4-2*t)})"); A(pv1(t)); A(lfin[t])
        for t in range(3): sel(t)
        A("s_mov_b64 exec, -1\ns_barrier")
        for kb in (2, 3): A(vread(3, kb))
        stamp(6)
        A("s_waitcnt lgkmcnt(0)"); A(pv1(3))
        sel(3)
    A(f"""
    s_mov_b64 exec, s[48:49]
    v_perm_b32 v66, v34, v35, s52
    v_perm_b32 v64, v32, v35, s50
    v_perm_b32 v65, v33, v35, s51
    s_cbranch_scc0 L_oslow
    global_store_dwordx4 v14, v[64:67], s[28:29]
    s_mov_b64 exec, 0x0101
    global_store_dwordx2 v13, v[62:63], s[28:29]
L_odone:
    s_barrier
    s_mov_b64 exec, -1
    """)
    stamp(7)
    A(f"""
    s_cmp_lt_u32 s31, 28
    s_cbranch_scc1 L_gemv
    """)
    WG = 40
    ms = ["s[40:41]", "s[42:43]", "s[56:57]", "s[58:59]"]
    lload = f"global_load_dwordx2 v[{LG}:{LG+1}], v26, s[28:29] sc1"
    oload = lambda a: f"global_load_dwordx4 v[{OG+4*a}:{OG+4*a+3}], v30, s[28:29] offset:{1024*a} sc1"
    A(lload)
    for a in range(4): A(oload(a) if ofirst else f"v_not_b32 v{OG+4*a+3}, v63")
    A(f"""
    s_mov_b32 s45, 0
    v_readlane_b32 s37, v62, s33            ; own lse of the head this workgroup combines
    s_mov_b32 s36, {f2u(wlim)}
    v_mov_b32 v59, {TAG}
    s_mov_b32 s46, 0x11111111
    s_mov_b32 s47, s46
L_ochk:
    s_waitcnt vmcnt(0)
    v_cmp_ne_u32 s[54:55], {TAG}, v{LG+1}
    """)
    for a in range(4): A(f"v_cmp_ne_u32 {ms[a]}, {TAG}, v{OG+4*a+3}")
    A(f"""
    v_subrev_f32 v56, s37, v{LG}
    v_perm_b32 v33, v{OG}, v{OG+1}, s60
    v_cmp_nge_f32 vcc, s36, v56
    v_exp_f32 v56, v56
    s_or_b64 s[34:35], {ms[0]}, {ms[1]}
    s_or_b64 s[48:49], {ms[2]}, {ms[3]}
    s_or_b64 s[34:35], s[34:35], s[54:55]
    s_or_b64 s[34:35], s[34:35], s[48:49]
    s_cbranch_scc1 L_oretry
L_ook:
    s_cbranch_vccnz L_truemax
L_wok:
    """)
    stamp(9)
    QP = lambda p: f"quad_perm:[{p}] {DPP}"
    A(f"""
    v_mov_b32_dpp v{WG}, v56 {QP("0,0,0,0")}
    v_add_f32_dpp v57, v56, v56 {QP("1,0,3,2")}
    v_mov_b32_dpp v{WG+2}, v56 {QP("1,1,1,1")}
    v_perm_b32 v{OG+3}, v33, v{OG+2}, s61
    v_add_f32_dpp v57, v57, v57 {QP("2,3,0,1")}
    v_mov_b32_dpp v{WG+4}, v56 {QP("2,2,2,2")}
    v_mov_b32_dpp v{WG+6}, v56 {QP("3,3,3,3")}
    v_add_f32_dpp v56, v57, v57 row_ror:8 {DPP}
    v_pk_mul_f32 v[60:61], v[{OG}:{OG+1}], v[{WG}:{WG+1}] op_sel_hi:[1,0]
    v_mov_b32 v57, v56
    v_pk_mul_f32 v[62:63], v[{OG+2}:{OG+3}], v[{WG}:{WG+1}] op_sel_hi:[1,0]
    """)
    den = [None, ["v_permlane16_swap_b32 v57, v56", "v_add_f32 v56, v56, v57", "v_mov_b32 v57, v56"], ["v_permlane32_swap_b32 v57, v56"], []]
    for a in range(1, 4):
        A(f"v_perm_b32 v{OG+4*a+3}, v{OG+4*a}, v{OG+4*a+1}, s60")
        A(f"v_pk_fma_f32 v[60:61], v[{OG+4*a}:{OG+4*a+1}], v[{WG+2*a}:{WG+2*a+1}], v[60:61] op_sel_hi:[1,0,1]")
        A(f"v_perm_b32 v{OG+4*a+3}, v{OG+4*a+3}, v{OG+4*a+2}, s61")
        for x in den[a]: A(x)
        A(f"v_pk_fma_f32 v[62:63], v[{OG+4*a+2}:{OG+4*a+3}], v[{WG+2*a}:{WG+2*a+1}], v[62:63] op_sel_hi:[1,0,1]")
    A(f"""
    v_add_f32 v56, v56, v57
    s_cmp_eq_u32 s62, 0
    v_permlane32_swap_b32 v60, v62
    v_permlane32_swap_b32 v61, v63
    v_pk_add_f32 v[60:61], v[60:61], v[62:63]
    v_rcp_f32 v56, v56
    v_permlane16_swap_b32 v60, v61
    v_add_f32 v60, v60, v61
    v_add_f32_dpp v60, v60, v60 row_ror:8 {DPP}
    v_mul_f32 v61, v60, v56
    v_mul_f32 v60, v60, v56
    v_permlane16_swap_b32 v61, v60
    s_mov_b32 exec_lo, 0xff
    s_mov_b32 exec_hi, 0xff
    v_cvt_pk_bf16_f32 v58, v61, v60
    s_cbranch_scc0 L_fslow
    global_store_dwordx2 v28, v[58:59], s[28:29]
    """)
    stamp(10)
    A("s_barrier")
    finish()
    A(f"""
L_oretry:
    {lload}
    {"s_bcnt1_i32_b64 s34, s[54:55]" if othr < 32 else ""}
    {f"s_cmp_gt_u32 s34, {2*othr}" if othr < 32 else ""}
    {"s_cbranch_scc1 L_omany" if othr < 32 else ""}
    """)
    for a in range(4):
        A(f"s_or_b64 exec, {ms[a]}, 1\n{oload(a)}")
    A(f"""
L_onext:
    s_mov_b64 exec, -1
    s_add_u32 s45, s45, 1
    s_cmp_ge_u32 s45, {spin}
    s_cbranch_scc0 L_ochk
    s_waitcnt vmcnt(0)
    s_branch L_ook
L_omany:
    """)
    for a in range(4 if othr < 32 else 0):
        A(f"""
        {f"s_lshr_b64 s[54:55], s[54:55], 1" if a else ""}
        s_and_b64 s[34:35], s[54:55], s[46:47]
        s_wqm_b64 s[34:35], s[34:35]
        s_andn2_b64 s[34:35], {ms[a]}, s[34:35]
        s_or_b64 exec, s[34:35], 1
        {oload(a)}
        """)
    A(f"""
    s_branch L_onext
L_truemax:
    ; some split outweighs this workgroup's own by more than 2^24: take the true maximum as the reference
    v_max_f32_dpp v56, v{LG}, v{LG} {QP("1,0,3,2")}
    v_max_f32_dpp v56, v56, v56 {QP("2,3,0,1")}
    v_max_f32_dpp v56, v56, v56 row_ror:8 {DPP}
    v_mov_b32 v57, v56
    v_permlane16_swap_b32 v57, v56
    v_max_f32 v56, v56, v57
    v_mov_b32 v57, v56
    v_permlane32_swap_b32 v57, v56
    v_max_f32 v56, v56, v57
    v_sub_f32 v56, v{LG}, v56
    v_exp_f32 v56, v56
    s_nop 1
    s_branch L_wok
L_fslow:
    global_store_dwordx2 v28, v[58:59], s[28:29] sc1
    s_barrier
    """)
    finish()
    A(f"""
L_gemv:
    s_cmp_eq_u32 s63, 0
    s_cbranch_scc1 L_noffn
    {"s_barrier" if hlate else ""}
    ds_read_b128 v[72:75], v6
    s_mov_b32 exec_lo, 0x0fff0fff
    s_mov_b32 exec_hi, 0x0fff0fff
    ds_read_b128 v[76:79], v6 offset:1024
    s_mov_b64 exec, -1
    s_waitcnt lgkmcnt(0)
L_hchk:
    v_cmp_ne_u32 vcc, {TAG}, v75
    v_cmp_ne_u32 s[54:55], {TAG}, v79
    v_perm_b32 v82, v72, v73, s60
    v_perm_b32 v83, v76, v77, s60
    s_or_b64 vcc, vcc, s[54:55]
    s_cbranch_scc1 L_hretry
L_hok:
    v_perm_b32 v75, v82, v74, s61
    v_perm_b32 v79, v83, v78, s61
    v_pk_add_f32 v[72:73], v[72:73], v[76:77]
    v_pk_add_f32 v[74:75], v[74:75], v[78:79]
    v_lshlrev_b32 v76, 16, v80
    """)
    for sh in (4, 8):
        for r in range(4): A(f"v_add_f32_dpp v{72+r}, v{72+r}, v{72+r} row_ror:{sh} {DPP}")
    def rnd():
        A("""
        v_cvt_pk_bf16_f32 v82, v72, v73
        v_cvt_pk_bf16_f32 v83, v74, v75
        v_lshlrev_b32 v72, 16, v82
        v_and_b32 v73, 0xffff0000, v82
        v_lshlrev_b32 v74, 16, v83
        v_and_b32 v75, 0xffff0000, v83
        """)
    rnd()
    A("""
    v_and_b32 v77, 0xffff0000, v80
    v_lshlrev_b32 v78, 16, v81
    v_and_b32 v79, 0xffff0000, v81
    v_pk_add_f32 v[72:73], v[72:73], v[76:77]
    v_pk_add_f32 v[74:75], v[74:75], v[78:79]
    """)
    rnd()
    c1 = -2 * LOG2E * 0.7978845608028654
    A(f"""
    v_mov_b32 v80, {f2u(c1)}
    v_pk_mul_f32 v[76:77], v[72:73], v[72:73]
    v_pk_mul_f32 v[78:79], v[74:75], v[74:75]
    """)
    for r in range(4): A(f"v_fmamk_f32 v{76+r}, v{76+r}, {f2u(c1*0.044715)}, v80")
    A("v_pk_mul_f32 v[76:77], v[76:77], v[72:73]\nv_pk_mul_f32 v[78:79], v[78:79], v[74:75]")
    for r in range(4): A(f"v_exp_f32 v{76+r}, v{76+r}")
    for r in range(4): A(f"v_add_f32 v{76+r}, 1.0, v{76+r}")
    for r in range(4): A(f"v_rcp_f32 v{76+r}, v{76+r}")
    A(f"""
    v_pk_mul_f32 v[76:77], v[76:77], v[72:73]
    v_pk_mul_f32 v[78:79], v[78:79], v[74:75]
    v_cvt_pk_bf16_f32 v82, v76, v77
    v_cvt_pk_bf16_f32 v83, v78, v79
    {"" if hlate else "s_barrier"}
    """)
    WF2 = 116
    for b in range(4): A(f"ds_read_b64_tr_b16 v[{WF2+2*b}:{WF2+2*b+1}], v24 offset:{W2L+2048*b}")
    for m in range(4): A(f"v_mov_b64_dpp v[{72+2*m}:{73+2*m}], v[82:83] row_newbcast:{m} {DPP}")
    A(f"""
    s_waitcnt lgkmcnt(0)
    v_mfma_f32_16x16x32_bf16 v[48:51], v[{WF2}:{WF2+3}], v[72:75], 0
    v_mfma_f32_16x16x32_bf16 v[48:51], v[{WF2+4}:{WF2+7}], v[76:79], v[48:51]
L_ffnd:
    s_mov_b32 s45, 0
    v_mov_b32 v55, {TAG}
    {"global_load_dwordx4 v[60:63], v28, s[28:29] sc1" if f0 else ""}
    s_barrier
    global_load_dwordx4 v[56:59], v28, s[28:29] sc1
    """)
    nb_early = max(0, (fpoll + 1 - 8) // 2)
    for b in range(nb_early): A(f"ds_read_b64_tr_b16 v[{WF2+8+2*b}:{WF2+9+2*b}], v24 offset:{WOL+2048*b}")
    A("s_barrier")
    for b in range(nb_early, 8): A(f"ds_read_b64_tr_b16 v[{WF2+8+2*b}:{WF2+9+2*b}], v24 offset:{WOL+2048*b}")
    stamp(8)
    FS = [56, 68, 100, 104][:fdepth]
    def fcheck(r, tgt, cond):
        A(f"""
        v_cmp_ne_u32 vcc, {TAG}, v{r+1}
        v_cmp_ne_u32 s[54:55], {TAG}, v{r+3}
        v_mov_b32 v108, v{r}
        v_mov_b32 v109, v{r+2}
        s_or_b64 vcc, vcc, s[54:55]
        s_cbranch_scc{cond} {tgt}
        """)
    if f0:
        A("s_waitcnt vmcnt(1)")
        fcheck(60, "L_fsecond", 1)
    else:
        A("s_waitcnt vmcnt(0)")
        fcheck(56, "L_fretry", 1)
    A("L_fok:")
    stamp(9)
    for kk in range(4):
        for h in range(2):
            A(f"v_mov_b64_dpp v[{84+4*kk+2*h}:{85+4*kk+2*h}], v[108:109] row_newbcast:{2*kk+h} {DPP}")
        if kk == 1: A("s_waitcnt lgkmcnt(0)")
        if kk >= 1: A(f"v_mfma_f32_16x16x32_bf16 v[48:51], v[{WF2+8+4*(kk-1)}:{WF2+11+4*(kk-1)}], v[{84+4*(kk-1)}:{87+4*(kk-1)}], v[48:51]")
    A(f"""
    v_mfma_f32_16x16x32_bf16 v[48:51], v[{WF2+20}:{WF2+23}], v[96:99], v[48:51]
    s_mov_b32 exec_lo, 0x00010001
    s_mov_b32 exec_hi, 0x00010001
    v_perm_b32 v52, v48, v51, s50
    v_perm_b32 v53, v49, v51, s51
    v_perm_b32 v54, v50, v51, s52
    global_store_dwordx4 v29, v[52:55], s[28:29] sc1
    """)
    if near: A("global_store_dwordx4 v30, v[52:55], s[28:29] sc1")
    stamp(10)
    finish()
    if f0:
        A("L_fsecond:\ns_waitcnt vmcnt(0)")
        fcheck(56, "L_fok", 0)
    A("L_fretry:")
    for r in FS[:-1]: A(f"global_load_dwordx4 v[{r}:{r+3}], v28, s[28:29] sc1")
    A("L_floop:")
    for n, r in enumerate(FS):
        nx = FS[(n - 1) % fdepth]
        A(f"global_load_dwordx4 v[{nx}:{nx+3}], v28, s[28:29] sc1")
        A(f"s_waitcnt vmcnt({fdepth-1})")
        fcheck(r, "L_fok", 0)
    A(f"""
    s_add_u32 s45, s45, 1
    s_cmp_ge_u32 s45, {spin}
    s_cbranch_scc0 L_floop
    s_branch L_fok
L_hretry:
    s_add_u32 s45, s45, 1
    s_cmp_ge_u32 s45, {spin}
    s_cbranch_scc1 L_hok
    global_load_dwordx4 v[72:75], v26, s[28:29] sc1
    s_mov_b32 exec_lo, 0x0fff0fff
    s_mov_b32 exec_hi, 0x0fff0fff
    global_load_dwordx4 v[76:79], v26, s[28:29] offset:1024 sc1
    s_mov_b64 exec, -1
    {"s_add_u32 s91, s91, 0x10000" if stamps else ""}
    s_waitcnt vmcnt(0)
    s_branch L_hchk
L_noffn:
    v_mov_b32 v48, 0
    v_mov_b32 v49, 0
    v_mov_b32 v50, 0
    v_mov_b32 v51, 0
    s_branch L_ffnd
L_oslow:
    global_store_dwordx4 v14, v[64:67], s[28:29] sc1
    s_mov_b64 exec, 0x0101
    global_store_dwordx2 v13, v[62:63], s[28:29] sc1
    s_branch L_odone
L_qslow:
    ; a granule is valid when tag <= word < tag + 16; it differs from tag + xcc when its producer sits on another XCD
    v_subrev_u32 v67, {TAG}, v67
    v_subrev_u32 v71, {TAG}, v71
    v_or_b32 v67, v67, v71
    v_cmp_lt_u32 s[58:59], 15, v67
    s_add_u32 s45, s45, 1
    s_cmp_eq_u64 s[58:59], 0
    s_cbranch_scc1 L_repub
    {"s_cmp_eq_u32 s45, 1" if qins else ""}
    {"s_cbranch_scc1 L_qsecond" if qins else ""}
    s_cmp_eq_u32 s45, 3
    s_cbranch_scc0 L_qagain
L_repub:
    ; the group may span XCDs: write this workgroup's q and h partial sums through to memory
    v_mov_b32 v67, s57
    v_mov_b32 v71, s56
    v_cmp_gt_u32 vcc, 16, v0
    s_cmp_eq_u32 s63, 0
    s_cselect_b32 s34, 0xffff, -1
    s_mov_b32 s35, 0
    v_cndmask_b32 v67, v67, v71, vcc
    v_lshl_add_u32 v67, v1, 4, v67
    s_mov_b32 s40, 0
    s_mov_b64 exec, s[34:35]
L_repub1:
    global_load_dwordx4 v[156:159], v67, s[28:29] sc1
    s_add_u32 s40, s40, 1
    s_cmp_ge_u32 s40, {spin}
    s_waitcnt vmcnt(0)
    s_cbranch_scc1 L_repub2
    v_subrev_u32 v71, {TAG}, v159
    v_cmp_lt_u32 vcc, 15, v71
    s_cbranch_vccnz L_repub1
L_repub2:
    global_store_dwordx4 v67, v[156:159], s[28:29] sc1
    s_mov_b64 exec, -1
    s_waitcnt vmcnt(0)
    v_mov_b32 v67, 1
    s_cmp_eq_u64 s[58:59], 0
    s_cbranch_scc1 L_qok
L_qagain:
    v_mov_b32 v67, 1
    s_cmp_ge_u32 s45, {spin}
    s_cbranch_scc1 L_qok
    global_load_dwordx4 v[64:67], v18, s[28:29] sc1
    global_load_dwordx4 v[68:71], v19, s[28:29] sc1
    {"s_add_u32 s91, s91, 1" if stamps else ""}
    s_waitcnt vmcnt(0)
    s_branch L_qchk
    """)
    if qins:
        A(f"L_qsecond:\ns_waitcnt vmcnt({nqb})")
        if stamps: A("s_add_u32 s91, s91, 0x1000000")
        for e in range(4): A(f"v_mov_b64 v[{64+2*e}:{65+2*e}], v[{160+2*e}:{161+2*e}]")
        A("s_branch L_qchk")
    if stamps:
        A(f"""
L_stamps:
    s_memrealtime s[86:87]
    s_mov_b64 exec, -1
    s_waitcnt vmcnt(0)
    s_memrealtime s[88:89]
    s_waitcnt lgkmcnt(0)
    s_mul_i32 s35, s2, 5
    s_add_u32 s35, s35, s90
    s_lshl_b32 s35, s35, 6
    s_add_u32 s35, s35, {WS_ST}
    v_mov_b32 v2, s35
    """)
        for i in range(13):
            A(f"v_mov_b32 v3, s{64+2*i}")
            A(f"global_store_dword v2, v3, s[28:29] offset:{4*i}")
        A("v_mov_b32 v3, s45"); A("global_store_dword v2, v3, s[28:29] offset:52")
        A("v_mov_b32 v3, s91"); A("global_store_dword v2, v3, s[28:29] offset:56")
    if diag is not None:
        base, mult, idx = diag[:3]
        gsel, who = diag[3:] if len(diag) > 3 else (None, None)
        A(f"""
    s_waitcnt vmcnt(0) lgkmcnt(0)
    s_sub_u32 s34, s{64+2*idx}, s64
    s_cmp_eq_u32 s{64+2*idx}, 0
    s_cselect_b32 s34, 0, s34
    {f"s_cmp_eq_u32 s30, {gsel}" if gsel is not None else ""}
    {"s_cselect_b32 s34, s34, 0" if gsel is not None else ""}
    {"s_cmp_eq_u32 s90, 0" if who else ""}
    {("s_cselect_b32 s34, s34, 0" if who == "L" else "s_cselect_b32 s34, 0, s34") if who else ""}
    s_mul_i32 s34, s34, {mult}
    s_add_u32 s34, s34, {base}
    {f"s_cmp_eq_u32 s30, {gsel}" if gsel is not None else ""}
    {"s_cselect_b32 s34, s34, 0" if gsel is not None else ""}
L_diag:
    s_memrealtime s[36:37]
    s_waitcnt lgkmcnt(0)
    s_sub_u32 s36, s36, s64
    s_cmp_lt_u32 s36, s34
    s_cbranch_scc1 L_diag
    """)
    A("L_end:")
    A("s_endpgm")
    if stamps:
        idx = A.L.index("s_lshr_b32 s33, s31, 2                  ; cg")
        for i in range(1, 13): A.L.insert(idx, f"s_mov_b32 s{64+2*i}, 0")
        A.L.insert(idx, "s_mov_b32 s91, 0"); A.L.insert(idx, "s_mov_b32 s90, s3"); A.L.insert(idx, "s_mov_b32 s45, 0")
    A.check()
    head = f"""; fused layernorm + sliding-window GQA decode attention + GELU MLP, one launch of 256 workgroups
; @launch grid=(256,1,1) block=(320,1,1) lds={LDS_TOTAL}
.amdgcn_target "amdgcn-amd-amdhsa--gfx950"
.text
.globl {NAME}_kernel
.p2align 12
{".fill 832, 4, 0xbf800000" if start0 else ""}
.type {NAME}_kernel,@function
{NAME}_kernel:
"""
    tail = f""".fill 1024, 4, 0xbf800000
.section .rodata,"a"
.p2align 6
.amdhsa_kernel {NAME}_kernel
  .amdhsa_next_free_vgpr 168
  .amdhsa_next_free_sgpr 96
  .amdhsa_accum_offset 168
  .amdhsa_group_segment_fixed_size 0
  .amdhsa_kernarg_size 104
  .amdhsa_user_sgpr_count 2
  .amdhsa_user_sgpr_kernarg_segment_ptr 1
  .amdhsa_system_sgpr_workgroup_id_x 1
  .amdhsa_float_denorm_mode_32 3
.end_amdhsa_kernel
"""
    return head + A.text() + tail

if __name__ == "__main__":
    out = sys.argv[1]
    kw = {}
    for a in sys.argv[2:]:
        k, v = a.split("=", 1)
        kw[k] = eval(v)
    open(out, "w").write(gen(**kw))
```

```python
import sys, struct
from asmlib import *

W1L = 0; WQL = 8192; XNL = 22528; QL = 23552; QHS = 576; SL = 24704; SHS = 384; ML = 25472; FLG = 25504
W2L = 25600; WOL = 33792; KL = 50176; VL = 82944; HL = 115712; LDS_TOTAL = 117760
WS_Q = 0x10000; WS_H = 0x20000; WS_L = 0x30000; WS_F = 0x38000; WS_P = 0x40000; WS_R = 0x78000; WS_O = 0x80000; WS_ST = 0x400000
LOG2E = 1.4426950408889634
def f2u(x): return "0x%08x" % struct.unpack("<I", struct.pack("<f", x))[0]

class VM:
    def __init__(self, A): self.A = A; self.ops = []; self.done = -1
    def op(self, name, text): self.A(text); self.ops.append(name)
    def idx(self, name): return max(i for i, n in enumerate(self.ops) if n == name)
    def after(self, name): return len(self.ops) - 1 - self.idx(name)
    def wait(self, name):
        i = self.idx(name)
        if i <= self.done: return
        n = len(self.ops) - 1 - i; assert n <= 63, n
        self.A(f"s_waitcnt vmcnt({n})"); self.done = i
    def fork(self):
        o = VM(self.A); o.ops = list(self.ops); o.done = self.done; return o

def gen(stamps=False, spin=1 << 15, diag=None, force_sc1=False, near=2, nprobe=3, fine=0, cyc=False, wlim=24.0, emu=None,
        nt_w="", nt_kv="", nt_l="", qbar=True, pvmode=1, otouch="b1", hdma="V23", fdepth=2, fpoll=19, qins=0, help0=0, helpk=0, helpat=0, ntfrom=0, ntfromN=None, kvpat=6, othr=32, ofirst=True, ntmask=0xff000000, ntmaskV=None, ntmaskN=None, helpx=0, ntmaskW=0xffffff, nt_w1=None, nb1=0, wup=0, wupat=20, f0=0, pdepth=3, pmask=False, pidx=1, pwide=False, ffmt=1, cfast=1, alignc=True, start0=True, alignl=True,
        win0=24, win=24, qidx=60, nb2=4, nWpre=10, cap=None,
        win0N=24, winN=24, qidxN=57, nb2N=4, nWpreN=16, capN=None):
    A = Asm()
    ntw = " " + nt_w if nt_w else ""; ntk = " " + nt_kv if nt_kv else ""; ntl = " " + nt_l if nt_l else ""
    inloader = [True]
    def stamp(i, force=False):
        if fine == 3 and i in (7, 9, 10) and not force and inloader[0]: return
        if stamps: A(f"{'s_memtime' if cyc else 's_memrealtime'} s[{64+2*i}:{65+2*i}]")
    lg = (lambda n: 0) if stamps else (lambda n: n)
    TAG = "s38"
    fin = "L_stamps" if stamps else "L_end"
    def finish():
        if stamps: A("s_branch L_stamps")
        else: A("s_endpgm")
    DPP = "row_mask:0xf bank_mask:0xf"
    hlate = hdma[0] == "W"
    if emu is not None:
        A(f"""
    s_and_b32 s30, s2, 7
    s_cmp_eq_u32 s30, 0
    s_movk_i32 s31, {emu[0]}
    s_cselect_b32 s31, {emu[0] + emu[1]}, s31
L_emu:
    s_memrealtime s[36:37]
    s_waitcnt lgkmcnt(0)
    s_and_b32 s36, s36, 1023
    s_cmp_lt_u32 s36, s31
    s_cbranch_scc1 L_emu
    """)
    stamp(0)
    A(f"""
    s_load_dwordx16 s[4:19], s[0:1], 0      ; x k v wq wo Bx w1 b1
    s_load_dwordx8 s[20:27], s[0:1], 64     ; w2 b2 out dbg
    s_load_dwordx2 s[28:29], s[0:1], 96     ; ws
    s_cmp_ge_u32 s2, 256
    s_cbranch_scc1 L_end
    v_lshrrev_b32 v1, 6, v0
    v_and_b32 v0, 63, v0                    ; lane
    v_readfirstlane_b32 s3, v1              ; wave
    s_and_b32 s30, s2, 7
    s_lshr_b32 s31, s2, 3
    v_lshrrev_b32 v2, 4, v0                 ; s
    v_and_b32 v5, 7, v0
    v_lshrrev_b32 v7, 3, v0
    s_lshr_b32 s33, s31, 2                  ; cg
    s_and_b32 s32, s31, 3                   ; rg
    s_lshl2_add_u32 s44, s30, s32           ; 4g + rg
    s_max_u32 s43, s44, 4
    s_sub_u32 s43, s43, 4
    s_cmp_lt_u32 s31, 28
    s_cselect_b32 s63, s30, 0               ; non-zero: this workgroup has MLP work
    s_cmp_eq_u32 s3, 0
    s_cbranch_scc1 L_loader
    s_getpc_b64 s[40:41]
    s_mul_i32 s34, s31, 384
    v_lshl_add_u32 v3, v5, 6, s34
    global_load_dword v148, v3, s[40:41] offset:704    ; the 32 workgroups of an XCD pull the code into its L2
    v_lshlrev_b32 v3, 4, v0
    v_mov_b32 v140, 0
    v_mov_b32 v141, 0
    v_mov_b32 v142, 0
    v_mov_b32 v143, 0
    s_bfm_b64 exec, 56, 0
    s_waitcnt lgkmcnt(0)
    global_load_dwordx4 v[140:143], v3, s[4:5]
    s_load_dword s38, s[28:29], 0           ; epoch
    s_mov_b64 exec, -1
    s_branch L_comp
    """)
    va = VM(A)
    A(f"""
L_loader:
    v_lshlrev_b32 v6, 1, v2
    v_xor_b32 v6, v5, v6
    v_lshlrev_b32 v6, 4, v6
    s_mul_i32 s34, s32, {112*8192}          ; wq row group rg
    s_lshl_b32 s35, s30, 10
    s_add_u32 s34, s34, s35
    s_xor_b32 s35, s33, 4                   ; wq column block cq
    s_lshl_b32 s35, s35, 7
    s_add_u32 s34, s34, s35
    v_lshl_add_u32 v8, v7, 13, s34
    v_add_u32 v8, v8, v6                    ; wq voffset
    """)
    ish = 9 if kvpat == 0 else 17
    if kvpat == 0:
        A(f"""
    s_lshl_b32 s34, s30, 22
    s_lshl_b32 s35, s31, 15
    s_add_u32 s34, s34, s35
    s_add_u32 s34, s34, 0x300000
    s_movk_i32 s35, {4096 + 512}
    v_mad_u32_u24 v4, v7, s35, v6
    v_add_u32 v4, s34, v4
    """)
    else:
        A(f"""
    s_mul_i32 s34, s30, {(1 << 22) + ((1 << 17) if kvpat == 9 else 0)}
    s_lshr_b32 s35, s31, 3
    s_lshl_b32 s35, s35, 15
    s_add_u32 s34, s34, s35
    s_and_b32 s35, s31, 7
    s_lshl_b32 s35, s35, 9
    s_add_u32 s34, s34, s35
    s_add_u32 s34, s34, 0x300000
    s_movk_i32 s35, {4096 + 512}
    v_mad_u32_u24 v4, v7, s35, v6
    v_xor_b32 v4, s34, v4
    """)
    A(f"""
    s_mov_b32 s37, {65536-1024}
    s_mul_i32 s34, s33, {64*3584}
    s_lshl_b32 s35, s43, 7
    s_add_u32 s34, s34, s35
    s_movk_i32 s35, 3584
    v_mad_u32_u24 v14, v7, s35, v6
    v_add_u32 v14, s34, v14                 ; w1 voffset: rows 64cg.., hidden block
    """)
    A(f"""
    s_movk_i32 s36, {28672-1024}
    s_movk_i32 s46, -896
    v_mov_b32 v3, v4
    s_movk_i32 m0, {WQL}
    s_waitcnt lgkmcnt(0)
    """)
    WQS = [f"wq{i}" for i in range(14)]; KS = [f"K{i}" for i in range(32)]; VS = [f"V{i}" for i in range(32)]
    seqF = WQS + [f"w1{i}" for i in range(8)] + KS + VS + [f"W{i}" for i in range(24)]
    at = seqF.index(hdma) + 1; seqF = seqF[:at] + ["H0", "H1"] + seqF[at:]
    seqN = WQS + KS + VS + [f"W{i}" for i in range(8, 24)]
    if ntfromN is None: ntfromN = ntfrom
    if ntmaskV is None: ntmaskV = ntmask
    cur = [ntfrom, ntmask, ntmaskV]
    def issue(vm, n):
        kind = n.rstrip("0123456789") if not n.startswith("w1") else "w1"
        i = int(n[len(kind):])
        ntk = " " + nt_kv if (nt_kv and kind in "KV" and i + (32 if kind == "V" else 0) >= cur[0] and (cur[1 if kind == "K" else 2] >> i) & 1) else ""
        if kind == "wq":
            vm.op(n, f"global_load_lds_dwordx4 v8, s[10:11] offset:{1024*(i&3)}{ntw}")
            if i == 13: pass
            elif i & 3 == 3: A("s_addk_i32 m0, 4096"); A(f"v_add_u32 v8, {65536+3072}, v8")
            else: A("v_add_u32 v8, s37, v8")
        elif kind == "w1":
            vm.op(n, f"global_load_lds_dwordx4 v14, s[16:17] offset:{1024*(i&3)}{ntw if nt_w1 is None else ' ' + nt_w1}")
            if i == 7: pass
            elif i & 3 == 3: A("s_addk_i32 m0, 4096"); A(f"v_add_u32 v14, {28672+3072}, v14")
            else: A("v_add_u32 v14, s36, v14")
        elif kind == "H":
            if i == 0: A(f"s_mov_b32 s40, m0\ns_mov_b32 m0, {HL}")
            else: A("s_mov_b32 exec_hi, 0xffff")
            vm.op(n, f"global_load_lds_dwordx4 v15, s[28:29] offset:{1024*i} sc1")
            if i == 1: A("s_mov_b32 exec_hi, -1\ns_mov_b32 m0, s40")
        elif kind == "V" and i >= 16 and pvmode == 1:
            q, ii = (i - 16) >> 2, (i - 16) & 3
            vm.op(n, f"global_load_lds_dwordx4 v{10+ii}, s[8:9] offset:{128*q}{ntk}")
            if i < 31: A(f"s_addk_i32 m0, {4096 if ii < 3 else 896 - 3*4096}")
        elif kind in "KV":
            vm.op(n, f"global_load_lds_dwordx4 v3, {'s[6:7]' if kind == 'K' else 's[8:9]'} offset:{1024*(i&3)}{ntk}")
            if i & 3 == 3:
                A("s_addk_i32 m0, 4096")
                nx = ((i + 1) >> 2) & 7
                if n != "V31" and (n != "V15" or pvmode != 1): A(f"v_xor_b32 v3, {nx << ish:#x}, v4" if nx else "v_mov_b32 v3, v4")
            else: A("v_add_u32 v3, s46, v3")
        else:
            reg, ptr = ("v8", "s[20:21]") if i < 8 else ("v9", "s[12:13]")
            vm.op(n, f"global_load_lds_dwordx4 {reg}, {ptr} offset:{1024*(i&3)}{ntl if (ntmaskW >> i) & 1 else ''}")
            if i < 23:
                if i & 3 == 3: A("s_addk_i32 m0, 4096")
                if i < 7:
                    grow = lambda i: (32*(i&1) + 4*(i>>1)) * 896 - 1024*(i&3)
                    A(f"v_add_u32 {reg}, {(grow(i+1)-grow(i)) & 0xffffffff:#x}, {reg}")
                elif i > 7:
                    grow = lambda i: (64*((i>>1)&3) + 16*(i>>3) + 8*(i&1)) * 896 - 1024*(i&3)
                    A(f"v_add_u32 {reg}, {(grow(i-7)-grow(i-8)) & 0xffffffff:#x}, {reg}")
    want = ["wq", "trig"] + (["trigB"] if qins else []) + ["k", "b1", "b2"] + (["v1", "v3"] if pvmode == 1 else []) + ["v", "o", "pre", "wo"]
    def schedule(seq, win0, win, qidx, nb2, nWpre, cap):
        pos = {n: i for i, n in enumerate(seq)}
        assert pos["K31"] <= qidx and (pvmode == 3 or qidx <= pos["V15"]), (qidx, pos["K31"])
        tw1 = pos.get("w17", 13)
        acts = []; tprev = -1
        for k, n in enumerate(seq):
            if k < win0: continue
            t = max(k - win, tprev)
            if wup and k - win - wup >= wupat: t = max(k - win - wup, tprev)
            elif wup and t > wupat: t = max(wupat, tprev)
            tprev = t
            if nWpre < 24 and k >= pos[f"W{nWpre}"]:
                tprev = pos["V31"]; acts.append((tprev, 5, k, "issue", n)); continue
            if k > pos["V31"]: t = tprev = min(t, pos["V31"])
            if cap is not None and k > cap and t <= 13:
                tprev = 13; acts.append((13, 1.5, k, "issue", n)); continue
            acts.append((t, 0, k, "issue", n))
            if k == qidx: assert t >= tw1; acts.append((t, 1, 1.5, "bar", "trig"))
            if qins and k == qidx + qins: acts.append((t, 1, 1.7, "bar", "trigB"))
        tk = max(pos["K31"], qidx + qins - win)
        evs = [(13, "wq"), (tw1, "w1"), (tk, "k"), (qidx, "b1")]
        evs += [(qidx, "b2"), (pos["V15"], "v1"), (pos["V27"], "v3")] if pvmode == 1 else [(max(qidx, pos["V15"]), "b2")]
        evs += [(pos["V31"], "v")]
        for e, (t, nm) in enumerate(evs):
            if nm != "w1" or "w17" in pos: acts.append((t, 1, e, "bar", nm))
        for e, (n, nm) in enumerate((("W7", "w2"), (f"W{fpoll}", "pre"), ("W23", "wo"))):
            if n in pos: acts.append((pos[n], 6, e, "bar", nm))
        acts.append((pos["V31"], 4, 0, "bar", "o"))
        acts.sort(key=lambda a: a[:3])
        for nm, cnt in (("b1", nb1), ("b2", nb2)):
            ib2 = [n for n, a in enumerate(acts) if a[4] == nm][0]
            mv = [a for a in acts[ib2:] if a[3] == "issue" and a[1] == 0][:cnt]
            acts = acts[:ib2] + [(acts[ib2][0],) + a[1:] for a in mv] + [a for a in acts[ib2:] if a not in mv]
        order = [a[4] for a in acts if a[3] == "bar"]
        assert [o for o in order if o not in ("w1", "w2")] == want, order
        if "H1" in pos: assert pos["H1"] < (pos["W7"] if hlate else pos["V31"])
        return acts
    def play(vm, seq, a, comb):
        t, _, _, kind, arg = a
        if comb and (kind == "issue" or arg in ("pre", "wo")): return
        if t >= 0: vm.wait(seq[t])
        if kind == "issue":
            issue(vm, arg)
            if arg == "W23": stamp(3)
        else:
            if fine == 3 and arg in ("wq", "w1", "trig", "k", "b1"): stamp({"wq": 4, "w1": 5, "trig": 7, "k": 9, "b1": 10}[arg], True)
            if arg == "v": stamp(6)
            if arg == "wo": stamp(8)
            A("s_barrier")
            if arg == "wq" and qbar: A("s_barrier")
    for n in WQS: issue(va, n)
    vf = va.fork(); nkF = win0 - 22; nkN = win0N - 14; assert 0 <= nkF <= nkN
    A(f"s_movk_i32 m0, {W1L}\ns_cmp_eq_u32 s63, 0\ns_cbranch_scc1 L_k0")
    for i in range(8): issue(vf, f"w1{i}")
    A(f"L_k0:\ns_mov_b32 m0, {KL}")
    for n in KS[:nkF]: issue(va, n); vf.ops.append(n)
    A("s_cmp_eq_u32 s63, 0\ns_cbranch_scc0 L_k1")
    cur[0] = ntfromN
    if ntmaskN is not None: cur[1:] = ntmaskN
    for n in KS[nkF:nkN]: issue(va, n)
    A(f"""
L_k1:
    s_load_dword s38, s[28:29], 0
    s_lshl_b32 s35, s33, 7
    v_mul_u32_u24 v9, 896, v7
    v_add3_u32 v9, v9, v6, s35
    s_mul_i32 s34, s43, {64*896}
    v_lshrrev_b32 v8, 5, v0
    v_mul_u32_u24 v8, {12*896}, v8
    v_add3_u32 v8, v8, v9, s34              ; w2 voffset: LDS row 16m+4s+r holds unit 16s+4m+r
    s_lshr_b32 s34, s44, 1
    s_lshl_b32 s34, s34, 3
    s_and_b32 s35, s32, 1
    s_add_u32 s34, s34, s35
    s_mul_i32 s34, s34, {32*896}
    v_add_u32 v9, s34, v9                   ; wo voffset: LDS row 64a+16t+c holds dim 64t + 32*(rg&1) + 16a + c
    v_xor_b32 v10, {4 << ish:#x}, v4
    v_xor_b32 v11, {5 << ish:#x}, v4
    v_xor_b32 v12, {6 << ish:#x}, v4
    v_xor_b32 v13, {7 << ish:#x}, v4
    s_lshl_b32 s34, s43, 11
    s_add_u32 s34, s34, {WS_H}
    v_lshl_add_u32 v15, v0, 4, s34
    """)
    stamp(1)
    A("s_cmp_eq_u32 s63, 0\ns_cbranch_scc0 L_loadF")
    acts = schedule(seqN, win0N, winN, qidxN, nb2N, nWpreN, capN)
    split = [n for n, a in enumerate(acts) if a[4] == "V31"][0] + 1
    for a in acts[:split]: play(va, seqN, a, False)
    stamp(2)
    A(f"s_mov_b32 m0, {WOL}\ns_cmp_lt_u32 s31, 28\ns_cbranch_scc0 L_cload")
    vc = va.fork()
    for a in acts[split:]: play(va, seqN, a, False)
    finish()
    A("L_loadF:")
    cur[:] = [ntfrom, ntmask, ntmaskV]
    for a in schedule(seqF, win0, win, qidx, nb2, nWpre, cap):
        play(vf, seqF, a, False)
        if a[4] == "V31":
            stamp(2); A(f"s_movk_i32 m0, {W2L}")
    finish()
    G = 32
    A(f"""
    {".p2align 12" if alignl else ""}
L_cload:
    s_lshr_b32 s35, s43, {1 if pwide else 2}
    s_lshl_b32 s35, s35, 14
    s_and_b32 s47, s43, {1 if pwide else 3}
    s_lshl_b32 s47, s47, {12 if pwide else 11}
    s_add_u32 s47, s47, s35
    s_add_u32 s47, s47, {WS_P}
    v_lshl_add_u32 v29, v0, 4, s47
    {"v_lshrrev_b32 v16, 2, v0" if pwide else ""}
    {"v_lshl_add_u32 v29, v16, 6, v29" if pwide else ""}
    s_lshl_b32 s34, s43, 4
    v_and_b32 v16, 3, v0
    v_lshl_add_u32 v19, v16, 2, v2
    v_add_lshl_u32 v19, v19, s34, 1
    """)
    if near == 2:
        A(f"""
    s_lshl_b32 s48, s43, 8
    s_add_u32 s48, s48, {WS_R}
    s_load_dword s50, s[28:29], s48 glc     ; two idle words, homed like the two copies of P
    s_load_dword s51, s[28:29], s48 offset:0x2100 glc
    """)
    for a in acts[split:]: play(vc, seqN, a, True)
    A(f"""
    s_cmp_eq_u32 s30, 0
    s_cbranch_scc1 {fin}
    global_load_ushort v30, v19, s[4:5]
    global_load_ushort v31, v19, s[22:23]
    s_mov_b32 s60, 0x0c0c0400
    s_mov_b32 s61, 0x0504000c
    s_mov_b32 s45, 0
    s_waitcnt lgkmcnt(0)
    s_mul_i32 s38, s38, 1664525
    s_add_u32 s38, s38, 1013904223          ; tag
    """)
    if near == 2:
        A("s_mov_b32 s49, 0")
        for r in range(nprobe):
            first, second = ((52, ""), (53, " offset:0x2100"))
            A(f"""
            s_not_b32 s53, s51
            s_load_dword s{first[0]}, s[28:29], s48{first[1]} glc
            s_load_dword s{second[0]}, s[28:29], s48{second[1]} glc
            s_waitcnt lgkmcnt(1)
            s_cmp_eq_u32 s53, s51
            s_addc_u32 s49, s49, 0
            s_waitcnt lgkmcnt(0)
            """)
        if stamps: A("s_mov_b32 s91, s49")
        A(f"s_cmp_gt_u32 s49, {nprobe // 2}\ns_cselect_b32 s49, 0x2000, 0\nv_add_u32 v29, s49, v29")
    elif near:
        A("s_add_u32 s48, s47, 0x2000\ns_mov_b32 s50, -1\ns_mov_b32 s51, -1")
        for r in range(nprobe):
            for c in range(2):
                A(f"""
                s_memtime s[52:53]
                s_load_dword s49, s[28:29], s{47+c} glc
                s_waitcnt lgkmcnt(0)
                s_memtime s[54:55]
                s_waitcnt lgkmcnt(0)
                s_sub_u32 s49, s54, s52
                s_min_u32 s{50+c}, s{50+c}, s49
                """)
        A("s_cmp_lt_u32 s51, s50\ns_cselect_b32 s49, 0x2000, 0\nv_add_u32 v29, s49, v29")
        if stamps: A("s_lshl_b32 s91, s51, 16\ns_add_u32 s91, s91, s50")
    A("""
    s_waitcnt vmcnt(0)
    v_lshlrev_b32 v30, 16, v30
    v_lshlrev_b32 v31, 16, v31
    v_add_f32 v30, v30, v31                 ; x + b2
    """)
    stamp(7)
    A("s_barrier")
    stamp(9)
    PM = [("s[4:5]", "s[6:7]"), ("s[8:9]", "s[10:11]"), ("s[12:13]", "s[14:15]"), ("s[16:17]", "s[18:19]")]
    def pissue(k, masked):
        r = 40 + 8*k
        if masked: A(f"s_or_b64 exec, {PM[k][0]}, 1")
        A(f"global_load_dwordx4 v[{r}:{r+3}], v29, s[28:29] sc1")
        if masked: A(f"s_or_b64 exec, {PM[k][1]}, 1")
        A(f"global_load_dwordx4 v[{r+4}:{r+7}], v29, s[28:29] offset:{2048 if pwide else 1024} sc1")
        if masked: A("s_mov_b64 exec, -1")
    def pcheck(k, left, tgt, cond):
        r = 40 + 8*k
        m0_, m1_ = PM[k & 3] if pmask else ("vcc", "s[54:55]")
        A(f"""
    s_waitcnt vmcnt({left})
    v_cmp_ne_u32 {m0_}, {TAG}, v{r+3}
    v_cmp_ne_u32 {m1_}, {TAG}, v{r+7}
    v_perm_b32 v36, v{r}, v{r+1}, s60
    v_perm_b32 v37, v{r+4}, v{r+5}, s60
    v_perm_b32 v36, v36, v{r+2}, s61
    v_perm_b32 v37, v37, v{r+6}, s61
    v_pk_add_f32 v[{G}:{G+1}], v[{r}:{r+1}], v[{r+4}:{r+5}]
    v_add_f32 v{G+2}, v{r+2}, v{r+6}
    v_add_f32 v{G+3}, v36, v37
    s_or_b64 vcc, {m0_}, {m1_}
    s_cbranch_scc{cond} {tgt}
    """)
    if pmask: A(f"s_mov_b64 {PM[pdepth-1][0]}, -1\ns_mov_b64 {PM[pdepth-1][1]}, -1")
    for k in range(pdepth - 1): pissue(k, False)
    A("L_ppoll:")
    for k in range(pdepth):
        pissue((k - 1) % pdepth, pmask)
        if k == 0: A(f"s_add_u32 s45, s45, 1\ns_cmp_ge_u32 s45, {spin}\ns_cbranch_scc1 L_pok")
        if k < pdepth - 1: pcheck(k, 2*(pdepth-1), "L_pok", 0)
        else: pcheck(k, 2*(pdepth-1), "L_ppoll", 1)
    A("L_pok:")
    stamp(10)
    A(f"""
    v_permlane32_swap_b32 v{G}, v{G+2}
    v_permlane32_swap_b32 v{G+1}, v{G+3}
    v_pk_add_f32 v[{G}:{G+1}], v[{G}:{G+1}], v[{G+2}:{G+3}]
    v_permlane16_swap_b32 v{G}, v{G+1}
    v_add_f32 v{G}, v{G}, v{G+1}
    v_add_f32_dpp v{G}, v{G}, v{G} row_ror:4 {DPP}
    v_add_f32_dpp v{G}, v{G}, v{G} row_ror:8 {DPP}
    s_mov_b32 exec_lo, 0x000f000f
    s_mov_b32 exec_hi, 0x000f000f
    v_add_f32 v{G}, v{G}, v30
    v_cvt_pk_bf16_f32 v{G}, v{G}, v{G}
    global_store_short v19, v{G}, s[24:25]
    s_cmp_eq_u32 s43, 0
    s_cbranch_scc0 {fin}
    s_mov_b64 exec, 1
    v_mov_b32 v2, 0
    v_mov_b32 v38, s38
    global_store_dword v2, v38, s[28:29]
    """)
    finish()
    inloader[0] = False
    A(f"""
L_comp:
    s_sub_u32 s3, s3, 1                     ; w
    v_and_b32 v1, 15, v0                    ; n
    v_lshrrev_b32 v8, 3, v1                 ; head = n>>3
    v_and_b32 v16, 3, v0
    s_lshl_b32 s34, s30, 13
    s_xor_b32 s35, s33, 4
    s_lshl3_add_u32 s35, s32, s35
    s_lshl_b32 s35, s35, 8
    s_add_u32 s35, s34, s35
    s_add_u32 s56, s35, {WS_Q}
    s_lshl_b32 s36, s3, 6
    s_add_u32 s35, s56, s36
    v_lshl_add_u32 v30, v2, 4, s35
    s_lshl3_add_u32 s35, s43, s33
    s_lshl_b32 s35, s35, 8
    s_add_u32 s57, s35, {WS_H}
    s_add_u32 s35, s57, s36
    v_lshl_add_u32 v31, v2, 4, s35
    global_load_dword v148, v30, s[28:29]
    global_load_dword v148, v31, s[28:29]
    v_bfe_u32 v14, v0, 2, 3
    v_lshlrev_b32 v14, 7, v14
    v_and_b32 v15, 3, v7
    v_lshl_add_u32 v14, v15, 5, v14
    v_lshl_add_u32 v14, v16, 3, v14
    v_lshrrev_b32 v15, 5, v0
    s_lshl_b32 s36, s3, 5
    v_xor_b32 v24, s36, v14
    v_lshl_add_u32 v20, v15, 12, v24
    v_add_u32 v20, {VL}, v20
    v_lshl_add_u32 v24, v15, 10, v24
    s_mul_i32 s35, s32, 224
    v_lshl_add_u32 v28, v2, 3, s35
    s_lshl_b32 s35, s33, 7
    v_lshl_add_u32 v29, v2, 3, s35
    s_mov_b32 s50, 0x07060503
    s_mov_b32 s51, 0x07060502
    s_mov_b32 s52, 0x07060501
    s_getreg_b32 s39, hwreg(HW_REG_XCC_ID, 0, 4)
    v_mov_b32 v46, 0
    v_mov_b32 v47, 0
    v_mov_b32 v78, 0
    v_mov_b32 v79, 0
    s_mov_b32 s37, 0
    v_mov_b32 v26, 0
    s_cmp_eq_u32 s3, 0
    s_cbranch_scc0 {"L_help" if help0 else "L_noln"}
    s_waitcnt vmcnt(2)
    """)
    X = 32
    for i in range(4):
        A(f"v_lshlrev_b32 v{X+2*i}, 16, v{140+i}")
        A(f"v_and_b32 v{X+1+2*i}, 0xffff0000, v{140+i}")
    def allreduce_add(r, t):
        for sh in (1, 2, 4, 8):
            A(f"v_add_f32_dpp v{r}, v{r}, v{r} row_ror:{sh} {DPP}")
        A(f"v_mov_b32 v{t}, v{r}")
        A(f"v_permlane16_swap_b32 v{t}, v{r}")
        A(f"v_add_f32 v{r}, v{r}, v{t}")
        A(f"v_mov_b32 v{t}, v{r}")
        A(f"v_permlane32_swap_b32 v{t}, v{r}")
        A(f"v_add_f32 v{r}, v{r}, v{t}")
    A(f"""
    v_pk_add_f32 v[40:41], v[{X}:{X+1}], v[{X+2}:{X+3}]
    v_pk_add_f32 v[42:43], v[{X+4}:{X+5}], v[{X+6}:{X+7}]
    v_pk_add_f32 v[40:41], v[40:41], v[42:43]
    v_add_f32 v40, v40, v41
    """)
    allreduce_add(40, 41)
    A(f"""
    v_mul_f32 v40, {f2u(1/448)}, v40        ; mean
    v_mov_b32 v42, 0
    v_mov_b32 v43, 0
    s_bfm_b64 exec, 56, 0
    """)
    for i in range(4):
        A(f"v_pk_add_f32 v[44:45], v[{X+2*i}:{X+2*i+1}], v[40:41] op_sel_hi:[1,0] neg_lo:[0,1] neg_hi:[0,1]")
        A("v_pk_fma_f32 v[42:43], v[44:45], v[44:45], v[42:43]")
    A("s_mov_b64 exec, -1\nv_add_f32 v42, v42, v43")
    allreduce_add(42, 41)
    A(f"""
    v_mul_f32 v42, {f2u(1/448)}, v42        ; var
    v_cvt_pk_bf16_f32 v40, v40, v42
    v_and_b32 v42, 0xffff0000, v40          ; bf16(var)
    v_lshlrev_b32 v40, 16, v40              ; bf16(mean)
    v_add_f32 v42, {f2u(1e-5)}, v42
    v_cvt_pk_bf16_f32 v42, v42, v42
    v_lshlrev_b32 v42, 16, v42
    v_sqrt_f32 v42, v42
    """)
    for i in range(4): A(f"v_pk_add_f32 v[{X+2*i}:{X+2*i+1}], v[{X+2*i}:{X+2*i+1}], v[40:41] op_sel_hi:[1,0] neg_lo:[0,1] neg_hi:[0,1]")
    A("v_cvt_pk_bf16_f32 v42, v42, v42\nv_lshlrev_b32 v42, 16, v42\nv_rcp_f32 v42, v42")
    for i in range(4): A(f"v_cvt_pk_bf16_f32 v{56+i}, v{X+2*i}, v{X+1+2*i}")
    for i in range(4):
        A(f"v_lshlrev_b32 v{X+2*i}, 16, v{56+i}")
        A(f"v_and_b32 v{X+1+2*i}, 0xffff0000, v{56+i}")
    for i in range(4): A(f"v_pk_mul_f32 v[{X+2*i}:{X+2*i+1}], v[{X+2*i}:{X+2*i+1}], v[42:43] op_sel_hi:[1,0]")
    for i in range(4): A(f"v_cvt_pk_bf16_f32 v{56+i}, v{X+2*i}, v{X+1+2*i}")
    A(f"""
    ds_write_b128 v3, v[56:59] offset:{XNL}
    """)
    if help0:
        assert kvpat == 6
        A(f"""
    s_branch L_noln
L_help:
    s_cmp_eq_u32 s30, 0
    s_cbranch_scc1 L_noln
    s_sub_u32 s40, s30, 1
    v_lshrrev_b32 v32, 2, v0
    s_cmp_eq_u32 s3, 1
    s_cbranch_scc0 L_helpk
    s_mul_i32 s35, s32, 7
    s_add_u32 s35, s35, s40
    s_lshl_b32 s35, s35, 17
    s_xor_b32 s36, s33, {4 ^ helpx}
    s_lshl_b32 s36, s36, 7
    s_add_u32 s35, s35, s36
    v_lshl_add_u32 v32, v32, 13, s35
    v_lshl_add_u32 v32, v16, 5, v32
    global_load_dword v148, v32, s[10:11]
    s_branch L_noln
L_helpk:
    s_cmp_gt_u32 s3, {1 + helpk}
    s_cbranch_scc1 L_noln
    s_sub_u32 s35, s3, 2
    s_mul_i32 s35, s35, 7
    s_add_u32 s40, s40, s35
    s_lshr_b32 s35, s40, 1
    s_lshl_b32 s35, s35, 17
    s_and_b32 s36, s40, 1
    s_lshl_b32 s36, s36, 8
    s_add_u32 s35, s35, s36
    s_lshr_b32 s36, s31, 3
    s_lshl_b32 s36, s36, 15
    s_add_u32 s35, s35, s36
    s_and_b32 s36, s31, 7
    s_lshl_b32 s36, s36, 9
    s_add_u32 s35, s35, s36
    s_add_u32 s35, s35, 0x300000
    v_mul_u32_u24 v32, {4096+512}, v7
    v_lshl_add_u32 v32, v5, 5, v32
    v_xor_b32 v32, s35, v32
    global_load_dword v148, v32, s[6:7]
    """)
    A(f"""
L_noln:
    s_waitcnt lgkmcnt(0)
    s_mul_i32 s38, s38, 1664525
    s_add_u32 s38, s38, 1013904223          ; tag
    s_add_u32 s39, s39, s38
    v_mov_b32 v63, s39
    """)
    stamp(1)
    A("s_barrier")
    XQ = 32; XH = 48; WF = 64
    for b in range(7):
        A(f"ds_read_b64 v[{XQ+2*b}:{XQ+2*b+1}], v28 offset:{XNL+32*b}")
        A(f"ds_read_b64_tr_b16 v[{WF+2*b}:{WF+2*b+1}], v24 offset:{WQL+2048*b}")
    for kk in range(4):
        A(f"s_waitcnt lgkmcnt({lg(max(0, 14-4*(kk+1)))})")
        c = "0" if kk == 0 else "v[56:59]"
        A(f"v_mfma_f32_16x16x32_bf16 v[56:59], v[{WF+4*kk}:{WF+4*kk+3}], v[{XQ+4*kk}:{XQ+4*kk+3}], {c}")
    for b in range(4): A(f"ds_read_b64 v[{XH+2*b}:{XH+2*b+1}], v29 offset:{XNL+32*b}")
    A(f"""
    s_mov_b32 exec_lo, 0x00010001
    s_mov_b32 exec_hi, 0x00010001
    v_perm_b32 v60, v56, v59, s50
    v_perm_b32 v61, v57, v59, s51
    v_perm_b32 v62, v58, v59, s52
    global_store_dwordx4 v30, v[60:63], s[28:29]
    """)
    if qbar: A("s_barrier")
    A("s_mov_b64 exec, -1")
    stamp(2)
    A(f"""
    s_cmp_eq_u32 s63, 0
    s_cbranch_scc1 L_noh
    s_barrier
    """)
    for b in range(4): A(f"ds_read_b64_tr_b16 v[{WF+2*b}:{WF+2*b+1}], v24 offset:{W1L+2048*b}")
    A(f"""
    v_mov_b32 v63, s38
    s_waitcnt lgkmcnt({lg(2)})
    v_mfma_f32_16x16x32_bf16 v[56:59], v[{WF}:{WF+3}], v[{XH}:{XH+3}], 0
    s_waitcnt lgkmcnt(0)
    v_mfma_f32_16x16x32_bf16 v[56:59], v[{WF+4}:{WF+7}], v[{XH+4}:{XH+7}], v[56:59]
    s_lshl_b32 s35, s43, 7
    v_lshl_add_u32 v6, v16, 3, s35
    v_lshl_add_u32 v6, v2, 5, v6            ; b1 offset: unit 64*block + 16s + 4*(n&3)
    global_load_dwordx2 v[80:81], v6, s[18:19]
    s_mov_b32 exec_lo, 0x00010001
    s_mov_b32 exec_hi, 0x00010001
    v_perm_b32 v60, v56, v59, s50
    v_perm_b32 v61, v57, v59, s51
    v_perm_b32 v62, v58, v59, s52
    global_store_dwordx4 v31, v[60:63], s[28:29]
    s_mov_b64 exec, -1
    s_branch L_hdone
L_noh:
    s_cmp_lt_u32 s31, 28
    s_cbranch_scc1 L_hdone
    s_lshl_b32 s36, s30, 11
    s_and_b32 s35, s32, 1
    s_lshl_b32 s35, s35, 10
    s_add_u32 s36, s36, s35
    s_lshr_b32 s35, s3, 1
    s_lshl_b32 s35, s35, 9
    s_add_u32 s36, s36, s35
    s_lshr_b32 s35, s32, 1
    s_lshl_b32 s35, s35, 8
    s_add_u32 s36, s36, s35
    s_add_u32 s36, s36, {WS_L}
    v_lshl_add_u32 v26, v7, 5, s36
    v_lshl_add_u32 v26, v16, 3, v26
    s_lshl2_add_u32 s36, s44, s3
    s_lshl_b32 s35, s36, 12
    s_add_u32 s35, s35, {WS_O}
    v_lshl_add_u32 v30, v0, 4, s35          ; O gather
    s_lshl_b32 s35, s36, 7
    s_add_u32 s35, s35, {WS_F}
    v_lshl_add_u32 v28, v5, 4, s35
    {"v_lshl_add_u32 v28, v15, 3, v28         ; F store" if not ffmt else ""}
    global_load_dword v148, v26, s[28:29]
    global_load_dword v148, v28, s[28:29]
    s_lshr_b32 s35, s43, {1 if pwide else 2}
    s_lshl_b32 s35, s35, 14
    s_and_b32 s40, s43, {1 if pwide else 3}
    s_lshl_b32 s40, s40, {12 if pwide else 11}
    s_add_u32 s35, s35, s40
    s_lshl_b32 s40, s3, {10 if pwide else 9}
    s_add_u32 s35, s35, s40
    s_add_u32 s37, s35, {WS_P}
    s_lshl_b32 s36, s43, 5
    s_lshr_b32 s33, s32, 1
    s_lshl_b32 s33, s33, 3
    s_load_dword s41, s[22:23], s36
    s_load_dword s41, s[24:25], s36
    """)
    for e in range(8): A(f"s_load_dword s41, s[28:29], s37 offset:{(128 if pwide else 64)*e}")
    OT = "global_load_dword v148, v14, s[28:29]"
    A(f"""
L_hdone:
    s_lshl_b32 s35, s3, 9
    s_add_u32 s34, s34, s35
    s_add_u32 s34, s34, {WS_Q}
    v_and_b32 v10, 31, v0
    v_lshl_add_u32 v18, v15, 11, s34
    v_lshl_add_u32 v18, v10, 4, v18
    v_add_u32 v19, 0x1000, v18
    s_lshl_b32 s34, s30, 16
    s_lshl_b32 s35, s3, 13
    s_add_u32 s35, s35, s34
    s_lshl_b32 s36, s31, 7
    s_add_u32 s35, s35, s36
    s_add_u32 s35, s35, {WS_O}
    v_lshl_add_u32 v14, v8, 15, s35
    v_lshl_add_u32 v14, v15, 12, v14
    v_and_b32 v9, 1, v2
    v_lshl_add_u32 v14, v9, 6, v14
    v_lshl_add_u32 v14, v16, 4, v14
    {OT if otouch == "early" else ""}
    s_barrier
    """)
    vw = VM(A)
    vw.op("Q", "global_load_dwordx4 v[64:67], v18, s[28:29] sc1")
    vw.op("Q", "global_load_dwordx4 v[68:71], v19, s[28:29] sc1")
    stamp(3)
    A(f"""
    s_lshr_b32 s34, s3, 1
    s_mul_i32 s34, s34, {QHS}
    s_and_b32 s35, s3, 1
    s_lshl_b32 s35, s35, 8
    s_add_u32 s34, s34, s35
    v_lshl_add_u32 v10, v10, 3, s34
    v_lshl_add_u32 v17, v15, 2, v10
    v_mul_u32_u24 v9, {QHS}, v8
    v_lshl_add_u32 v9, v2, 4, v9
    v_mul_u32_u24 v10, {SHS}, v8
    v_lshl_add_u32 v10, v2, 6, v10
    s_lshl_b32 s36, s3, 4
    v_add_u32 v11, s36, v10
    v_lshlrev_b32 v12, 2, v8
    v_mov_b32 v13, 0xff800000
    ds_write_b32 v12, v13 offset:{ML}
    s_lshl_b32 s36, s3, 2
    v_mov_b32 v25, s36
    s_lshl_b32 s36, s3, 13
    s_add_u32 s36, s36, {KL}
    v_lshl_add_u32 v3, v8, 12, s36
    v_lshl_add_u32 v3, v5, 7, v3
    v_and_b32 v4, 6, v0
    v_xor_b32 v4, v4, v2
    v_lshl_add_u32 v3, v4, 4, v3
    v_xor_b32 v4, 64, v3
    s_lshl_b32 s34, s30, 11
    s_lshl_b32 s35, s3, 9
    s_add_u32 s34, s34, s35
    s_and_b32 s35, s31, 7
    s_lshl_b32 s35, s35, 5
    s_add_u32 s34, s34, s35
    s_and_b32 s35, s31, 24
    s_add_u32 s34, s34, s35
    s_add_u32 s34, s34, {WS_L}
    v_lshl_add_u32 v13, v8, 8, s34
    s_mov_b32 s46, 0x01010101
    s_mov_b32 s47, s46
    s_mov_b32 s48, 0x0f0f0f0f
    s_mov_b32 s49, s48
    s_mov_b32 s53, {f2u(LOG2E/16)}
    s_mov_b32 s60, 0x0c0c0400
    s_mov_b32 s61, 0x0504000c
    s_mov_b32 s45, 0
    v_mov_b32 v152, 0x3f803f80
    v_mov_b32 v153, v152
    v_mov_b32 v154, v152
    v_mov_b32 v155, v152
    s_cmp_lt_u32 s31, 28
    s_cbranch_scc1 L_gsetup
    """)
    for e in range(8): A(f"s_load_dword s41, s[28:29], s37 offset:{8192+(128 if pwide else 64)*e}")
    A(f"""
    s_branch L_sdone
    {".p2align 12" if alignc else ""}
L_gsetup:
    v_lshrrev_b32 v6, 2, v1
    v_lshlrev_b32 v6, 8, v6
    v_lshl_add_u32 v6, v2, 6, v6
    v_lshl_add_u32 v6, v16, 4, v6
    s_lshl_b32 s35, s43, 11
    s_add_u32 s35, s35, {WS_H}
    v_add_u32 v26, s35, v6
    v_add_u32 v6, {HL}, v6
    v_mov_b32 v76, 0
    v_mov_b32 v77, 0
    v_mov_b32 v78, 0
    v_mov_b32 v79, s38
    s_lshl_b32 s35, s44, 9
    s_add_u32 s35, s35, {WS_F}
    v_bfe_u32 v28, v0, 2, 1
    v_lshl_add_u32 v28, v28, 8, s35
    v_lshl_add_u32 v28, v2, 6, v28
    v_lshl_add_u32 v28, v16, 4, v28
    s_lshl_b32 s35, s33, {15 if pwide else 14}
    {"s_and_b32 s36, s3, 2" if pwide else ""}
    {"s_lshl_b32 s36, s36, 13" if pwide else ""}
    {"s_add_u32 s35, s35, s36" if pwide else ""}
    {"s_and_b32 s36, s3, 1" if pwide else "s_mov_b32 s36, s3"}
    s_lshl_b32 s36, s36, {12 if pwide else 11}
    s_add_u32 s35, s35, s36
    {"s_lshl3_add_u32 s36, s32, s30" if pidx == 1 else ""}
    {"s_lshr_b32 s36, s30, 2" if pidx == 2 else ""}
    {"s_lshl1_add_u32 s36, s30, s36" if pidx == 2 else ""}
    {"s_and_b32 s36, s36, 7" if pidx == 2 else ""}
    {"s_lshl3_add_u32 s36, s32, s36" if pidx == 2 else ""}
    s_lshl_b32 s36, {"s36" if pidx else "s44"}, {7 if pwide else 6}
    s_add_u32 s35, s35, s36
    s_add_u32 s35, s35, {WS_P}
    v_lshl_add_u32 v29, v2, 4, s35
    v_add_u32 v30, 0x2000, v29
L_sdone:
    """)
    if qins:
        A("s_barrier")
        vw.op("QB", "global_load_dwordx4 v[160:163], v18, s[28:29] sc1")
        vw.op("QB", "global_load_dwordx4 v[164:167], v19, s[28:29] sc1")
    A("s_barrier")
    if otouch == "k": vw.op("T", OT)
    for i in range(8): A(f"ds_read_b128 v[{32+4*i}:{35+4*i}], v{3+(i&1)} offset:{1024*(i>>1)}")
    vw.wait("Q")
    if qins: nqb = vw.after("QB")
    QF = 84; VF = 116
    vreg = lambda t, kb: VF + 16*(kb >> 1) + 4*t + 2*(kb & 1)
    vread = lambda t, kb: f"ds_read_b64_tr_b16 v[{vreg(t,kb)}:{vreg(t,kb)+1}], v20 offset:{8192*kb+1024*t}"
    A(f"""
L_qchk:
    v_cmp_ne_u32 vcc, s39, v67
    v_cmp_ne_u32 s[54:55], s39, v71
    v_perm_b32 v82, v64, v65, s60
    v_perm_b32 v83, v68, v69, s60
    v_perm_b32 v82, v82, v66, s61
    v_perm_b32 v83, v83, v70, s61
    s_or_b64 vcc, vcc, s[54:55]
    s_cbranch_scc1 L_qslow
    v_mov_b32 v67, {1 if force_sc1 else 0}
L_qok:
    """)
    stamp(4)
    A(f"""
    v_add_f32 v64, v64, v68
    v_add_f32 v66, v66, v70
    v_add_f32 v65, v65, v69
    v_add_f32 v82, v82, v83
    v_permlane32_swap_b32 v64, v66
    ds_write_b32 v25, v67 offset:{FLG}
    v_permlane32_swap_b32 v65, v82
    v_add_f32 v64, v64, v66
    v_add_f32 v65, v65, v82
    v_cvt_pk_bf16_f32 v64, v64, v65
    ds_write_b32 v17, v64 offset:{QL}
    v_mov_b32 v83, 0
    s_waitcnt lgkmcnt(0)
    s_barrier
    """)
    if fine == 1: stamp(1)
    for i in range(8):
        A(f"ds_read_b128 v[{QF+4*i}:{QF+4*i+3}], v9 offset:{QL+64*i}")
    if otouch == "b1": vw.op("T", OT)
    for i in range(8):
        A(f"s_waitcnt lgkmcnt({7-i+(1 if i == 7 else 0)})")
        A(f"v_mfma_f32_16x16x32_bf16 v[64:67], v[{32+4*i}:{35+4*i}], v[{QF+4*i}:{QF+4*i+3}], {'0' if i == 0 else 'v[64:67]'}")
        if i == 6: A(f"ds_read_b128 v[156:159], v83 offset:{FLG}")
    if fine == 1: stamp(2)
    A(f"""
    v_cvt_pk_bf16_f32 v68, v64, v65
    v_cvt_pk_bf16_f32 v69, v66, v67
    v_lshlrev_b32 v64, 16, v68
    v_and_b32 v65, 0xffff0000, v68
    v_lshlrev_b32 v66, 16, v69
    v_and_b32 v67, 0xffff0000, v69
    v_max_f32 v68, v64, v65
    v_max3_f32 v68, v66, v67, v68
    v_mul_f32 v68, s53, v68
    v_ceil_f32 v68, v68
    v_fma_f32 v64, v64, s53, -v68
    v_fma_f32 v65, v65, s53, -v68
    v_fma_f32 v66, v66, s53, -v68
    v_fma_f32 v67, v67, s53, -v68
    v_mul_f32 v70, 0x43000000, v68
    s_mov_b64 exec, s[46:47]
    ds_max_f32 v12, v70 offset:{ML}
    v_exp_f32 v64, v64
    v_exp_f32 v65, v65
    v_exp_f32 v66, v66
    v_exp_f32 v67, v67
    v_cvt_pk_bf16_f32 v68, v64, v65
    v_cvt_pk_bf16_f32 v69, v66, v67
    ds_write_b96 v11, v[68:70] offset:{SL}
    s_mov_b64 exec, -1
    s_lshl_b64 s[40:41], s[46:47], 1
    s_lshl_b64 s[42:43], s[46:47], 2
    s_lshl_b64 s[54:55], s[46:47], 3
    s_waitcnt lgkmcnt(2)
    v_or3_b32 v56, v156, v157, v158
    v_or_b32 v56, v56, v159
    v_mov_b32 v63, {TAG}
    v_readfirstlane_b32 s62, v56
    v_mov_b32 v67, {TAG}
    s_waitcnt lgkmcnt(0)
    s_barrier
    ds_read_b32 v68, v12 offset:{ML}
    """)
    if fine == 1: stamp(3)
    Y = 32; PB = 48; ACC = 84; OG = 100; LG = 72
    for w in range(4):
        A(f"ds_read_b128 v[{Y+4*w}:{Y+4*w+3}], v10 offset:{SL+16*w}")
    rest = [(t, kb) for t in range(4) for kb in (0, 1)] if pvmode == 3 else []
    for t, kb in rest: A(vread(t, kb))
    pv0 = lambda t: f"v_mfma_f32_16x16x32_bf16 v[{ACC+4*t}:{ACC+4*t+3}], v[{VF+4*t}:{VF+4*t+3}], v[{PB}:{PB+3}], 0"
    pv1 = lambda t: f"v_mfma_f32_16x16x32_bf16 v[{ACC+4*t}:{ACC+4*t+3}], v[{VF+16+4*t}:{VF+16+4*t+3}], v[{PB+4}:{PB+7}], v[{ACC+4*t}:{ACC+4*t+3}]"
    def rescale(c):
        a, b = Y + 8*c, Y + 8*c + 4
        return [f"v_sub_f32 v{a+2}, v68, v{a+2}", f"v_sub_f32 v{b+2}, v68, v{b+2}", f"v_cvt_u32_f32 v{a+2}, v{a+2}", f"v_cvt_u32_f32 v{b+2}, v{b+2}",
                f"v_cvt_pk_u16_u32 v{a+2}, v{a+2}, v{b+2}",
                f"v_pk_sub_u16 v{PB+4*c}, v{a}, v{a+2} op_sel_hi:[1,0] clamp",
                f"v_pk_sub_u16 v{PB+4*c+1}, v{a+1}, v{a+2} op_sel_hi:[1,0] clamp",
                f"v_pk_sub_u16 v{PB+4*c+2}, v{b}, v{a+2} op_sel:[0,1] clamp",
                f"v_pk_sub_u16 v{PB+4*c+3}, v{b+1}, v{a+2} op_sel:[0,1] clamp"]
    l0 = f"v_mfma_f32_16x16x32_bf16 v[56:59], v[152:155], v[{PB}:{PB+3}], 0"
    l1 = f"v_mfma_f32_16x16x32_bf16 v[56:59], v[152:155], v[{PB+4}:{PB+7}], v[56:59]"
    lfin = ["v_rcp_f32 v60, v56", "v_log_f32 v62, v56", "v_fmac_f32 v62, 0x3c000000, v68"]
    tmask = ["s[46:47]", "s[40:41]", "s[42:43]", "s[54:55]"]
    def sel(t):
        a = ACC + 4*t
        A(f"s_mov_b64 exec, {tmask[t]}")
        A(f"v_pk_mul_f32 v[34:35], v[{a+2}:{a+3}], v[60:61] op_sel_hi:[1,0]")
        A(f"v_pk_mul_f32 v[32:33], v[{a}:{a+1}], v[60:61] op_sel_hi:[1,0]")
    A(f"s_waitcnt lgkmcnt({2+len(rest)})")
    for x in rescale(0): A(x)
    A(f"s_waitcnt lgkmcnt({len(rest)})")
    r1 = rescale(1)
    if pvmode == 3:
        for x in r1[:2] + [l0] + r1[2:5] + ["s_waitcnt lgkmcnt(0)", pv0(0)] + r1[5:7] + [pv0(1)] + r1[7:] + [pv0(2), "s_cmp_eq_u32 s62, 0", l1, pv0(3)]: A(x)
        stamp(5)
        A("s_barrier")
        for t in range(4):
            for kb in (2, 3): A(vread(t, kb))
        stamp(6)
        for t in range(4):
            A(f"s_waitcnt lgkmcnt({lg(6-2*t)})"); A(pv1(t))
            if t < 3: A(lfin[t])
        for t in range(4): sel(t)
    else:
        for x in r1[:2] + [l0] + r1[2:] + ["s_cmp_eq_u32 s62, 0"]: A(x)
        stamp(5)
        A("s_barrier")
        for t in range(4):
            for kb in (0, 1): A(vread(t, kb))
        A(l1)
        for t in range(4):
            A(f"s_waitcnt lgkmcnt({lg(6-2*t)})"); A(pv0(t))
        A("s_barrier")
        for t in range(3):
            for kb in (2, 3): A(vread(t, kb))
        for t in range(3):
            A(f"s_waitcnt lgkmcnt({lg(4-2*t)})"); A(pv1(t)); A(lfin[t])
        for t in range(3): sel(t)
        A("s_mov_b64 exec, -1\ns_barrier")
        for kb in (2, 3): A(vread(3, kb))
        stamp(6)
        A("s_waitcnt lgkmcnt(0)"); A(pv1(3))
        sel(3)
    A(f"""
    s_mov_b64 exec, s[48:49]
    v_perm_b32 v66, v34, v35, s52
    v_perm_b32 v64, v32, v35, s50
    v_perm_b32 v65, v33, v35, s51
    s_cbranch_scc0 L_oslow
    global_store_dwordx4 v14, v[64:67], s[28:29]
    s_mov_b64 exec, 0x0101
    global_store_dwordx2 v13, v[62:63], s[28:29]
L_odone:
    s_barrier
    s_mov_b64 exec, -1
    """)
    stamp(7)
    A(f"""
    s_cmp_lt_u32 s31, 28
    s_cbranch_scc1 L_gemv
    """)
    WG = 40
    ms = ["s[40:41]", "s[42:43]", "s[56:57]", "s[58:59]"]
    lload = f"global_load_dwordx2 v[{LG}:{LG+1}], v26, s[28:29] sc1"
    oload = lambda a: f"global_load_dwordx4 v[{OG+4*a}:{OG+4*a+3}], v30, s[28:29] offset:{1024*a} sc1"
    A(lload)
    for a in range(4): A(oload(a) if ofirst else f"v_not_b32 v{OG+4*a+3}, v63")
    A(f"""
    s_mov_b32 s45, 0
    v_readlane_b32 s37, v62, s33            ; own lse of the head this workgroup combines
    s_mov_b32 s36, {f2u(wlim)}
    v_mov_b32 v{66 if ffmt else 59}, {TAG}
    s_mov_b32 s46, 0x11111111
    s_mov_b32 s47, s46
L_ochk:
    s_waitcnt vmcnt(0)
    v_cmp_ne_u32 s[54:55], {TAG}, v{LG+1}
    """)
    for a in range(4): A(f"v_cmp_ne_u32 {ms[a]}, {TAG}, v{OG+4*a+3}")
    A(f"""
    v_subrev_f32 v56, s37, v{LG}
    {f"v_perm_b32 v33, v{OG}, v{OG+1}, s60" if not cfast else ""}
    {"v_cmp_nge_f32 vcc, s36, v56" if not cfast else ""}
    {"v_exp_f32 v56, v56" if not cfast else ""}
    s_or_b64 s[34:35], {ms[0]}, {ms[1]}
    s_or_b64 s[48:49], {ms[2]}, {ms[3]}
    s_or_b64 s[34:35], s[34:35], s[54:55]
    s_or_b64 s[34:35], s[34:35], s[48:49]
    s_cbranch_scc1 L_oretry
L_ook:
    {"v_cmp_nge_f32 vcc, s36, v56" if cfast else ""}
    {"v_exp_f32 v56, v56" if cfast else ""}
    {f"v_perm_b32 v33, v{OG}, v{OG+1}, s60" if cfast else ""}
    {f"v_perm_b32 v{OG+7}, v{OG+4}, v{OG+5}, s60" if cfast else ""}
    {f"v_perm_b32 v{OG+11}, v{OG+8}, v{OG+9}, s60" if cfast else ""}
    {f"v_perm_b32 v{OG+15}, v{OG+12}, v{OG+13}, s60" if cfast else ""}
    s_cbranch_vccnz L_truemax
L_wok:
    """)
    stamp(9)
    QP = lambda p: f"quad_perm:[{p}] {DPP}"
    A(f"""
    v_mov_b32_dpp v{WG}, v56 {QP("0,0,0,0")}
    v_add_f32_dpp v57, v56, v56 {QP("1,0,3,2")}
    v_mov_b32_dpp v{WG+2}, v56 {QP("1,1,1,1")}
    v_perm_b32 v{OG+3}, v33, v{OG+2}, s61
    v_add_f32_dpp v57, v57, v57 {QP("2,3,0,1")}
    v_mov_b32_dpp v{WG+4}, v56 {QP("2,2,2,2")}
    v_mov_b32_dpp v{WG+6}, v56 {QP("3,3,3,3")}
    v_add_f32_dpp v56, v57, v57 row_ror:8 {DPP}
    v_pk_mul_f32 v[60:61], v[{OG}:{OG+1}], v[{WG}:{WG+1}] op_sel_hi:[1,0]
    v_mov_b32 v57, v56
    v_pk_mul_f32 v[62:63], v[{OG+2}:{OG+3}], v[{WG}:{WG+1}] op_sel_hi:[1,0]
    """)
    den = [None, ["v_permlane16_swap_b32 v57, v56", "v_add_f32 v56, v56, v57", "v_mov_b32 v57, v56"], ["v_permlane32_swap_b32 v57, v56"], []]
    for a in range(1, 4):
        if not cfast: A(f"v_perm_b32 v{OG+4*a+3}, v{OG+4*a}, v{OG+4*a+1}, s60")
        A(f"v_pk_fma_f32 v[60:61], v[{OG+4*a}:{OG+4*a+1}], v[{WG+2*a}:{WG+2*a+1}], v[60:61] op_sel_hi:[1,0,1]")
        A(f"v_perm_b32 v{OG+4*a+3}, v{OG+4*a+3}, v{OG+4*a+2}, s61")
        for x in den[a]: A(x)
        A(f"v_pk_fma_f32 v[62:63], v[{OG+4*a+2}:{OG+4*a+3}], v[{WG+2*a}:{WG+2*a+1}], v[62:63] op_sel_hi:[1,0,1]")
    A(f"""
    v_add_f32 v56, v56, v57
    s_cmp_eq_u32 s62, 0
    v_permlane32_swap_b32 v60, v62
    v_permlane32_swap_b32 v61, v63
    v_pk_add_f32 v[60:61], v[60:61], v[62:63]
    v_rcp_f32 v56, v56
    v_permlane16_swap_b32 v60, v61
    v_add_f32 v60, v60, v61
    v_add_f32_dpp v60, v60, v60 row_ror:8 {DPP}
    v_mul_f32 v61, v60, v56
    v_mul_f32 v60, v60, v56
    v_permlane16_swap_b32 v61, v60
    """)
    FST = "global_store_dwordx4 v28, v[64:67], s[28:29]" if ffmt else "global_store_dwordx2 v28, v[58:59], s[28:29]"
    if ffmt:
        A(f"""
    v_cvt_pk_bf16_f32 v64, v61, v60
    v_cvt_pk_bf16_f32 v65, v61, v60
    v_permlane32_swap_b32 v64, v65
    s_mov_b64 exec, 0xff
    s_cbranch_scc0 L_fslow
    {FST}
    """)
    else:
        A(f"""
    s_mov_b32 exec_lo, 0xff
    s_mov_b32 exec_hi, 0xff
    v_cvt_pk_bf16_f32 v58, v61, v60
    s_cbranch_scc0 L_fslow
    {FST}
    """)
    stamp(10)
    A("s_barrier")
    finish()
    A(f"""
L_oretry:
    {lload}
    {"s_bcnt1_i32_b64 s34, s[54:55]" if othr < 32 else ""}
    {f"s_cmp_gt_u32 s34, {2*othr}" if othr < 32 else ""}
    {"s_cbranch_scc1 L_omany" if othr < 32 else ""}
    """)
    for a in range(4):
        A(f"s_or_b64 exec, {ms[a]}, 1\n{oload(a)}")
    A(f"""
L_onext:
    s_mov_b64 exec, -1
    s_add_u32 s45, s45, 1
    s_cmp_ge_u32 s45, {spin}
    s_cbranch_scc0 L_ochk
    s_waitcnt vmcnt(0)
    s_branch L_ook
L_omany:
    """)
    for a in range(4 if othr < 32 else 0):
        A(f"""
        {f"s_lshr_b64 s[54:55], s[54:55], 1" if a else ""}
        s_and_b64 s[34:35], s[54:55], s[46:47]
        s_wqm_b64 s[34:35], s[34:35]
        s_andn2_b64 s[34:35], {ms[a]}, s[34:35]
        s_or_b64 exec, s[34:35], 1
        {oload(a)}
        """)
    A(f"""
    s_branch L_onext
L_truemax:
    ; some split outweighs this workgroup's own by more than 2^24: take the true maximum as the reference
    v_max_f32_dpp v56, v{LG}, v{LG} {QP("1,0,3,2")}
    v_max_f32_dpp v56, v56, v56 {QP("2,3,0,1")}
    v_max_f32_dpp v56, v56, v56 row_ror:8 {DPP}
    v_mov_b32 v57, v56
    v_permlane16_swap_b32 v57, v56
    v_max_f32 v56, v56, v57
    v_mov_b32 v57, v56
    v_permlane32_swap_b32 v57, v56
    v_max_f32 v56, v56, v57
    v_sub_f32 v56, v{LG}, v56
    v_exp_f32 v56, v56
    s_nop 1
    s_branch L_wok
L_fslow:
    {FST} sc1
    s_barrier
    """)
    finish()
    A(f"""
L_gemv:
    s_cmp_eq_u32 s63, 0
    s_cbranch_scc1 L_noffn
    {"s_barrier" if hlate else ""}
    ds_read_b128 v[72:75], v6
    s_mov_b32 exec_lo, 0x0fff0fff
    s_mov_b32 exec_hi, 0x0fff0fff
    ds_read_b128 v[76:79], v6 offset:1024
    s_mov_b64 exec, -1
    s_waitcnt lgkmcnt(0)
L_hchk:
    v_cmp_ne_u32 vcc, {TAG}, v75
    v_cmp_ne_u32 s[54:55], {TAG}, v79
    v_perm_b32 v82, v72, v73, s60
    v_perm_b32 v83, v76, v77, s60
    s_or_b64 vcc, vcc, s[54:55]
    s_cbranch_scc1 L_hretry
L_hok:
    v_perm_b32 v75, v82, v74, s61
    v_perm_b32 v79, v83, v78, s61
    v_pk_add_f32 v[72:73], v[72:73], v[76:77]
    v_pk_add_f32 v[74:75], v[74:75], v[78:79]
    v_lshlrev_b32 v76, 16, v80
    """)
    for sh in (4, 8):
        for r in range(4): A(f"v_add_f32_dpp v{72+r}, v{72+r}, v{72+r} row_ror:{sh} {DPP}")
    def rnd():
        A("""
        v_cvt_pk_bf16_f32 v82, v72, v73
        v_cvt_pk_bf16_f32 v83, v74, v75
        v_lshlrev_b32 v72, 16, v82
        v_and_b32 v73, 0xffff0000, v82
        v_lshlrev_b32 v74, 16, v83
        v_and_b32 v75, 0xffff0000, v83
        """)
    rnd()
    A("""
    v_and_b32 v77, 0xffff0000, v80
    v_lshlrev_b32 v78, 16, v81
    v_and_b32 v79, 0xffff0000, v81
    v_pk_add_f32 v[72:73], v[72:73], v[76:77]
    v_pk_add_f32 v[74:75], v[74:75], v[78:79]
    """)
    rnd()
    c1 = -2 * LOG2E * 0.7978845608028654
    A(f"""
    v_mov_b32 v80, {f2u(c1)}
    v_pk_mul_f32 v[76:77], v[72:73], v[72:73]
    v_pk_mul_f32 v[78:79], v[74:75], v[74:75]
    """)
    for r in range(4): A(f"v_fmamk_f32 v{76+r}, v{76+r}, {f2u(c1*0.044715)}, v80")
    A("v_pk_mul_f32 v[76:77], v[76:77], v[72:73]\nv_pk_mul_f32 v[78:79], v[78:79], v[74:75]")
    for r in range(4): A(f"v_exp_f32 v{76+r}, v{76+r}")
    for r in range(4): A(f"v_add_f32 v{76+r}, 1.0, v{76+r}")
    for r in range(4): A(f"v_rcp_f32 v{76+r}, v{76+r}")
    A(f"""
    v_pk_mul_f32 v[76:77], v[76:77], v[72:73]
    v_pk_mul_f32 v[78:79], v[78:79], v[74:75]
    v_cvt_pk_bf16_f32 v82, v76, v77
    v_cvt_pk_bf16_f32 v83, v78, v79
    {"" if hlate else "s_barrier"}
    """)
    WF2 = 116
    for b in range(4): A(f"ds_read_b64_tr_b16 v[{WF2+2*b}:{WF2+2*b+1}], v24 offset:{W2L+2048*b}")
    for m in range(4): A(f"v_mov_b64_dpp v[{72+2*m}:{73+2*m}], v[82:83] row_newbcast:{m} {DPP}")
    A(f"""
    s_waitcnt lgkmcnt(0)
    v_mfma_f32_16x16x32_bf16 v[48:51], v[{WF2}:{WF2+3}], v[72:75], 0
    v_mfma_f32_16x16x32_bf16 v[48:51], v[{WF2+4}:{WF2+7}], v[76:79], v[48:51]
L_ffnd:
    s_mov_b32 s45, 0
    v_mov_b32 v55, {TAG}
    {"global_load_dwordx4 v[60:63], v28, s[28:29] sc1" if f0 else ""}
    s_barrier
    global_load_dwordx4 v[56:59], v28, s[28:29] sc1
    """)
    nb_early = max(0, (fpoll + 1 - 8) // 2)
    for b in range(nb_early): A(f"ds_read_b64_tr_b16 v[{WF2+8+2*b}:{WF2+9+2*b}], v24 offset:{WOL+2048*b}")
    A("s_barrier")
    for b in range(nb_early, 8): A(f"ds_read_b64_tr_b16 v[{WF2+8+2*b}:{WF2+9+2*b}], v24 offset:{WOL+2048*b}")
    stamp(8)
    FS = [56, 68, 100, 104][:fdepth]
    bc = lambda e, r: f"v_mov_b64_dpp v[{84+2*e}:{85+2*e}], v[{r}:{r+1}] row_newbcast:{e} {DPP}"
    gm = lambda kk: f"v_mfma_f32_16x16x32_bf16 v[48:51], v[{WF2+8+4*kk}:{WF2+11+4*kk}], v[{84+4*kk}:{87+4*kk}], v[48:51]"
    def fcheck(r, tgt, cond):
        if ffmt:
            A(f"v_cmp_ne_u32 vcc, {TAG}, v{r+2}")
            for e in range(4): A(bc(e, r))
            A(f"v_mov_b64 v[108:109], v[{r}:{r+1}]")
            A(f"s_cbranch_vcc{'nz' if cond else 'z'} {tgt}")
            return
        A(f"""
        v_cmp_ne_u32 vcc, {TAG}, v{r+1}
        v_cmp_ne_u32 s[54:55], {TAG}, v{r+3}
        v_mov_b32 v108, v{r}
        v_mov_b32 v109, v{r+2}
        s_or_b64 vcc, vcc, s[54:55]
        s_cbranch_scc{cond} {tgt}
        """)
    if f0:
        A("s_waitcnt vmcnt(1)")
        fcheck(60, "L_fsecond", 1)
    else:
        A("s_waitcnt vmcnt(0)")
        fcheck(56, "L_fretry", 1)
    A("L_fok:")
    stamp(9)
    if ffmt:
        for x in ["s_waitcnt lgkmcnt(0)", gm(0), bc(4, 108), bc(5, 108), gm(1), bc(6, 108), bc(7, 108), gm(2)]: A(x)
    else:
        for kk in range(4):
            for h in range(2): A(bc(2*kk+h, 108))
            if kk == 1: A("s_waitcnt lgkmcnt(0)")
            if kk >= 1: A(gm(kk - 1))
    A(f"""
    v_mfma_f32_16x16x32_bf16 v[48:51], v[{WF2+20}:{WF2+23}], v[96:99], v[48:51]
    s_mov_b32 exec_lo, 0x00010001
    s_mov_b32 exec_hi, 0x00010001
    v_perm_b32 v52, v48, v51, s50
    v_perm_b32 v53, v49, v51, s51
    v_perm_b32 v54, v50, v51, s52
    global_store_dwordx4 v29, v[52:55], s[28:29] sc1
    """)
    if near: A("global_store_dwordx4 v30, v[52:55], s[28:29] sc1")
    stamp(10)
    finish()
    if f0:
        A("L_fsecond:\ns_waitcnt vmcnt(0)")
        fcheck(56, "L_fok", 0)
    A("L_fretry:")
    for r in FS[:-1]: A(f"global_load_dwordx4 v[{r}:{r+3}], v28, s[28:29] sc1")
    A("L_floop:")
    for n, r in enumerate(FS):
        nx = FS[(n - 1) % fdepth]
        A(f"global_load_dwordx4 v[{nx}:{nx+3}], v28, s[28:29] sc1")
        A(f"s_waitcnt vmcnt({fdepth-1})")
        fcheck(r, "L_fok", 0)
    A(f"""
    s_add_u32 s45, s45, 1
    s_cmp_ge_u32 s45, {spin}
    s_cbranch_scc0 L_floop
    s_branch L_fok
L_hretry:
    s_add_u32 s45, s45, 1
    s_cmp_ge_u32 s45, {spin}
    s_cbranch_scc1 L_hok
    global_load_dwordx4 v[72:75], v26, s[28:29] sc1
    s_mov_b32 exec_lo, 0x0fff0fff
    s_mov_b32 exec_hi, 0x0fff0fff
    global_load_dwordx4 v[76:79], v26, s[28:29] offset:1024 sc1
    s_mov_b64 exec, -1
    {"s_add_u32 s91, s91, 0x10000" if stamps else ""}
    s_waitcnt vmcnt(0)
    s_branch L_hchk
L_noffn:
    v_mov_b32 v48, 0
    v_mov_b32 v49, 0
    v_mov_b32 v50, 0
    v_mov_b32 v51, 0
    s_branch L_ffnd
L_oslow:
    global_store_dwordx4 v14, v[64:67], s[28:29] sc1
    s_mov_b64 exec, 0x0101
    global_store_dwordx2 v13, v[62:63], s[28:29] sc1
    s_branch L_odone
L_qslow:
    ; a granule is valid when tag <= word < tag + 16; it differs from tag + xcc when its producer sits on another XCD
    v_subrev_u32 v67, {TAG}, v67
    v_subrev_u32 v71, {TAG}, v71
    v_or_b32 v67, v67, v71
    v_cmp_lt_u32 s[58:59], 15, v67
    s_add_u32 s45, s45, 1
    s_cmp_eq_u64 s[58:59], 0
    s_cbranch_scc1 L_repub
    {"s_cmp_eq_u32 s45, 1" if qins else ""}
    {"s_cbranch_scc1 L_qsecond" if qins else ""}
    s_cmp_eq_u32 s45, 3
    s_cbranch_scc0 L_qagain
L_repub:
    ; the group may span XCDs: write this workgroup's q and h partial sums through to memory
    v_mov_b32 v67, s57
    v_mov_b32 v71, s56
    v_cmp_gt_u32 vcc, 16, v0
    s_cmp_eq_u32 s63, 0
    s_cselect_b32 s34, 0xffff, -1
    s_mov_b32 s35, 0
    v_cndmask_b32 v67, v67, v71, vcc
    v_lshl_add_u32 v67, v1, 4, v67
    s_mov_b32 s40, 0
    s_mov_b64 exec, s[34:35]
L_repub1:
    global_load_dwordx4 v[156:159], v67, s[28:29] sc1
    s_add_u32 s40, s40, 1
    s_cmp_ge_u32 s40, {spin}
    s_waitcnt vmcnt(0)
    s_cbranch_scc1 L_repub2
    v_subrev_u32 v71, {TAG}, v159
    v_cmp_lt_u32 vcc, 15, v71
    s_cbranch_vccnz L_repub1
L_repub2:
    global_store_dwordx4 v67, v[156:159], s[28:29] sc1
    s_mov_b64 exec, -1
    s_waitcnt vmcnt(0)
    v_mov_b32 v67, 1
    s_cmp_eq_u64 s[58:59], 0
    s_cbranch_scc1 L_qok
L_qagain:
    v_mov_b32 v67, 1
    s_cmp_ge_u32 s45, {spin}
    s_cbranch_scc1 L_qok
    global_load_dwordx4 v[64:67], v18, s[28:29] sc1
    global_load_dwordx4 v[68:71], v19, s[28:29] sc1
    {"s_add_u32 s91, s91, 1" if stamps else ""}
    s_waitcnt vmcnt(0)
    s_branch L_qchk
    """)
    if qins:
        A(f"L_qsecond:\ns_waitcnt vmcnt({nqb})")
        if stamps: A("s_add_u32 s91, s91, 0x1000000")
        for e in range(4): A(f"v_mov_b64 v[{64+2*e}:{65+2*e}], v[{160+2*e}:{161+2*e}]")
        A("s_branch L_qchk")
    if stamps:
        A(f"""
L_stamps:
    s_memrealtime s[86:87]
    s_mov_b64 exec, -1
    s_waitcnt vmcnt(0)
    s_memrealtime s[88:89]
    s_waitcnt lgkmcnt(0)
    s_mul_i32 s35, s2, 5
    s_add_u32 s35, s35, s90
    s_lshl_b32 s35, s35, 6
    s_add_u32 s35, s35, {WS_ST}
    v_mov_b32 v2, s35
    """)
        for i in range(13):
            A(f"v_mov_b32 v3, s{64+2*i}")
            A(f"global_store_dword v2, v3, s[28:29] offset:{4*i}")
        A("v_mov_b32 v3, s45"); A("global_store_dword v2, v3, s[28:29] offset:52")
        A("v_mov_b32 v3, s91"); A("global_store_dword v2, v3, s[28:29] offset:56")
    if diag is not None:
        base, mult, idx = diag[:3]
        gsel, who = diag[3:] if len(diag) > 3 else (None, None)
        A(f"""
    s_waitcnt vmcnt(0) lgkmcnt(0)
    s_sub_u32 s34, s{64+2*idx}, s64
    s_cmp_eq_u32 s{64+2*idx}, 0
    s_cselect_b32 s34, 0, s34
    {f"s_cmp_eq_u32 s30, {gsel}" if gsel is not None else ""}
    {"s_cselect_b32 s34, s34, 0" if gsel is not None else ""}
    {"s_cmp_eq_u32 s90, 0" if who else ""}
    {("s_cselect_b32 s34, s34, 0" if who == "L" else "s_cselect_b32 s34, 0, s34") if who else ""}
    s_mul_i32 s34, s34, {mult}
    s_add_u32 s34, s34, {base}
    {f"s_cmp_eq_u32 s30, {gsel}" if gsel is not None else ""}
    {"s_cselect_b32 s34, s34, 0" if gsel is not None else ""}
L_diag:
    s_memrealtime s[36:37]
    s_waitcnt lgkmcnt(0)
    s_sub_u32 s36, s36, s64
    s_cmp_lt_u32 s36, s34
    s_cbranch_scc1 L_diag
    """)
    A("L_end:")
    A("s_endpgm")
    if stamps:
        idx = A.L.index("s_lshr_b32 s33, s31, 2                  ; cg")
        for i in range(1, 13): A.L.insert(idx, f"s_mov_b32 s{64+2*i}, 0")
        A.L.insert(idx, "s_mov_b32 s91, 0"); A.L.insert(idx, "s_mov_b32 s90, s3"); A.L.insert(idx, "s_mov_b32 s45, 0")
    A.check()
    head = f"""; fused layernorm + sliding-window GQA decode attention + GELU MLP, one launch of 256 workgroups
; @launch grid=(256,1,1) block=(320,1,1) lds={LDS_TOTAL}
.amdgcn_target "amdgcn-amd-amdhsa--gfx950"
.text
.globl {NAME}_kernel
.p2align 12
{".fill 832, 4, 0xbf800000" if start0 else ""}
.type {NAME}_kernel,@function
{NAME}_kernel:
"""
    tail = f""".fill 1024, 4, 0xbf800000
.section .rodata,"a"
.p2align 6
.amdhsa_kernel {NAME}_kernel
  .amdhsa_next_free_vgpr 168
  .amdhsa_next_free_sgpr 96
  .amdhsa_accum_offset 168
  .amdhsa_group_segment_fixed_size 0
  .amdhsa_kernarg_size 104
  .amdhsa_user_sgpr_count 2
  .amdhsa_user_sgpr_kernarg_segment_ptr 1
  .amdhsa_system_sgpr_workgroup_id_x 1
  .amdhsa_float_denorm_mode_32 3
.end_amdhsa_kernel
"""
    return head + A.text() + tail

if __name__ == "__main__":
    out = sys.argv[1]
    kw = {}
    for a in sys.argv[2:]:
        k, v = a.split("=", 1)
        kw[k] = eval(v)
    open(out, "w").write(gen(**kw))
```

```python
import sys, struct
from asmlib import *

W1L = 0; WQL = 8192; XNL = 22528; QL = 23552; QHS = 576; SL = 24704; SHS = 384; ML = 25472; FLG = 25504
W2L = 25600; WOL = 33792; KL = 50176; VL = 82944; HL = 115712; LDS_TOTAL = 117760
WS_Q = 0x10000; WS_H = 0x20000; WS_L = 0x30000; WS_F = 0x38000; WS_P = 0x40000; WS_R = 0x78000; WS_O = 0x80000; WS_ST = 0x400000
LOG2E = 1.4426950408889634
def f2u(x): return "0x%08x" % struct.unpack("<I", struct.pack("<f", x))[0]

class VM:
    def __init__(self, A): self.A = A; self.ops = []; self.done = -1
    def op(self, name, text): self.A(text); self.ops.append(name)
    def idx(self, name): return max(i for i, n in enumerate(self.ops) if n == name)
    def after(self, name): return len(self.ops) - 1 - self.idx(name)
    def wait(self, name):
        i = self.idx(name)
        if i <= self.done: return
        n = len(self.ops) - 1 - i; assert n <= 63, n
        self.A(f"s_waitcnt vmcnt({n})"); self.done = i
    def fork(self):
        o = VM(self.A); o.ops = list(self.ops); o.done = self.done; return o

def gen(stamps=False, spin=1 << 15, diag=None, force_sc1=False, near=2, nprobe=3, fine=0, cyc=False, wlim=24.0, emu=None,
        nt_w="", nt_kv="", nt_l="", qbar=True, pvmode=1, otouch="b1", hdma="V23", fdepth=2, fpoll=19, qins=0, help0=0, helpk=0, helpat=0, ntfrom=0, ntfromN=None, kvpat=6, othr=32, ofirst=True, ntmask=0xff000000, ntmaskV=None, ntmaskN=None, helpx=0, ntmaskW=0xffffff, nt_w1=None, nb1=0, wup=0, wupat=20, f0=0, pdepth=3, pmask=False, pidx=1, pwide=False, ffmt=1, cfast=1, alignc=True, start0=True, alignl=True,
        win0=24, win=24, qidx=60, nb2=4, nWpre=10, cap=None,
        win0N=22, winN=22, qidxN=60, nb2N=4, capN=None,
        win0Z=24, winZ=27, qidxZ=55, nb2Z=4, nWpreZ=16, capZ=35, qcostZ=2, ntZ=(0, 0)):
    A = Asm()
    ntw = " " + nt_w if nt_w else ""; ntk = " " + nt_kv if nt_kv else ""; ntl = " " + nt_l if nt_l else ""
    inloader = [True]
    def stamp(i, force=False):
        if fine == 3 and i in (7, 9, 10) and not force and inloader[0]: return
        if stamps: A(f"{'s_memtime' if cyc else 's_memrealtime'} s[{64+2*i}:{65+2*i}]")
    lg = (lambda n: 0) if stamps else (lambda n: n)
    TAG = "s38"
    fin = "L_stamps" if stamps else "L_end"
    def finish():
        if stamps: A("s_branch L_stamps")
        else: A("s_endpgm")
    DPP = "row_mask:0xf bank_mask:0xf"
    hlate = hdma[0] == "W"
    if emu is not None:
        A(f"""
    s_and_b32 s30, s2, 7
    s_cmp_eq_u32 s30, 0
    s_movk_i32 s31, {emu[0]}
    s_cselect_b32 s31, {emu[0] + emu[1]}, s31
L_emu:
    s_memrealtime s[36:37]
    s_waitcnt lgkmcnt(0)
    s_and_b32 s36, s36, 1023
    s_cmp_lt_u32 s36, s31
    s_cbranch_scc1 L_emu
    """)
    stamp(0)
    A(f"""
    s_load_dwordx16 s[4:19], s[0:1], 0      ; x k v wq wo Bx w1 b1
    s_load_dwordx8 s[20:27], s[0:1], 64     ; w2 b2 out dbg
    s_load_dwordx2 s[28:29], s[0:1], 96     ; ws
    s_cmp_ge_u32 s2, 256
    s_cbranch_scc1 L_end
    v_lshrrev_b32 v1, 6, v0
    v_and_b32 v0, 63, v0                    ; lane
    v_readfirstlane_b32 s3, v1              ; wave
    s_and_b32 s30, s2, 7
    s_lshr_b32 s31, s2, 3
    v_lshrrev_b32 v2, 4, v0                 ; s
    v_and_b32 v5, 7, v0
    v_lshrrev_b32 v7, 3, v0
    s_lshr_b32 s33, s31, 2                  ; cg
    s_and_b32 s32, s31, 3                   ; rg
    s_lshl2_add_u32 s44, s30, s32           ; 4g + rg
    s_max_u32 s43, s44, 4
    s_sub_u32 s43, s43, 4
    s_cmp_lt_u32 s31, 28
    s_cselect_b32 s63, s30, 0               ; non-zero: this workgroup has MLP work
    s_cmp_eq_u32 s3, 0
    s_cbranch_scc1 L_loader
    s_getpc_b64 s[40:41]
    s_mul_i32 s34, s31, 384
    v_lshl_add_u32 v3, v5, 6, s34
    global_load_dword v148, v3, s[40:41] offset:704    ; the 32 workgroups of an XCD pull the code into its L2
    v_lshlrev_b32 v3, 4, v0
    v_mov_b32 v140, 0
    v_mov_b32 v141, 0
    v_mov_b32 v142, 0
    v_mov_b32 v143, 0
    s_bfm_b64 exec, 56, 0
    s_waitcnt lgkmcnt(0)
    global_load_dwordx4 v[140:143], v3, s[4:5]
    s_load_dword s38, s[28:29], 0           ; epoch
    s_mov_b64 exec, -1
    s_branch L_comp
    """)
    va = VM(A)
    A(f"""
L_loader:
    v_lshlrev_b32 v6, 1, v2
    v_xor_b32 v6, v5, v6
    v_lshlrev_b32 v6, 4, v6
    s_mul_i32 s34, s32, {112*8192}          ; wq row group rg
    s_lshl_b32 s35, s30, 10
    s_add_u32 s34, s34, s35
    s_xor_b32 s35, s33, 4                   ; wq column block cq
    s_lshl_b32 s35, s35, 7
    s_add_u32 s34, s34, s35
    v_lshl_add_u32 v8, v7, 13, s34
    v_add_u32 v8, v8, v6                    ; wq voffset
    """)
    ish = 9 if kvpat == 0 else 17
    if kvpat == 0:
        A(f"""
    s_lshl_b32 s34, s30, 22
    s_lshl_b32 s35, s31, 15
    s_add_u32 s34, s34, s35
    s_add_u32 s34, s34, 0x300000
    s_movk_i32 s35, {4096 + 512}
    v_mad_u32_u24 v4, v7, s35, v6
    v_add_u32 v4, s34, v4
    """)
    else:
        A(f"""
    s_mul_i32 s34, s30, {(1 << 22) + ((1 << 17) if kvpat == 9 else 0)}
    s_lshr_b32 s35, s31, 3
    s_lshl_b32 s35, s35, 15
    s_add_u32 s34, s34, s35
    s_and_b32 s35, s31, 7
    s_lshl_b32 s35, s35, 9
    s_add_u32 s34, s34, s35
    s_add_u32 s34, s34, 0x300000
    s_movk_i32 s35, {4096 + 512}
    v_mad_u32_u24 v4, v7, s35, v6
    v_xor_b32 v4, s34, v4
    """)
    A(f"""
    s_mov_b32 s37, {65536-1024}
    s_mul_i32 s34, s33, {64*3584}
    s_lshl_b32 s35, s43, 7
    s_add_u32 s34, s34, s35
    s_movk_i32 s35, 3584
    v_mad_u32_u24 v14, v7, s35, v6
    v_add_u32 v14, s34, v14                 ; w1 voffset: rows 64cg.., hidden block
    """)
    A(f"""
    s_movk_i32 s36, {28672-1024}
    s_movk_i32 s46, -896
    v_mov_b32 v3, v4
    s_movk_i32 m0, {WQL}
    s_waitcnt lgkmcnt(0)
    """)
    WQS = [f"wq{i}" for i in range(14)]; KS = [f"K{i}" for i in range(32)]; VS = [f"V{i}" for i in range(32)]
    seqF = WQS + [f"w1{i}" for i in range(8)] + KS + VS + [f"W{i}" for i in range(24)]
    at = seqF.index(hdma) + 1; seqF = seqF[:at] + ["H0", "H1"] + seqF[at:]
    seqN = WQS + KS + VS + [f"W{i}" for i in range(8, 24)]
    if ntfromN is None: ntfromN = ntfrom
    if ntmaskV is None: ntmaskV = ntmask
    cur = [ntfrom, ntmask, ntmaskV]
    def issue(vm, n):
        kind = n.rstrip("0123456789") if not n.startswith("w1") else "w1"
        i = int(n[len(kind):])
        ntk = " " + nt_kv if (nt_kv and kind in "KV" and i + (32 if kind == "V" else 0) >= cur[0] and (cur[1 if kind == "K" else 2] >> i) & 1) else ""
        if kind == "wq":
            vm.op(n, f"global_load_lds_dwordx4 v8, s[10:11] offset:{1024*(i&3)}{ntw}")
            if i == 13: pass
            elif i & 3 == 3: A("s_addk_i32 m0, 4096"); A(f"v_add_u32 v8, {65536+3072}, v8")
            else: A("v_add_u32 v8, s37, v8")
        elif kind == "w1":
            vm.op(n, f"global_load_lds_dwordx4 v14, s[16:17] offset:{1024*(i&3)}{ntw if nt_w1 is None else ' ' + nt_w1}")
            if i == 7: pass
            elif i & 3 == 3: A("s_addk_i32 m0, 4096"); A(f"v_add_u32 v14, {28672+3072}, v14")
            else: A("v_add_u32 v14, s36, v14")
        elif kind == "H":
            if i == 0: A(f"s_mov_b32 s40, m0\ns_mov_b32 m0, {HL}")
            else: A("s_mov_b32 exec_hi, 0xffff")
            vm.op(n, f"global_load_lds_dwordx4 v15, s[28:29] offset:{1024*i} sc1")
            if i == 1: A("s_mov_b32 exec_hi, -1\ns_mov_b32 m0, s40")
        elif kind == "V" and i >= 16 and pvmode == 1:
            q, ii = (i - 16) >> 2, (i - 16) & 3
            vm.op(n, f"global_load_lds_dwordx4 v{10+ii}, s[8:9] offset:{128*q}{ntk}")
            if i < 31: A(f"s_addk_i32 m0, {4096 if ii < 3 else 896 - 3*4096}")
        elif kind in "KV":
            vm.op(n, f"global_load_lds_dwordx4 v3, {'s[6:7]' if kind == 'K' else 's[8:9]'} offset:{1024*(i&3)}{ntk}")
            if i & 3 == 3:
                A("s_addk_i32 m0, 4096")
                nx = ((i + 1) >> 2) & 7
                if n != "V31" and (n != "V15" or pvmode != 1): A(f"v_xor_b32 v3, {nx << ish:#x}, v4" if nx else "v_mov_b32 v3, v4")
            else: A("v_add_u32 v3, s46, v3")
        else:
            reg, ptr = ("v8", "s[20:21]") if i < 8 else ("v9", "s[12:13]")
            vm.op(n, f"global_load_lds_dwordx4 {reg}, {ptr} offset:{1024*(i&3)}{ntl if (ntmaskW >> i) & 1 else ''}")
            if i < 23:
                if i & 3 == 3: A("s_addk_i32 m0, 4096")
                if i < 7:
                    grow = lambda i: (32*(i&1) + 4*(i>>1)) * 896 - 1024*(i&3)
                    A(f"v_add_u32 {reg}, {(grow(i+1)-grow(i)) & 0xffffffff:#x}, {reg}")
                elif i > 7:
                    grow = lambda i: (64*((i>>1)&3) + 16*(i>>3) + 8*(i&1)) * 896 - 1024*(i&3)
                    A(f"v_add_u32 {reg}, {(grow(i-7)-grow(i-8)) & 0xffffffff:#x}, {reg}")
    want = ["wq", "trig"] + (["trigB"] if qins else []) + ["k", "b1", "b2"] + (["v1", "v3"] if pvmode == 1 else []) + ["v", "o", "pre", "wo"]
    def schedule(seq, win0, win, qidx, nb2, nWpre, cap, qcost=0):
        pos = {n: i for i, n in enumerate(seq)}
        assert pos["K31"] <= qidx and (pvmode == 3 or qidx <= pos["V15"]), (qidx, pos["K31"])
        tw1 = pos.get("w17", 13)
        acts = []; tprev = -1
        for k, n in enumerate(seq):
            if k < win0: continue
            t = max(k - win, tprev)
            if wup and k - win - wup >= wupat: t = max(k - win - wup, tprev)
            elif wup and t > wupat: t = max(wupat, tprev)
            if k > qidx and k - win < qidx: t = max(min(k - win + qcost, qidx), tprev)
            tprev = t
            if nWpre < 24 and k >= pos[f"W{nWpre}"]:
                tprev = pos["V31"]; acts.append((tprev, 5, k, "issue", n)); continue
            if k > pos["V31"]: t = tprev = min(t, pos["V31"])
            if cap is not None and k > cap and t <= 13:
                tprev = 13; acts.append((13, 1, 0.5 + k / 1000, "issue", n)); assert k != qidx; continue
            acts.append((t, 0, k, "issue", n))
            if k == qidx: assert t >= tw1; acts.append((t, 1, 1.5, "bar", "trig"))
            if qins and k == qidx + qins: acts.append((t, 1, 1.7, "bar", "trigB"))
        tk = max(pos["K31"], qidx + qins - win)
        evs = [(13, "wq"), (tw1, "w1"), (tk, "k"), (qidx, "b1")]
        evs += [(qidx, "b2"), (pos["V15"], "v1"), (pos["V27"], "v3")] if pvmode == 1 else [(max(qidx, pos["V15"]), "b2")]
        evs += [(pos["V31"], "v")]
        for e, (t, nm) in enumerate(evs):
            if nm != "w1" or "w17" in pos: acts.append((t, 1, e, "bar", nm))
        for e, (n, nm) in enumerate((("W7", "w2"), (f"W{fpoll}", "pre"), ("W23", "wo"))):
            if n in pos: acts.append((pos[n], 6, e, "bar", nm))
        acts.append((pos["V31"], 4, 0, "bar", "o"))
        acts.sort(key=lambda a: a[:3])
        for nm, cnt in (("b1", nb1), ("b2", nb2)):
            ib2 = [n for n, a in enumerate(acts) if a[4] == nm][0]
            mv = [a for a in acts[ib2:] if a[3] == "issue" and a[1] == 0][:cnt]
            acts = acts[:ib2] + [(acts[ib2][0],) + a[1:] for a in mv] + [a for a in acts[ib2:] if a not in mv]
        order = [a[4] for a in acts if a[3] == "bar"]
        assert [o for o in order if o not in ("w1", "w2")] == want, order
        if "H1" in pos: assert pos["H1"] < (pos["W7"] if hlate else pos["V31"])
        return acts
    def play(vm, seq, a, comb):
        t, _, _, kind, arg = a
        if comb and (kind == "issue" or arg in ("pre", "wo")): return
        if t >= 0: vm.wait(seq[t])
        if kind == "issue":
            issue(vm, arg)
            if arg == "W23": stamp(3)
        else:
            if fine == 3 and arg in ("wq", "w1", "trig", "k", "b1"): stamp({"wq": 4, "w1": 5, "trig": 7, "k": 9, "b1": 10}[arg], True)
            if arg == "v": stamp(6)
            if arg == "wo": stamp(8)
            A("s_barrier")
            if arg == "wq" and qbar: A("s_barrier")
    for n in WQS: issue(va, n)
    vf = va.fork(); nkF = win0 - 22; nkN = win0N - 14; assert 0 <= nkF <= nkN
    A(f"s_movk_i32 m0, {W1L}\ns_cmp_eq_u32 s63, 0\ns_cbranch_scc1 L_k0")
    for i in range(8): issue(vf, f"w1{i}")
    A(f"L_k0:\ns_mov_b32 m0, {KL}")
    for n in KS[:nkF]: issue(va, n); vf.ops.append(n)
    A("s_cmp_eq_u32 s63, 0\ns_cbranch_scc0 L_k1")
    cur[0] = ntfromN
    if ntmaskN is not None: cur[1:] = ntmaskN
    for n in KS[nkF:nkN]: issue(va, n)
    vn = va.fork(); nkZ = win0Z - 14; assert nkN <= nkZ
    curN = list(cur); cur[:] = [0, ntZ[0], ntZ[1]]
    if nkZ > nkN:
        A("s_cmp_eq_u32 s30, 0\ns_cbranch_scc0 L_k1")
        for n in KS[nkN:nkZ]: issue(va, n)
    A(f"""
L_k1:
    s_load_dword s38, s[28:29], 0
    s_lshl_b32 s35, s33, 7
    v_mul_u32_u24 v9, 896, v7
    v_add3_u32 v9, v9, v6, s35
    s_mul_i32 s34, s43, {64*896}
    v_lshrrev_b32 v8, 5, v0
    v_mul_u32_u24 v8, {12*896}, v8
    v_add3_u32 v8, v8, v9, s34              ; w2 voffset: LDS row 16m+4s+r holds unit 16s+4m+r
    s_lshr_b32 s34, s44, 1
    s_lshl_b32 s34, s34, 3
    s_and_b32 s35, s32, 1
    s_add_u32 s34, s34, s35
    s_mul_i32 s34, s34, {32*896}
    v_add_u32 v9, s34, v9                   ; wo voffset: LDS row 64a+16t+c holds dim 64t + 32*(rg&1) + 16a + c
    v_xor_b32 v10, {4 << ish:#x}, v4
    v_xor_b32 v11, {5 << ish:#x}, v4
    v_xor_b32 v12, {6 << ish:#x}, v4
    v_xor_b32 v13, {7 << ish:#x}, v4
    s_lshl_b32 s34, s43, 11
    s_add_u32 s34, s34, {WS_H}
    v_lshl_add_u32 v15, v0, 4, s34
    """)
    stamp(1)
    A("s_cmp_eq_u32 s63, 0\ns_cbranch_scc0 L_loadF\ns_cmp_eq_u32 s30, 0\ns_cbranch_scc0 L_loadN")
    acts = schedule(seqN, win0Z, winZ, qidxZ, nb2Z, nWpreZ, capZ, qcostZ)
    split = [n for n, a in enumerate(acts) if a[4] == "V31"][0] + 1
    for a in acts[:split]: play(va, seqN, a, False)
    stamp(2)
    A(f"s_mov_b32 m0, {WOL}\ns_cmp_lt_u32 s31, 28\ns_cbranch_scc0 L_cloadZ")
    vc = va.fork()
    for a in acts[split:]: play(va, seqN, a, False)
    finish()
    A("L_cloadZ:")
    for a in acts[split:]: play(vc, seqN, a, True)
    finish()
    A("L_loadF:")
    cur[:] = [ntfrom, ntmask, ntmaskV]
    for a in schedule(seqF, win0, win, qidx, nb2, nWpre, cap):
        play(vf, seqF, a, False)
        if a[4] == "V31":
            stamp(2); A(f"s_movk_i32 m0, {W2L}")
    finish()
    G = 32
    A(f"""
    {".p2align 12" if alignl else ""}
L_loadN:
    """)
    cur[:] = curN
    acts = schedule(seqN, win0N, winN, qidxN, nb2N, 16, capN)
    split = [n for n, a in enumerate(acts) if a[4] == "V31"][0] + 1
    for a in acts[:split]: play(vn, seqN, a, False)
    stamp(2)
    vc = vn
    A(f"""
L_cload:
    s_lshr_b32 s35, s43, {1 if pwide else 2}
    s_lshl_b32 s35, s35, 14
    s_and_b32 s47, s43, {1 if pwide else 3}
    s_lshl_b32 s47, s47, {12 if pwide else 11}
    s_add_u32 s47, s47, s35
    s_add_u32 s47, s47, {WS_P}
    v_lshl_add_u32 v29, v0, 4, s47
    {"v_lshrrev_b32 v16, 2, v0" if pwide else ""}
    {"v_lshl_add_u32 v29, v16, 6, v29" if pwide else ""}
    s_lshl_b32 s34, s43, 4
    v_and_b32 v16, 3, v0
    v_lshl_add_u32 v19, v16, 2, v2
    v_add_lshl_u32 v19, v19, s34, 1
    """)
    if near == 2:
        A(f"""
    s_lshl_b32 s48, s43, 8
    s_add_u32 s48, s48, {WS_R}
    s_load_dword s50, s[28:29], s48 glc     ; two idle words, homed like the two copies of P
    s_load_dword s51, s[28:29], s48 offset:0x2100 glc
    """)
    for a in acts[split:]: play(vc, seqN, a, True)
    A(f"""
    global_load_ushort v30, v19, s[4:5]
    global_load_ushort v31, v19, s[22:23]
    s_mov_b32 s60, 0x0c0c0400
    s_mov_b32 s61, 0x0504000c
    s_mov_b32 s45, 0
    s_waitcnt lgkmcnt(0)
    s_mul_i32 s38, s38, 1664525
    s_add_u32 s38, s38, 1013904223          ; tag
    """)
    if near == 2:
        A("s_mov_b32 s49, 0")
        for r in range(nprobe):
            first, second = ((52, ""), (53, " offset:0x2100"))
            A(f"""
            s_not_b32 s53, s51
            s_load_dword s{first[0]}, s[28:29], s48{first[1]} glc
            s_load_dword s{second[0]}, s[28:29], s48{second[1]} glc
            s_waitcnt lgkmcnt(1)
            s_cmp_eq_u32 s53, s51
            s_addc_u32 s49, s49, 0
            s_waitcnt lgkmcnt(0)
            """)
        if stamps: A("s_mov_b32 s91, s49")
        A(f"s_cmp_gt_u32 s49, {nprobe // 2}\ns_cselect_b32 s49, 0x2000, 0\nv_add_u32 v29, s49, v29")
    elif near:
        A("s_add_u32 s48, s47, 0x2000\ns_mov_b32 s50, -1\ns_mov_b32 s51, -1")
        for r in range(nprobe):
            for c in range(2):
                A(f"""
                s_memtime s[52:53]
                s_load_dword s49, s[28:29], s{47+c} glc
                s_waitcnt lgkmcnt(0)
                s_memtime s[54:55]
                s_waitcnt lgkmcnt(0)
                s_sub_u32 s49, s54, s52
                s_min_u32 s{50+c}, s{50+c}, s49
                """)
        A("s_cmp_lt_u32 s51, s50\ns_cselect_b32 s49, 0x2000, 0\nv_add_u32 v29, s49, v29")
        if stamps: A("s_lshl_b32 s91, s51, 16\ns_add_u32 s91, s91, s50")
    A("""
    s_waitcnt vmcnt(0)
    v_lshlrev_b32 v30, 16, v30
    v_lshlrev_b32 v31, 16, v31
    v_add_f32 v30, v30, v31                 ; x + b2
    """)
    stamp(7)
    A("s_barrier")
    stamp(9)
    PM = [("s[4:5]", "s[6:7]"), ("s[8:9]", "s[10:11]"), ("s[12:13]", "s[14:15]"), ("s[16:17]", "s[18:19]")]
    def pissue(k, masked):
        r = 40 + 8*k
        if masked: A(f"s_or_b64 exec, {PM[k][0]}, 1")
        A(f"global_load_dwordx4 v[{r}:{r+3}], v29, s[28:29] sc1")
        if masked: A(f"s_or_b64 exec, {PM[k][1]}, 1")
        A(f"global_load_dwordx4 v[{r+4}:{r+7}], v29, s[28:29] offset:{2048 if pwide else 1024} sc1")
        if masked: A("s_mov_b64 exec, -1")
    def pcheck(k, left, tgt, cond):
        r = 40 + 8*k
        m0_, m1_ = PM[k & 3] if pmask else ("vcc", "s[54:55]")
        A(f"""
    s_waitcnt vmcnt({left})
    v_cmp_ne_u32 {m0_}, {TAG}, v{r+3}
    v_cmp_ne_u32 {m1_}, {TAG}, v{r+7}
    v_perm_b32 v36, v{r}, v{r+1}, s60
    v_perm_b32 v37, v{r+4}, v{r+5}, s60
    v_perm_b32 v36, v36, v{r+2}, s61
    v_perm_b32 v37, v37, v{r+6}, s61
    v_pk_add_f32 v[{G}:{G+1}], v[{r}:{r+1}], v[{r+4}:{r+5}]
    v_add_f32 v{G+2}, v{r+2}, v{r+6}
    v_add_f32 v{G+3}, v36, v37
    s_or_b64 vcc, {m0_}, {m1_}
    s_cbranch_scc{cond} {tgt}
    """)
    if pmask: A(f"s_mov_b64 {PM[pdepth-1][0]}, -1\ns_mov_b64 {PM[pdepth-1][1]}, -1")
    for k in range(pdepth - 1): pissue(k, False)
    A("L_ppoll:")
    for k in range(pdepth):
        pissue((k - 1) % pdepth, pmask)
        if k == 0: A(f"s_add_u32 s45, s45, 1\ns_cmp_ge_u32 s45, {spin}\ns_cbranch_scc1 L_pok")
        if k < pdepth - 1: pcheck(k, 2*(pdepth-1), "L_pok", 0)
        else: pcheck(k, 2*(pdepth-1), "L_ppoll", 1)
    A("L_pok:")
    stamp(10)
    A(f"""
    v_permlane32_swap_b32 v{G}, v{G+2}
    v_permlane32_swap_b32 v{G+1}, v{G+3}
    v_pk_add_f32 v[{G}:{G+1}], v[{G}:{G+1}], v[{G+2}:{G+3}]
    v_permlane16_swap_b32 v{G}, v{G+1}
    v_add_f32 v{G}, v{G}, v{G+1}
    v_add_f32_dpp v{G}, v{G}, v{G} row_ror:4 {DPP}
    v_add_f32_dpp v{G}, v{G}, v{G} row_ror:8 {DPP}
    s_mov_b32 exec_lo, 0x000f000f
    s_mov_b32 exec_hi, 0x000f000f
    v_add_f32 v{G}, v{G}, v30
    v_cvt_pk_bf16_f32 v{G}, v{G}, v{G}
    global_store_short v19, v{G}, s[24:25]
    s_cmp_eq_u32 s43, 0
    s_cbranch_scc0 {fin}
    s_mov_b64 exec, 1
    v_mov_b32 v2, 0
    v_mov_b32 v38, s38
    global_store_dword v2, v38, s[28:29]
    """)
    finish()
    inloader[0] = False
    A(f"""
L_comp:
    s_sub_u32 s3, s3, 1                     ; w
    v_and_b32 v1, 15, v0                    ; n
    v_lshrrev_b32 v8, 3, v1                 ; head = n>>3
    v_and_b32 v16, 3, v0
    s_lshl_b32 s34, s30, 13
    s_xor_b32 s35, s33, 4
    s_lshl3_add_u32 s35, s32, s35
    s_lshl_b32 s35, s35, 8
    s_add_u32 s35, s34, s35
    s_add_u32 s56, s35, {WS_Q}
    s_lshl_b32 s36, s3, 6
    s_add_u32 s35, s56, s36
    v_lshl_add_u32 v30, v2, 4, s35
    s_lshl3_add_u32 s35, s43, s33
    s_lshl_b32 s35, s35, 8
    s_add_u32 s57, s35, {WS_H}
    s_add_u32 s35, s57, s36
    v_lshl_add_u32 v31, v2, 4, s35
    global_load_dword v148, v30, s[28:29]
    global_load_dword v148, v31, s[28:29]
    v_bfe_u32 v14, v0, 2, 3
    v_lshlrev_b32 v14, 7, v14
    v_and_b32 v15, 3, v7
    v_lshl_add_u32 v14, v15, 5, v14
    v_lshl_add_u32 v14, v16, 3, v14
    v_lshrrev_b32 v15, 5, v0
    s_lshl_b32 s36, s3, 5
    v_xor_b32 v24, s36, v14
    v_lshl_add_u32 v20, v15, 12, v24
    v_add_u32 v20, {VL}, v20
    v_lshl_add_u32 v24, v15, 10, v24
    s_mul_i32 s35, s32, 224
    v_lshl_add_u32 v28, v2, 3, s35
    s_lshl_b32 s35, s33, 7
    v_lshl_add_u32 v29, v2, 3, s35
    s_mov_b32 s50, 0x07060503
    s_mov_b32 s51, 0x07060502
    s_mov_b32 s52, 0x07060501
    s_getreg_b32 s39, hwreg(HW_REG_XCC_ID, 0, 4)
    v_mov_b32 v46, 0
    v_mov_b32 v47, 0
    v_mov_b32 v78, 0
    v_mov_b32 v79, 0
    s_mov_b32 s37, 0
    v_mov_b32 v26, 0
    s_cmp_eq_u32 s3, 0
    s_cbranch_scc0 {"L_help" if help0 else "L_noln"}
    s_waitcnt vmcnt(2)
    """)
    X = 32
    for i in range(4):
        A(f"v_lshlrev_b32 v{X+2*i}, 16, v{140+i}")
        A(f"v_and_b32 v{X+1+2*i}, 0xffff0000, v{140+i}")
    def allreduce_add(r, t):
        for sh in (1, 2, 4, 8):
            A(f"v_add_f32_dpp v{r}, v{r}, v{r} row_ror:{sh} {DPP}")
        A(f"v_mov_b32 v{t}, v{r}")
        A(f"v_permlane16_swap_b32 v{t}, v{r}")
        A(f"v_add_f32 v{r}, v{r}, v{t}")
        A(f"v_mov_b32 v{t}, v{r}")
        A(f"v_permlane32_swap_b32 v{t}, v{r}")
        A(f"v_add_f32 v{r}, v{r}, v{t}")
    A(f"""
    v_pk_add_f32 v[40:41], v[{X}:{X+1}], v[{X+2}:{X+3}]
    v_pk_add_f32 v[42:43], v[{X+4}:{X+5}], v[{X+6}:{X+7}]
    v_pk_add_f32 v[40:41], v[40:41], v[42:43]
    v_add_f32 v40, v40, v41
    """)
    allreduce_add(40, 41)
    A(f"""
    v_mul_f32 v40, {f2u(1/448)}, v40        ; mean
    v_mov_b32 v42, 0
    v_mov_b32 v43, 0
    s_bfm_b64 exec, 56, 0
    """)
    for i in range(4):
        A(f"v_pk_add_f32 v[44:45], v[{X+2*i}:{X+2*i+1}], v[40:41] op_sel_hi:[1,0] neg_lo:[0,1] neg_hi:[0,1]")
        A("v_pk_fma_f32 v[42:43], v[44:45], v[44:45], v[42:43]")
    A("s_mov_b64 exec, -1\nv_add_f32 v42, v42, v43")
    allreduce_add(42, 41)
    A(f"""
    v_mul_f32 v42, {f2u(1/448)}, v42        ; var
    v_cvt_pk_bf16_f32 v40, v40, v42
    v_and_b32 v42, 0xffff0000, v40          ; bf16(var)
    v_lshlrev_b32 v40, 16, v40              ; bf16(mean)
    v_add_f32 v42, {f2u(1e-5)}, v42
    v_cvt_pk_bf16_f32 v42, v42, v42
    v_lshlrev_b32 v42, 16, v42
    v_sqrt_f32 v42, v42
    """)
    for i in range(4): A(f"v_pk_add_f32 v[{X+2*i}:{X+2*i+1}], v[{X+2*i}:{X+2*i+1}], v[40:41] op_sel_hi:[1,0] neg_lo:[0,1] neg_hi:[0,1]")
    A("v_cvt_pk_bf16_f32 v42, v42, v42\nv_lshlrev_b32 v42, 16, v42\nv_rcp_f32 v42, v42")
    for i in range(4): A(f"v_cvt_pk_bf16_f32 v{56+i}, v{X+2*i}, v{X+1+2*i}")
    for i in range(4):
        A(f"v_lshlrev_b32 v{X+2*i}, 16, v{56+i}")
        A(f"v_and_b32 v{X+1+2*i}, 0xffff0000, v{56+i}")
    for i in range(4): A(f"v_pk_mul_f32 v[{X+2*i}:{X+2*i+1}], v[{X+2*i}:{X+2*i+1}], v[42:43] op_sel_hi:[1,0]")
    for i in range(4): A(f"v_cvt_pk_bf16_f32 v{56+i}, v{X+2*i}, v{X+1+2*i}")
    A(f"""
    ds_write_b128 v3, v[56:59] offset:{XNL}
    """)
    if help0:
        assert kvpat == 6
        A(f"""
    s_branch L_noln
L_help:
    s_cmp_eq_u32 s30, 0
    s_cbranch_scc1 L_noln
    s_sub_u32 s40, s30, 1
    v_lshrrev_b32 v32, 2, v0
    s_cmp_eq_u32 s3, 1
    s_cbranch_scc0 L_helpk
    s_mul_i32 s35, s32, 7
    s_add_u32 s35, s35, s40
    s_lshl_b32 s35, s35, 17
    s_xor_b32 s36, s33, {4 ^ helpx}
    s_lshl_b32 s36, s36, 7
    s_add_u32 s35, s35, s36
    v_lshl_add_u32 v32, v32, 13, s35
    v_lshl_add_u32 v32, v16, 5, v32
    global_load_dword v148, v32, s[10:11]
    s_branch L_noln
L_helpk:
    s_cmp_gt_u32 s3, {1 + helpk}
    s_cbranch_scc1 L_noln
    s_sub_u32 s35, s3, 2
    s_mul_i32 s35, s35, 7
    s_add_u32 s40, s40, s35
    s_lshr_b32 s35, s40, 1
    s_lshl_b32 s35, s35, 17
    s_and_b32 s36, s40, 1
    s_lshl_b32 s36, s36, 8
    s_add_u32 s35, s35, s36
    s_lshr_b32 s36, s31, 3
    s_lshl_b32 s36, s36, 15
    s_add_u32 s35, s35, s36
    s_and_b32 s36, s31, 7
    s_lshl_b32 s36, s36, 9
    s_add_u32 s35, s35, s36
    s_add_u32 s35, s35, 0x300000
    v_mul_u32_u24 v32, {4096+512}, v7
    v_lshl_add_u32 v32, v5, 5, v32
    v_xor_b32 v32, s35, v32
    global_load_dword v148, v32, s[6:7]
    """)
    A(f"""
L_noln:
    s_waitcnt lgkmcnt(0)
    s_mul_i32 s38, s38, 1664525
    s_add_u32 s38, s38, 1013904223          ; tag
    s_add_u32 s39, s39, s38
    v_mov_b32 v63, s39
    """)
    stamp(1)
    A("s_barrier")
    XQ = 32; XH = 48; WF = 64
    for b in range(7):
        A(f"ds_read_b64 v[{XQ+2*b}:{XQ+2*b+1}], v28 offset:{XNL+32*b}")
        A(f"ds_read_b64_tr_b16 v[{WF+2*b}:{WF+2*b+1}], v24 offset:{WQL+2048*b}")
    for kk in range(4):
        A(f"s_waitcnt lgkmcnt({lg(max(0, 14-4*(kk+1)))})")
        c = "0" if kk == 0 else "v[56:59]"
        A(f"v_mfma_f32_16x16x32_bf16 v[56:59], v[{WF+4*kk}:{WF+4*kk+3}], v[{XQ+4*kk}:{XQ+4*kk+3}], {c}")
    for b in range(4): A(f"ds_read_b64 v[{XH+2*b}:{XH+2*b+1}], v29 offset:{XNL+32*b}")
    A(f"""
    s_mov_b32 exec_lo, 0x00010001
    s_mov_b32 exec_hi, 0x00010001
    v_perm_b32 v60, v56, v59, s50
    v_perm_b32 v61, v57, v59, s51
    v_perm_b32 v62, v58, v59, s52
    global_store_dwordx4 v30, v[60:63], s[28:29]
    """)
    if qbar: A("s_barrier")
    A("s_mov_b64 exec, -1")
    stamp(2)
    A(f"""
    s_cmp_eq_u32 s63, 0
    s_cbranch_scc1 L_noh
    s_barrier
    """)
    for b in range(4): A(f"ds_read_b64_tr_b16 v[{WF+2*b}:{WF+2*b+1}], v24 offset:{W1L+2048*b}")
    A(f"""
    v_mov_b32 v63, s38
    s_waitcnt lgkmcnt({lg(2)})
    v_mfma_f32_16x16x32_bf16 v[56:59], v[{WF}:{WF+3}], v[{XH}:{XH+3}], 0
    s_waitcnt lgkmcnt(0)
    v_mfma_f32_16x16x32_bf16 v[56:59], v[{WF+4}:{WF+7}], v[{XH+4}:{XH+7}], v[56:59]
    s_lshl_b32 s35, s43, 7
    v_lshl_add_u32 v6, v16, 3, s35
    v_lshl_add_u32 v6, v2, 5, v6            ; b1 offset: unit 64*block + 16s + 4*(n&3)
    global_load_dwordx2 v[80:81], v6, s[18:19]
    s_mov_b32 exec_lo, 0x00010001
    s_mov_b32 exec_hi, 0x00010001
    v_perm_b32 v60, v56, v59, s50
    v_perm_b32 v61, v57, v59, s51
    v_perm_b32 v62, v58, v59, s52
    global_store_dwordx4 v31, v[60:63], s[28:29]
    s_mov_b64 exec, -1
    s_branch L_hdone
L_noh:
    s_cmp_lt_u32 s31, 28
    s_cbranch_scc1 L_hdone
    s_lshl_b32 s36, s30, 11
    s_and_b32 s35, s32, 1
    s_lshl_b32 s35, s35, 10
    s_add_u32 s36, s36, s35
    s_lshr_b32 s35, s3, 1
    s_lshl_b32 s35, s35, 9
    s_add_u32 s36, s36, s35
    s_lshr_b32 s35, s32, 1
    s_lshl_b32 s35, s35, 8
    s_add_u32 s36, s36, s35
    s_add_u32 s36, s36, {WS_L}
    v_lshl_add_u32 v26, v7, 5, s36
    v_lshl_add_u32 v26, v16, 3, v26
    s_lshl2_add_u32 s36, s44, s3
    s_lshl_b32 s35, s36, 12
    s_add_u32 s35, s35, {WS_O}
    v_lshl_add_u32 v30, v0, 4, s35          ; O gather
    s_lshl_b32 s35, s36, 7
    s_add_u32 s35, s35, {WS_F}
    v_lshl_add_u32 v28, v5, 4, s35
    {"v_lshl_add_u32 v28, v15, 3, v28         ; F store" if not ffmt else ""}
    global_load_dword v148, v26, s[28:29]
    global_load_dword v148, v28, s[28:29]
    s_lshr_b32 s35, s43, {1 if pwide else 2}
    s_lshl_b32 s35, s35, 14
    s_and_b32 s40, s43, {1 if pwide else 3}
    s_lshl_b32 s40, s40, {12 if pwide else 11}
    s_add_u32 s35, s35, s40
    s_lshl_b32 s40, s3, {10 if pwide else 9}
    s_add_u32 s35, s35, s40
    s_add_u32 s37, s35, {WS_P}
    s_lshl_b32 s36, s43, 5
    s_lshr_b32 s33, s32, 1
    s_lshl_b32 s33, s33, 3
    s_load_dword s41, s[22:23], s36
    s_load_dword s41, s[24:25], s36
    """)
    for e in range(8): A(f"s_load_dword s41, s[28:29], s37 offset:{(128 if pwide else 64)*e}")
    OT = "global_load_dword v148, v14, s[28:29]"
    A(f"""
L_hdone:
    s_lshl_b32 s35, s3, 9
    s_add_u32 s34, s34, s35
    s_add_u32 s34, s34, {WS_Q}
    v_and_b32 v10, 31, v0
    v_lshl_add_u32 v18, v15, 11, s34
    v_lshl_add_u32 v18, v10, 4, v18
    v_add_u32 v19, 0x1000, v18
    s_lshl_b32 s34, s30, 16
    s_lshl_b32 s35, s3, 13
    s_add_u32 s35, s35, s34
    s_lshl_b32 s36, s31, 7
    s_add_u32 s35, s35, s36
    s_add_u32 s35, s35, {WS_O}
    v_lshl_add_u32 v14, v8, 15, s35
    v_lshl_add_u32 v14, v15, 12, v14
    v_and_b32 v9, 1, v2
    v_lshl_add_u32 v14, v9, 6, v14
    v_lshl_add_u32 v14, v16, 4, v14
    {OT if otouch == "early" else ""}
    s_barrier
    """)
    vw = VM(A)
    vw.op("Q", "global_load_dwordx4 v[64:67], v18, s[28:29] sc1")
    vw.op("Q", "global_load_dwordx4 v[68:71], v19, s[28:29] sc1")
    stamp(3)
    A(f"""
    s_lshr_b32 s34, s3, 1
    s_mul_i32 s34, s34, {QHS}
    s_and_b32 s35, s3, 1
    s_lshl_b32 s35, s35, 8
    s_add_u32 s34, s34, s35
    v_lshl_add_u32 v10, v10, 3, s34
    v_lshl_add_u32 v17, v15, 2, v10
    v_mul_u32_u24 v9, {QHS}, v8
    v_lshl_add_u32 v9, v2, 4, v9
    v_mul_u32_u24 v10, {SHS}, v8
    v_lshl_add_u32 v10, v2, 6, v10
    s_lshl_b32 s36, s3, 4
    v_add_u32 v11, s36, v10
    v_lshlrev_b32 v12, 2, v8
    v_mov_b32 v13, 0xff800000
    ds_write_b32 v12, v13 offset:{ML}
    s_lshl_b32 s36, s3, 2
    v_mov_b32 v25, s36
    s_lshl_b32 s36, s3, 13
    s_add_u32 s36, s36, {KL}
    v_lshl_add_u32 v3, v8, 12, s36
    v_lshl_add_u32 v3, v5, 7, v3
    v_and_b32 v4, 6, v0
    v_xor_b32 v4, v4, v2
    v_lshl_add_u32 v3, v4, 4, v3
    v_xor_b32 v4, 64, v3
    s_lshl_b32 s34, s30, 11
    s_lshl_b32 s35, s3, 9
    s_add_u32 s34, s34, s35
    s_and_b32 s35, s31, 7
    s_lshl_b32 s35, s35, 5
    s_add_u32 s34, s34, s35
    s_and_b32 s35, s31, 24
    s_add_u32 s34, s34, s35
    s_add_u32 s34, s34, {WS_L}
    v_lshl_add_u32 v13, v8, 8, s34
    s_mov_b32 s46, 0x01010101
    s_mov_b32 s47, s46
    s_mov_b32 s48, 0x0f0f0f0f
    s_mov_b32 s49, s48
    s_mov_b32 s53, {f2u(LOG2E/16)}
    s_mov_b32 s60, 0x0c0c0400
    s_mov_b32 s61, 0x0504000c
    s_mov_b32 s45, 0
    v_mov_b32 v152, 0x3f803f80
    v_mov_b32 v153, v152
    v_mov_b32 v154, v152
    v_mov_b32 v155, v152
    s_cmp_lt_u32 s31, 28
    s_cbranch_scc1 L_gsetup
    """)
    for e in range(8): A(f"s_load_dword s41, s[28:29], s37 offset:{8192+(128 if pwide else 64)*e}")
    A(f"""
    s_branch L_sdone
    {".p2align 12" if alignc else ""}
L_gsetup:
    v_lshrrev_b32 v6, 2, v1
    v_lshlrev_b32 v6, 8, v6
    v_lshl_add_u32 v6, v2, 6, v6
    v_lshl_add_u32 v6, v16, 4, v6
    s_lshl_b32 s35, s43, 11
    s_add_u32 s35, s35, {WS_H}
    v_add_u32 v26, s35, v6
    v_add_u32 v6, {HL}, v6
    v_mov_b32 v76, 0
    v_mov_b32 v77, 0
    v_mov_b32 v78, 0
    v_mov_b32 v79, s38
    s_lshl_b32 s35, s44, 9
    s_add_u32 s35, s35, {WS_F}
    v_bfe_u32 v28, v0, 2, 1
    v_lshl_add_u32 v28, v28, 8, s35
    v_lshl_add_u32 v28, v2, 6, v28
    v_lshl_add_u32 v28, v16, 4, v28
    s_lshl_b32 s35, s33, {15 if pwide else 14}
    {"s_and_b32 s36, s3, 2" if pwide else ""}
    {"s_lshl_b32 s36, s36, 13" if pwide else ""}
    {"s_add_u32 s35, s35, s36" if pwide else ""}
    {"s_and_b32 s36, s3, 1" if pwide else "s_mov_b32 s36, s3"}
    s_lshl_b32 s36, s36, {12 if pwide else 11}
    s_add_u32 s35, s35, s36
    {"s_lshl3_add_u32 s36, s32, s30" if pidx == 1 else ""}
    {"s_lshr_b32 s36, s30, 2" if pidx == 2 else ""}
    {"s_lshl1_add_u32 s36, s30, s36" if pidx == 2 else ""}
    {"s_and_b32 s36, s36, 7" if pidx == 2 else ""}
    {"s_lshl3_add_u32 s36, s32, s36" if pidx == 2 else ""}
    s_lshl_b32 s36, {"s36" if pidx else "s44"}, {7 if pwide else 6}
    s_add_u32 s35, s35, s36
    s_add_u32 s35, s35, {WS_P}
    v_lshl_add_u32 v29, v2, 4, s35
    v_add_u32 v30, 0x2000, v29
L_sdone:
    """)
    if qins:
        A("s_barrier")
        vw.op("QB", "global_load_dwordx4 v[160:163], v18, s[28:29] sc1")
        vw.op("QB", "global_load_dwordx4 v[164:167], v19, s[28:29] sc1")
    A("s_barrier")
    if otouch == "k": vw.op("T", OT)
    for i in range(8): A(f"ds_read_b128 v[{32+4*i}:{35+4*i}], v{3+(i&1)} offset:{1024*(i>>1)}")
    vw.wait("Q")
    if qins: nqb = vw.after("QB")
    QF = 84; VF = 116
    vreg = lambda t, kb: VF + 16*(kb >> 1) + 4*t + 2*(kb & 1)
    vread = lambda t, kb: f"ds_read_b64_tr_b16 v[{vreg(t,kb)}:{vreg(t,kb)+1}], v20 offset:{8192*kb+1024*t}"
    A(f"""
L_qchk:
    v_cmp_ne_u32 vcc, s39, v67
    v_cmp_ne_u32 s[54:55], s39, v71
    v_perm_b32 v82, v64, v65, s60
    v_perm_b32 v83, v68, v69, s60
    v_perm_b32 v82, v82, v66, s61
    v_perm_b32 v83, v83, v70, s61
    s_or_b64 vcc, vcc, s[54:55]
    s_cbranch_scc1 L_qslow
    v_mov_b32 v67, {1 if force_sc1 else 0}
L_qok:
    """)
    stamp(4)
    A(f"""
    v_add_f32 v64, v64, v68
    v_add_f32 v66, v66, v70
    v_add_f32 v65, v65, v69
    v_add_f32 v82, v82, v83
    v_permlane32_swap_b32 v64, v66
    ds_write_b32 v25, v67 offset:{FLG}
    v_permlane32_swap_b32 v65, v82
    v_add_f32 v64, v64, v66
    v_add_f32 v65, v65, v82
    v_cvt_pk_bf16_f32 v64, v64, v65
    ds_write_b32 v17, v64 offset:{QL}
    v_mov_b32 v83, 0
    s_waitcnt lgkmcnt(0)
    s_barrier
    """)
    if fine == 1: stamp(1)
    for i in range(8):
        A(f"ds_read_b128 v[{QF+4*i}:{QF+4*i+3}], v9 offset:{QL+64*i}")
    if otouch == "b1": vw.op("T", OT)
    for i in range(8):
        A(f"s_waitcnt lgkmcnt({7-i+(1 if i == 7 else 0)})")
        A(f"v_mfma_f32_16x16x32_bf16 v[64:67], v[{32+4*i}:{35+4*i}], v[{QF+4*i}:{QF+4*i+3}], {'0' if i == 0 else 'v[64:67]'}")
        if i == 6: A(f"ds_read_b128 v[156:159], v83 offset:{FLG}")
    if fine == 1: stamp(2)
    A(f"""
    v_cvt_pk_bf16_f32 v68, v64, v65
    v_cvt_pk_bf16_f32 v69, v66, v67
    v_lshlrev_b32 v64, 16, v68
    v_and_b32 v65, 0xffff0000, v68
    v_lshlrev_b32 v66, 16, v69
    v_and_b32 v67, 0xffff0000, v69
    v_max_f32 v68, v64, v65
    v_max3_f32 v68, v66, v67, v68
    v_mul_f32 v68, s53, v68
    v_ceil_f32 v68, v68
    v_fma_f32 v64, v64, s53, -v68
    v_fma_f32 v65, v65, s53, -v68
    v_fma_f32 v66, v66, s53, -v68
    v_fma_f32 v67, v67, s53, -v68
    v_mul_f32 v70, 0x43000000, v68
    s_mov_b64 exec, s[46:47]
    ds_max_f32 v12, v70 offset:{ML}
    v_exp_f32 v64, v64
    v_exp_f32 v65, v65
    v_exp_f32 v66, v66
    v_exp_f32 v67, v67
    v_cvt_pk_bf16_f32 v68, v64, v65
    v_cvt_pk_bf16_f32 v69, v66, v67
    ds_write_b96 v11, v[68:70] offset:{SL}
    s_mov_b64 exec, -1
    s_lshl_b64 s[40:41], s[46:47], 1
    s_lshl_b64 s[42:43], s[46:47], 2
    s_lshl_b64 s[54:55], s[46:47], 3
    s_waitcnt lgkmcnt(2)
    v_or3_b32 v56, v156, v157, v158
    v_or_b32 v56, v56, v159
    v_mov_b32 v63, {TAG}
    v_readfirstlane_b32 s62, v56
    v_mov_b32 v67, {TAG}
    s_waitcnt lgkmcnt(0)
    s_barrier
    ds_read_b32 v68, v12 offset:{ML}
    """)
    if fine == 1: stamp(3)
    Y = 32; PB = 48; ACC = 84; OG = 100; LG = 72
    for w in range(4):
        A(f"ds_read_b128 v[{Y+4*w}:{Y+4*w+3}], v10 offset:{SL+16*w}")
    rest = [(t, kb) for t in range(4) for kb in (0, 1)] if pvmode == 3 else []
    for t, kb in rest: A(vread(t, kb))
    pv0 = lambda t: f"v_mfma_f32_16x16x32_bf16 v[{ACC+4*t}:{ACC+4*t+3}], v[{VF+4*t}:{VF+4*t+3}], v[{PB}:{PB+3}], 0"
    pv1 = lambda t: f"v_mfma_f32_16x16x32_bf16 v[{ACC+4*t}:{ACC+4*t+3}], v[{VF+16+4*t}:{VF+16+4*t+3}], v[{PB+4}:{PB+7}], v[{ACC+4*t}:{ACC+4*t+3}]"
    def rescale(c):
        a, b = Y + 8*c, Y + 8*c + 4
        return [f"v_sub_f32 v{a+2}, v68, v{a+2}", f"v_sub_f32 v{b+2}, v68, v{b+2}", f"v_cvt_u32_f32 v{a+2}, v{a+2}", f"v_cvt_u32_f32 v{b+2}, v{b+2}",
                f"v_cvt_pk_u16_u32 v{a+2}, v{a+2}, v{b+2}",
                f"v_pk_sub_u16 v{PB+4*c}, v{a}, v{a+2} op_sel_hi:[1,0] clamp",
                f"v_pk_sub_u16 v{PB+4*c+1}, v{a+1}, v{a+2} op_sel_hi:[1,0] clamp",
                f"v_pk_sub_u16 v{PB+4*c+2}, v{b}, v{a+2} op_sel:[0,1] clamp",
                f"v_pk_sub_u16 v{PB+4*c+3}, v{b+1}, v{a+2} op_sel:[0,1] clamp"]
    l0 = f"v_mfma_f32_16x16x32_bf16 v[56:59], v[152:155], v[{PB}:{PB+3}], 0"
    l1 = f"v_mfma_f32_16x16x32_bf16 v[56:59], v[152:155], v[{PB+4}:{PB+7}], v[56:59]"
    lfin = ["v_rcp_f32 v60, v56", "v_log_f32 v62, v56", "v_fmac_f32 v62, 0x3c000000, v68"]
    tmask = ["s[46:47]", "s[40:41]", "s[42:43]", "s[54:55]"]
    def sel(t):
        a = ACC + 4*t
        A(f"s_mov_b64 exec, {tmask[t]}")
        A(f"v_pk_mul_f32 v[34:35], v[{a+2}:{a+3}], v[60:61] op_sel_hi:[1,0]")
        A(f"v_pk_mul_f32 v[32:33], v[{a}:{a+1}], v[60:61] op_sel_hi:[1,0]")
    A(f"s_waitcnt lgkmcnt({2+len(rest)})")
    for x in rescale(0): A(x)
    A(f"s_waitcnt lgkmcnt({len(rest)})")
    r1 = rescale(1)
    if pvmode == 3:
        for x in r1[:2] + [l0] + r1[2:5] + ["s_waitcnt lgkmcnt(0)", pv0(0)] + r1[5:7] + [pv0(1)] + r1[7:] + [pv0(2), "s_cmp_eq_u32 s62, 0", l1, pv0(3)]: A(x)
        stamp(5)
        A("s_barrier")
        for t in range(4):
            for kb in (2, 3): A(vread(t, kb))
        stamp(6)
        for t in range(4):
            A(f"s_waitcnt lgkmcnt({lg(6-2*t)})"); A(pv1(t))
            if t < 3: A(lfin[t])
        for t in range(4): sel(t)
    else:
        for x in r1[:2] + [l0] + r1[2:] + ["s_cmp_eq_u32 s62, 0"]: A(x)
        stamp(5)
        A("s_barrier")
        for t in range(4):
            for kb in (0, 1): A(vread(t, kb))
        A(l1)
        for t in range(4):
            A(f"s_waitcnt lgkmcnt({lg(6-2*t)})"); A(pv0(t))
        A("s_barrier")
        for t in range(3):
            for kb in (2, 3): A(vread(t, kb))
        for t in range(3):
            A(f"s_waitcnt lgkmcnt({lg(4-2*t)})"); A(pv1(t)); A(lfin[t])
        for t in range(3): sel(t)
        A("s_mov_b64 exec, -1\ns_barrier")
        for kb in (2, 3): A(vread(3, kb))
        stamp(6)
        A("s_waitcnt lgkmcnt(0)"); A(pv1(3))
        sel(3)
    A(f"""
    s_mov_b64 exec, s[48:49]
    v_perm_b32 v66, v34, v35, s52
    v_perm_b32 v64, v32, v35, s50
    v_perm_b32 v65, v33, v35, s51
    s_cbranch_scc0 L_oslow
    global_store_dwordx4 v14, v[64:67], s[28:29]
    s_mov_b64 exec, 0x0101
    global_store_dwordx2 v13, v[62:63], s[28:29]
L_odone:
    s_barrier
    s_mov_b64 exec, -1
    """)
    stamp(7)
    A(f"""
    s_cmp_lt_u32 s31, 28
    s_cbranch_scc1 L_gemv
    """)
    WG = 40
    ms = ["s[40:41]", "s[42:43]", "s[56:57]", "s[58:59]"]
    lload = f"global_load_dwordx2 v[{LG}:{LG+1}], v26, s[28:29] sc1"
    oload = lambda a: f"global_load_dwordx4 v[{OG+4*a}:{OG+4*a+3}], v30, s[28:29] offset:{1024*a} sc1"
    A(lload)
    for a in range(4): A(oload(a) if ofirst else f"v_not_b32 v{OG+4*a+3}, v63")
    A(f"""
    s_mov_b32 s45, 0
    v_readlane_b32 s37, v62, s33            ; own lse of the head this workgroup combines
    s_mov_b32 s36, {f2u(wlim)}
    v_mov_b32 v{66 if ffmt else 59}, {TAG}
    s_mov_b32 s46, 0x11111111
    s_mov_b32 s47, s46
L_ochk:
    s_waitcnt vmcnt(0)
    v_cmp_ne_u32 s[54:55], {TAG}, v{LG+1}
    """)
    for a in range(4): A(f"v_cmp_ne_u32 {ms[a]}, {TAG}, v{OG+4*a+3}")
    A(f"""
    v_subrev_f32 v56, s37, v{LG}
    {f"v_perm_b32 v33, v{OG}, v{OG+1}, s60" if not cfast else ""}
    {"v_cmp_nge_f32 vcc, s36, v56" if not cfast else ""}
    {"v_exp_f32 v56, v56" if not cfast else ""}
    s_or_b64 s[34:35], {ms[0]}, {ms[1]}
    s_or_b64 s[48:49], {ms[2]}, {ms[3]}
    s_or_b64 s[34:35], s[34:35], s[54:55]
    s_or_b64 s[34:35], s[34:35], s[48:49]
    s_cbranch_scc1 L_oretry
L_ook:
    {"v_cmp_nge_f32 vcc, s36, v56" if cfast else ""}
    {"v_exp_f32 v56, v56" if cfast else ""}
    {f"v_perm_b32 v33, v{OG}, v{OG+1}, s60" if cfast else ""}
    {f"v_perm_b32 v{OG+7}, v{OG+4}, v{OG+5}, s60" if cfast else ""}
    {f"v_perm_b32 v{OG+11}, v{OG+8}, v{OG+9}, s60" if cfast else ""}
    {f"v_perm_b32 v{OG+15}, v{OG+12}, v{OG+13}, s60" if cfast else ""}
    s_cbranch_vccnz L_truemax
L_wok:
    """)
    stamp(9)
    QP = lambda p: f"quad_perm:[{p}] {DPP}"
    A(f"""
    v_mov_b32_dpp v{WG}, v56 {QP("0,0,0,0")}
    v_add_f32_dpp v57, v56, v56 {QP("1,0,3,2")}
    v_mov_b32_dpp v{WG+2}, v56 {QP("1,1,1,1")}
    v_perm_b32 v{OG+3}, v33, v{OG+2}, s61
    v_add_f32_dpp v57, v57, v57 {QP("2,3,0,1")}
    v_mov_b32_dpp v{WG+4}, v56 {QP("2,2,2,2")}
    v_mov_b32_dpp v{WG+6}, v56 {QP("3,3,3,3")}
    v_add_f32_dpp v56, v57, v57 row_ror:8 {DPP}
    v_pk_mul_f32 v[60:61], v[{OG}:{OG+1}], v[{WG}:{WG+1}] op_sel_hi:[1,0]
    v_mov_b32 v57, v56
    v_pk_mul_f32 v[62:63], v[{OG+2}:{OG+3}], v[{WG}:{WG+1}] op_sel_hi:[1,0]
    """)
    den = [None, ["v_permlane16_swap_b32 v57, v56", "v_add_f32 v56, v56, v57", "v_mov_b32 v57, v56"], ["v_permlane32_swap_b32 v57, v56"], []]
    for a in range(1, 4):
        if not cfast: A(f"v_perm_b32 v{OG+4*a+3}, v{OG+4*a}, v{OG+4*a+1}, s60")
        A(f"v_pk_fma_f32 v[60:61], v[{OG+4*a}:{OG+4*a+1}], v[{WG+2*a}:{WG+2*a+1}], v[60:61] op_sel_hi:[1,0,1]")
        A(f"v_perm_b32 v{OG+4*a+3}, v{OG+4*a+3}, v{OG+4*a+2}, s61")
        for x in den[a]: A(x)
        A(f"v_pk_fma_f32 v[62:63], v[{OG+4*a+2}:{OG+4*a+3}], v[{WG+2*a}:{WG+2*a+1}], v[62:63] op_sel_hi:[1,0,1]")
    A(f"""
    v_add_f32 v56, v56, v57
    s_cmp_eq_u32 s62, 0
    v_permlane32_swap_b32 v60, v62
    v_permlane32_swap_b32 v61, v63
    v_pk_add_f32 v[60:61], v[60:61], v[62:63]
    v_rcp_f32 v56, v56
    v_permlane16_swap_b32 v60, v61
    v_add_f32 v60, v60, v61
    v_add_f32_dpp v60, v60, v60 row_ror:8 {DPP}
    v_mul_f32 v61, v60, v56
    v_mul_f32 v60, v60, v56
    v_permlane16_swap_b32 v61, v60
    """)
    FST = "global_store_dwordx4 v28, v[64:67], s[28:29]" if ffmt else "global_store_dwordx2 v28, v[58:59], s[28:29]"
    if ffmt:
        A(f"""
    v_cvt_pk_bf16_f32 v64, v61, v60
    v_cvt_pk_bf16_f32 v65, v61, v60
    v_permlane32_swap_b32 v64, v65
    s_mov_b64 exec, 0xff
    s_cbranch_scc0 L_fslow
    {FST}
    """)
    else:
        A(f"""
    s_mov_b32 exec_lo, 0xff
    s_mov_b32 exec_hi, 0xff
    v_cvt_pk_bf16_f32 v58, v61, v60
    s_cbranch_scc0 L_fslow
    {FST}
    """)
    stamp(10)
    A("s_barrier")
    finish()
    A(f"""
L_oretry:
    {lload}
    {"s_bcnt1_i32_b64 s34, s[54:55]" if othr < 32 else ""}
    {f"s_cmp_gt_u32 s34, {2*othr}" if othr < 32 else ""}
    {"s_cbranch_scc1 L_omany" if othr < 32 else ""}
    """)
    for a in range(4):
        A(f"s_or_b64 exec, {ms[a]}, 1\n{oload(a)}")
    A(f"""
L_onext:
    s_mov_b64 exec, -1
    s_add_u32 s45, s45, 1
    s_cmp_ge_u32 s45, {spin}
    s_cbranch_scc0 L_ochk
    s_waitcnt vmcnt(0)
    s_branch L_ook
L_omany:
    """)
    for a in range(4 if othr < 32 else 0):
        A(f"""
        {f"s_lshr_b64 s[54:55], s[54:55], 1" if a else ""}
        s_and_b64 s[34:35], s[54:55], s[46:47]
        s_wqm_b64 s[34:35], s[34:35]
        s_andn2_b64 s[34:35], {ms[a]}, s[34:35]
        s_or_b64 exec, s[34:35], 1
        {oload(a)}
        """)
    A(f"""
    s_branch L_onext
L_truemax:
    ; some split outweighs this workgroup's own by more than 2^24: take the true maximum as the reference
    v_max_f32_dpp v56, v{LG}, v{LG} {QP("1,0,3,2")}
    v_max_f32_dpp v56, v56, v56 {QP("2,3,0,1")}
    v_max_f32_dpp v56, v56, v56 row_ror:8 {DPP}
    v_mov_b32 v57, v56
    v_permlane16_swap_b32 v57, v56
    v_max_f32 v56, v56, v57
    v_mov_b32 v57, v56
    v_permlane32_swap_b32 v57, v56
    v_max_f32 v56, v56, v57
    v_sub_f32 v56, v{LG}, v56
    v_exp_f32 v56, v56
    s_nop 1
    s_branch L_wok
L_fslow:
    {FST} sc1
    s_barrier
    """)
    finish()
    A(f"""
L_gemv:
    s_cmp_eq_u32 s63, 0
    s_cbranch_scc1 L_noffn
    {"s_barrier" if hlate else ""}
    ds_read_b128 v[72:75], v6
    s_mov_b32 exec_lo, 0x0fff0fff
    s_mov_b32 exec_hi, 0x0fff0fff
    ds_read_b128 v[76:79], v6 offset:1024
    s_mov_b64 exec, -1
    s_waitcnt lgkmcnt(0)
L_hchk:
    v_cmp_ne_u32 vcc, {TAG}, v75
    v_cmp_ne_u32 s[54:55], {TAG}, v79
    v_perm_b32 v82, v72, v73, s60
    v_perm_b32 v83, v76, v77, s60
    s_or_b64 vcc, vcc, s[54:55]
    s_cbranch_scc1 L_hretry
L_hok:
    v_perm_b32 v75, v82, v74, s61
    v_perm_b32 v79, v83, v78, s61
    v_pk_add_f32 v[72:73], v[72:73], v[76:77]
    v_pk_add_f32 v[74:75], v[74:75], v[78:79]
    v_lshlrev_b32 v76, 16, v80
    """)
    for sh in (4, 8):
        for r in range(4): A(f"v_add_f32_dpp v{72+r}, v{72+r}, v{72+r} row_ror:{sh} {DPP}")
    def rnd():
        A("""
        v_cvt_pk_bf16_f32 v82, v72, v73
        v_cvt_pk_bf16_f32 v83, v74, v75
        v_lshlrev_b32 v72, 16, v82
        v_and_b32 v73, 0xffff0000, v82
        v_lshlrev_b32 v74, 16, v83
        v_and_b32 v75, 0xffff0000, v83
        """)
    rnd()
    A("""
    v_and_b32 v77, 0xffff0000, v80
    v_lshlrev_b32 v78, 16, v81
    v_and_b32 v79, 0xffff0000, v81
    v_pk_add_f32 v[72:73], v[72:73], v[76:77]
    v_pk_add_f32 v[74:75], v[74:75], v[78:79]
    """)
    rnd()
    c1 = -2 * LOG2E * 0.7978845608028654
    A(f"""
    v_mov_b32 v80, {f2u(c1)}
    v_pk_mul_f32 v[76:77], v[72:73], v[72:73]
    v_pk_mul_f32 v[78:79], v[74:75], v[74:75]
    """)
    for r in range(4): A(f"v_fmamk_f32 v{76+r}, v{76+r}, {f2u(c1*0.044715)}, v80")
    A("v_pk_mul_f32 v[76:77], v[76:77], v[72:73]\nv_pk_mul_f32 v[78:79], v[78:79], v[74:75]")
    for r in range(4): A(f"v_exp_f32 v{76+r}, v{76+r}")
    for r in range(4): A(f"v_add_f32 v{76+r}, 1.0, v{76+r}")
    for r in range(4): A(f"v_rcp_f32 v{76+r}, v{76+r}")
    A(f"""
    v_pk_mul_f32 v[76:77], v[76:77], v[72:73]
    v_pk_mul_f32 v[78:79], v[78:79], v[74:75]
    v_cvt_pk_bf16_f32 v82, v76, v77
    v_cvt_pk_bf16_f32 v83, v78, v79
    {"" if hlate else "s_barrier"}
    """)
    WF2 = 116
    for b in range(4): A(f"ds_read_b64_tr_b16 v[{WF2+2*b}:{WF2+2*b+1}], v24 offset:{W2L+2048*b}")
    for m in range(4): A(f"v_mov_b64_dpp v[{72+2*m}:{73+2*m}], v[82:83] row_newbcast:{m} {DPP}")
    A(f"""
    s_waitcnt lgkmcnt(0)
    v_mfma_f32_16x16x32_bf16 v[48:51], v[{WF2}:{WF2+3}], v[72:75], 0
    v_mfma_f32_16x16x32_bf16 v[48:51], v[{WF2+4}:{WF2+7}], v[76:79], v[48:51]
L_ffnd:
    s_mov_b32 s45, 0
    v_mov_b32 v55, {TAG}
    {"global_load_dwordx4 v[60:63], v28, s[28:29] sc1" if f0 else ""}
    s_barrier
    global_load_dwordx4 v[56:59], v28, s[28:29] sc1
    """)
    nb_early = max(0, (fpoll + 1 - 8) // 2)
    for b in range(nb_early): A(f"ds_read_b64_tr_b16 v[{WF2+8+2*b}:{WF2+9+2*b}], v24 offset:{WOL+2048*b}")
    A("s_barrier")
    for b in range(nb_early, 8): A(f"ds_read_b64_tr_b16 v[{WF2+8+2*b}:{WF2+9+2*b}], v24 offset:{WOL+2048*b}")
    stamp(8)
    FS = [56, 68, 100, 104][:fdepth]
    bc = lambda e, r: f"v_mov_b64_dpp v[{84+2*e}:{85+2*e}], v[{r}:{r+1}] row_newbcast:{e} {DPP}"
    gm = lambda kk: f"v_mfma_f32_16x16x32_bf16 v[48:51], v[{WF2+8+4*kk}:{WF2+11+4*kk}], v[{84+4*kk}:{87+4*kk}], v[48:51]"
    def fcheck(r, tgt, cond):
        if ffmt:
            A(f"v_cmp_ne_u32 vcc, {TAG}, v{r+2}")
            for e in range(4): A(bc(e, r))
            A(f"v_mov_b64 v[108:109], v[{r}:{r+1}]")
            A(f"s_cbranch_vcc{'nz' if cond else 'z'} {tgt}")
            return
        A(f"""
        v_cmp_ne_u32 vcc, {TAG}, v{r+1}
        v_cmp_ne_u32 s[54:55], {TAG}, v{r+3}
        v_mov_b32 v108, v{r}
        v_mov_b32 v109, v{r+2}
        s_or_b64 vcc, vcc, s[54:55]
        s_cbranch_scc{cond} {tgt}
        """)
    if f0:
        A("s_waitcnt vmcnt(1)")
        fcheck(60, "L_fsecond", 1)
    else:
        A("s_waitcnt vmcnt(0)")
        fcheck(56, "L_fretry", 1)
    A("L_fok:")
    stamp(9)
    if ffmt:
        for x in ["s_waitcnt lgkmcnt(0)", gm(0), bc(4, 108), bc(5, 108), gm(1), bc(6, 108), bc(7, 108), gm(2)]: A(x)
    else:
        for kk in range(4):
            for h in range(2): A(bc(2*kk+h, 108))
            if kk == 1: A("s_waitcnt lgkmcnt(0)")
            if kk >= 1: A(gm(kk - 1))
    A(f"""
    v_mfma_f32_16x16x32_bf16 v[48:51], v[{WF2+20}:{WF2+23}], v[96:99], v[48:51]
    s_mov_b32 exec_lo, 0x00010001
    s_mov_b32 exec_hi, 0x00010001
    v_perm_b32 v52, v48, v51, s50
    v_perm_b32 v53, v49, v51, s51
    v_perm_b32 v54, v50, v51, s52
    global_store_dwordx4 v29, v[52:55], s[28:29] sc1
    """)
    if near: A("global_store_dwordx4 v30, v[52:55], s[28:29] sc1")
    stamp(10)
    finish()
    if f0:
        A("L_fsecond:\ns_waitcnt vmcnt(0)")
        fcheck(56, "L_fok", 0)
    A("L_fretry:")
    for r in FS[:-1]: A(f"global_load_dwordx4 v[{r}:{r+3}], v28, s[28:29] sc1")
    A("L_floop:")
    for n, r in enumerate(FS):
        nx = FS[(n - 1) % fdepth]
        A(f"global_load_dwordx4 v[{nx}:{nx+3}], v28, s[28:29] sc1")
        A(f"s_waitcnt vmcnt({fdepth-1})")
        fcheck(r, "L_fok", 0)
    A(f"""
    s_add_u32 s45, s45, 1
    s_cmp_ge_u32 s45, {spin}
    s_cbranch_scc0 L_floop
    s_branch L_fok
L_hretry:
    s_add_u32 s45, s45, 1
    s_cmp_ge_u32 s45, {spin}
    s_cbranch_scc1 L_hok
    global_load_dwordx4 v[72:75], v26, s[28:29] sc1
    s_mov_b32 exec_lo, 0x0fff0fff
    s_mov_b32 exec_hi, 0x0fff0fff
    global_load_dwordx4 v[76:79], v26, s[28:29] offset:1024 sc1
    s_mov_b64 exec, -1
    {"s_add_u32 s91, s91, 0x10000" if stamps else ""}
    s_waitcnt vmcnt(0)
    s_branch L_hchk
L_noffn:
    v_mov_b32 v48, 0
    v_mov_b32 v49, 0
    v_mov_b32 v50, 0
    v_mov_b32 v51, 0
    s_branch L_ffnd
L_oslow:
    global_store_dwordx4 v14, v[64:67], s[28:29] sc1
    s_mov_b64 exec, 0x0101
    global_store_dwordx2 v13, v[62:63], s[28:29] sc1
    s_branch L_odone
L_qslow:
    ; a granule is valid when tag <= word < tag + 16; it differs from tag + xcc when its producer sits on another XCD
    v_subrev_u32 v67, {TAG}, v67
    v_subrev_u32 v71, {TAG}, v71
    v_or_b32 v67, v67, v71
    v_cmp_lt_u32 s[58:59], 15, v67
    s_add_u32 s45, s45, 1
    s_cmp_eq_u64 s[58:59], 0
    s_cbranch_scc1 L_repub
    {"s_cmp_eq_u32 s45, 1" if qins else ""}
    {"s_cbranch_scc1 L_qsecond" if qins else ""}
    s_cmp_eq_u32 s45, 3
    s_cbranch_scc0 L_qagain
L_repub:
    ; the group may span XCDs: write this workgroup's q and h partial sums through to memory
    v_mov_b32 v67, s57
    v_mov_b32 v71, s56
    v_cmp_gt_u32 vcc, 16, v0
    s_cmp_eq_u32 s63, 0
    s_cselect_b32 s34, 0xffff, -1
    s_mov_b32 s35, 0
    v_cndmask_b32 v67, v67, v71, vcc
    v_lshl_add_u32 v67, v1, 4, v67
    s_mov_b32 s40, 0
    s_mov_b64 exec, s[34:35]
L_repub1:
    global_load_dwordx4 v[156:159], v67, s[28:29] sc1
    s_add_u32 s40, s40, 1
    s_cmp_ge_u32 s40, {spin}
    s_waitcnt vmcnt(0)
    s_cbranch_scc1 L_repub2
    v_subrev_u32 v71, {TAG}, v159
    v_cmp_lt_u32 vcc, 15, v71
    s_cbranch_vccnz L_repub1
L_repub2:
    global_store_dwordx4 v67, v[156:159], s[28:29] sc1
    s_mov_b64 exec, -1
    s_waitcnt vmcnt(0)
    v_mov_b32 v67, 1
    s_cmp_eq_u64 s[58:59], 0
    s_cbranch_scc1 L_qok
L_qagain:
    v_mov_b32 v67, 1
    s_cmp_ge_u32 s45, {spin}
    s_cbranch_scc1 L_qok
    global_load_dwordx4 v[64:67], v18, s[28:29] sc1
    global_load_dwordx4 v[68:71], v19, s[28:29] sc1
    {"s_add_u32 s91, s91, 1" if stamps else ""}
    s_waitcnt vmcnt(0)
    s_branch L_qchk
    """)
    if qins:
        A(f"L_qsecond:\ns_waitcnt vmcnt({nqb})")
        if stamps: A("s_add_u32 s91, s91, 0x1000000")
        for e in range(4): A(f"v_mov_b64 v[{64+2*e}:{65+2*e}], v[{160+2*e}:{161+2*e}]")
        A("s_branch L_qchk")
    if stamps:
        A(f"""
L_stamps:
    s_memrealtime s[86:87]
    s_mov_b64 exec, -1
    s_waitcnt vmcnt(0)
    s_memrealtime s[88:89]
    s_waitcnt lgkmcnt(0)
    s_mul_i32 s35, s2, 5
    s_add_u32 s35, s35, s90
    s_lshl_b32 s35, s35, 6
    s_add_u32 s35, s35, {WS_ST}
    v_mov_b32 v2, s35
    """)
        for i in range(13):
            A(f"v_mov_b32 v3, s{64+2*i}")
            A(f"global_store_dword v2, v3, s[28:29] offset:{4*i}")
        A("v_mov_b32 v3, s45"); A("global_store_dword v2, v3, s[28:29] offset:52")
        A("v_mov_b32 v3, s91"); A("global_store_dword v2, v3, s[28:29] offset:56")
    if diag is not None:
        base, mult, idx = diag[:3]
        gsel, who = diag[3:] if len(diag) > 3 else (None, None)
        A(f"""
    s_waitcnt vmcnt(0) lgkmcnt(0)
    s_sub_u32 s34, s{64+2*idx}, s64
    s_cmp_eq_u32 s{64+2*idx}, 0
    s_cselect_b32 s34, 0, s34
    {f"s_cmp_eq_u32 s30, {gsel}" if gsel is not None else ""}
    {"s_cselect_b32 s34, s34, 0" if gsel is not None else ""}
    {"s_cmp_eq_u32 s90, 0" if who else ""}
    {("s_cselect_b32 s34, s34, 0" if who == "L" else "s_cselect_b32 s34, 0, s34") if who else ""}
    s_mul_i32 s34, s34, {mult}
    s_add_u32 s34, s34, {base}
    {f"s_cmp_eq_u32 s30, {gsel}" if gsel is not None else ""}
    {"s_cselect_b32 s34, s34, 0" if gsel is not None else ""}
L_diag:
    s_memrealtime s[36:37]
    s_waitcnt lgkmcnt(0)
    s_sub_u32 s36, s36, s64
    s_cmp_lt_u32 s36, s34
    s_cbranch_scc1 L_diag
    """)
    A("L_end:")
    A("s_endpgm")
    if stamps:
        idx = A.L.index("s_lshr_b32 s33, s31, 2                  ; cg")
        for i in range(1, 13): A.L.insert(idx, f"s_mov_b32 s{64+2*i}, 0")
        A.L.insert(idx, "s_mov_b32 s91, 0"); A.L.insert(idx, "s_mov_b32 s90, s3"); A.L.insert(idx, "s_mov_b32 s45, 0")
    A.check()
    head = f"""; fused layernorm + sliding-window GQA decode attention + GELU MLP, one launch of 256 workgroups
; @launch grid=(256,1,1) block=(320,1,1) lds={LDS_TOTAL}
.amdgcn_target "amdgcn-amd-amdhsa--gfx950"
.text
.globl {NAME}_kernel
.p2align 12
{".fill 832, 4, 0xbf800000" if start0 else ""}
.type {NAME}_kernel,@function
{NAME}_kernel:
"""
    tail = f""".fill 1024, 4, 0xbf800000
.section .rodata,"a"
.p2align 6
.amdhsa_kernel {NAME}_kernel
  .amdhsa_next_free_vgpr 168
  .amdhsa_next_free_sgpr 96
  .amdhsa_accum_offset 168
  .amdhsa_group_segment_fixed_size 0
  .amdhsa_kernarg_size 104
  .amdhsa_user_sgpr_count 2
  .amdhsa_user_sgpr_kernarg_segment_ptr 1
  .amdhsa_system_sgpr_workgroup_id_x 1
  .amdhsa_float_denorm_mode_32 3
.end_amdhsa_kernel
"""
    return head + A.text() + tail

if __name__ == "__main__":
    out = sys.argv[1]
    kw = {}
    for a in sys.argv[2:]:
        k, v = a.split("=", 1)
        kw[k] = eval(v)
    open(out, "w").write(gen(**kw))
```
